```python
import torch

def _softmax(x, axis=-1):
    return torch.softmax(x, dim=axis)
def _gelu(x):
    return torch.nn.functional.gelu(x, approximate="tanh")
def _silu(x):
    return torch.nn.functional.silu(x)
def _sigmoid(x):
    return torch.sigmoid(x)
def _layernorm(x, axis=-1, eps=1e-5):
    m = x.mean(dim=axis, keepdim=True)
    v = x.var(dim=axis, keepdim=True, unbiased=False)
    return (x - m) / torch.sqrt(v + eps)
def _scatter_add(tgt, idx, src, axis=0):
    return tgt.clone().index_add_(axis, idx, src)
def _segment_sum(src, seg, n):
    out = torch.zeros((n,) + src.shape[1:], dtype=src.dtype)
    return out.index_add_(0, seg, src)
def _pad(x, pw):
    flat = tuple(v for pair in reversed(pw) for v in pair)
    return torch.nn.functional.pad(x, flat)

kernel_name = 'parallel_sum__mha_block_cached__glu_gated_glu__decode'

def setup_inputs():

    _w = (lambda a: (lambda t: t.to(torch.bfloat16) if t.is_floating_point() else t)(torch.as_tensor(a)))
    def _A_setup():
        B, Sq, D = 1, 1, 640
        H, Sk, Dh = 32, 4096, 192
        return {
            "x": _w((lambda *s: torch.randn(*s, dtype=torch.bfloat16) * 0.05)(B, Sq, D)),
            "k_cache": _w((lambda *s: torch.randn(*s, dtype=torch.bfloat16) * 3.2)(B, H, Sk, Dh)),
            "v_cache": _w((lambda *s: torch.randn(*s, dtype=torch.bfloat16) * 1.6)(B, H, Sk, Dh)),
            "wq": _w((lambda *s: torch.randn(*s, dtype=torch.bfloat16) * 3.2)(D, H * Dh) * (D ** -0.5)),
            "wo": _w((lambda *s: torch.randn(*s, dtype=torch.bfloat16) * 1.6)(H * Dh, D) * ((H * Dh) ** -0.5)),
        }
    _A_in = _A_setup()

    def _B_setup():
        B, S, D, F = 1, 1, 640, 1536
        return {
            "x": _w((lambda *s: torch.randn(*s, dtype=torch.bfloat16) * 0.05)(B, S, D)),
            "w_gate": _w((lambda *s: torch.randn(*s, dtype=torch.bfloat16) * 1.6)(D, F)),
            "w_up": _w((lambda *s: torch.randn(*s, dtype=torch.bfloat16) * 0.1)(D, F)),
            "w_down": _w((lambda *s: torch.randn(*s, dtype=torch.bfloat16) * 0.1)(F, D)),
        }
    _B_in = _B_setup()

    return {
        "A_x": _A_in["x"],
        "A_k_cache": _A_in["k_cache"],
        "A_v_cache": _A_in["v_cache"],
        "A_wq": _A_in["wq"],
        "A_wo": _A_in["wo"],
        "B_x": _B_in["x"],
        "B_w_gate": _B_in["w_gate"],
        "B_w_up": _B_in["w_up"],
        "B_w_down": _B_in["w_down"],
    }

def reference(A_x, A_k_cache, A_v_cache, A_wq, A_wo, B_x, B_w_gate, B_w_up, B_w_down):
    def _A_ref(x, k_cache, v_cache, wq, wo):
        B, Sq, D = x.shape
        H, Dh = 32, 192
        q = (lambda x, *d: x.permute(*d))((x @ wq).reshape(B, Sq, H, Dh), 0, 2, 1, 3)
        scores = torch.einsum("bhqd,bhkd->bhqk", q, k_cache) * (Dh ** -0.5)
        p = _softmax(scores, axis=-1)
        o = torch.einsum("bhqk,bhkd->bhqd", p, v_cache)
        return (lambda x, *d: x.permute(*d))(o, 0, 2, 1, 3).reshape(B, Sq, H * Dh) @ wo

    def _B_ref(x, w_gate, w_up, w_down):
        g = torch.einsum("bsd,df->bsf", x, w_gate)
        u = torch.einsum("bsd,df->bsf", x, w_up)
        h = _sigmoid(g) * u
        return torch.einsum("bsf,fd->bsd", h, w_down)

    x = A_x
    xn = _layernorm(x, axis=-1)
    return x + _A_ref(xn, A_k_cache, A_v_cache, A_wq, A_wo) + _B_ref(xn, B_w_gate, B_w_up, B_w_down)
```

```python
NAME = "parallel_sum__mha_block_cached__glu_gated_glu__decode"
HDR = open("cdna_kernels/%s.s.ref" % NAME).read().split("; Override launch")[0]

class Asm:
    def __init__(self):
        self.l = []
        self.nlab = 0
    def __call__(self, s):
        for line in s.strip("\n").split("\n"):
            self.l.append("    " + line.strip() if not line.strip().endswith(":") else line.strip())
    def label(self, base="L"):
        self.nlab += 1
        return ".%s_%d" % (base, self.nlab)
    def text(self, grid, block, lds, vgpr, sgpr=102, accum=None):
        if accum is None:
            accum = (vgpr + 3) // 4 * 4
        return (HDR +
            "; Override launch geometry by editing the next line (default: block=256,\n"
            "; grid=ceil(out_elems/256), lds=0). Harness parses it; keep it on one line.\n"
            "; @launch grid=(%d,1,1) block=(%d,1,1) lds=%d\n" % (grid, block, lds) +
            '.amdgcn_target "amdgcn-amd-amdhsa--gfx950"\n.text\n.globl %s_kernel\n.p2align 8\n.type %s_kernel,@function\n%s_kernel:\n' % (NAME, NAME, NAME) +
            "\n".join(self.l) + "\n" +
            '.section .rodata,"a"\n.p2align 6\n.amdhsa_kernel %s_kernel\n' % NAME +
            "  .amdhsa_next_free_vgpr %d\n  .amdhsa_next_free_sgpr %d\n  .amdhsa_accum_offset %d\n" % (vgpr, sgpr, accum) +
            "  .amdhsa_group_segment_fixed_size 0\n  .amdhsa_kernarg_size 96\n  .amdhsa_user_sgpr_count 2\n"
            "  .amdhsa_user_sgpr_kernarg_segment_ptr 1\n  .amdhsa_system_sgpr_workgroup_id_x 1\n.end_amdhsa_kernel\n")

STAMP_OFF = 192 * 1024 * 1024
```

```python
import re
TRANS = ("v_exp_f32", "v_log_f32", "v_rcp_f32", "v_rsq_f32", "v_sqrt_f32", "v_sin_f32", "v_cos_f32")
def regs(op):
    op = op.strip()
    neg = op.lstrip("-|").rstrip("|")
    m = re.fullmatch(r"([vsa])\[(\d+):(\d+)\]", neg)
    if m: return {(m.group(1), i) for i in range(int(m.group(2)), int(m.group(3)) + 1)}
    m = re.fullmatch(r"([vsa])(\d+)", neg)
    if m: return {(m.group(1), int(m.group(2)))}
    if neg == "vcc": return {("s", 106), ("s", 107)}
    if neg == "vcc_lo": return {("s", 106)}
    if neg == "vcc_hi": return {("s", 107)}
    if neg == "exec": return {("s", 126), ("s", 127)}
    return set()
class I:
    def __init__(s, text):
        s.text = text
        t = text.split(";")[0].strip()
        s.label = t[:-1] if t.endswith(":") else None
        s.op = t.split()[0] if t and not s.label else ""
        rest = t[len(s.op):].strip() if s.op else ""
        parts = [p.strip() for p in rest.split(",")] if rest else []
        s.mods = ""
        if parts:
            m = re.search(r"\s(quad_perm|row_|offen|offset|op_sel|dst_sel|src0_sel|sc0|sc1|nt|off\b|glc|neg_|clamp|bank_mask|idxen|lds|cbsz|bound_ctrl)", " " + rest)
            if m:
                s.mods = (" " + rest)[m.start():]
                rest2 = (" " + rest)[:m.start()]
                parts = [p.strip() for p in rest2.split(",") if p.strip()]
        s.ops = parts
        op = s.op
        s.valu = op.startswith("v_") and not op.startswith("v_mfma")
        s.mfma = op.startswith("v_mfma")
        s.vmem = op.startswith("buffer_") or op.startswith("global_")
        s.ds = op.startswith("ds_")
        s.dpp = "_dpp" in op or "quad_perm" in s.mods or "row_" in s.mods
        s.perm = op.startswith("v_permlane")
        s.trans = op.replace("_e32", "").replace("_e64", "") in TRANS
        s.dot = op.startswith("v_dot")
        s.rl = op.startswith("v_readlane") or op.startswith("v_readfirstlane")
        s.branch = op.startswith("s_cbranch") or op == "s_branch"
        s.ws = 1
        if op == "s_nop": s.ws = int(parts[0], 0) + 1
        if s.label or not op: s.ws = 0
        s.w = set(); s.r = set(); s.srcC = set(); s.ab = set(); s.sdata = set()
        R = [regs(p) for p in parts]
        if s.mfma:
            s.w = R[0]; s.ab = R[1] | R[2]; s.srcC = R[3]; s.r = s.ab | s.srcC
        elif s.valu:
            if s.perm:
                s.w = R[0] | R[1]; s.r = R[0] | R[1]
            else:
                s.w = R[0]; s.r = set().union(*R[1:]) if len(R) > 1 else set()
                if op.startswith("v_cndmask") and len(parts) == 3: s.r |= regs("vcc")
                if op.startswith(("v_dot2c", "v_fmac", "v_mac", "v_writelane")) or (s.dpp and ("bank_mask" in s.mods and "bank_mask:0xf" not in s.mods or "row_mask" in s.mods and "row_mask:0xf" not in s.mods)): s.r |= R[0]
                if s.dot and len(parts) == 4: s.srcC = R[3]
                if op.startswith("v_dot2c"): s.srcC = R[0]
                if "_co_" in op: s.w |= R[1]
        elif s.vmem and not R: pass
        elif s.vmem:
            if "store" in op or "atomic" in op:
                s.r = set().union(*R); s.sdata = R[0] if ("x3" in op or "x4" in op) else set()
            else:
                s.w = R[0]; s.r = set().union(*R[1:])
        elif s.ds:
            if op.startswith(("ds_read", "ds_bpermute", "ds_permute", "ds_swizzle")) or "_rtn" in op:
                s.w = R[0]; s.r = set().union(*R[1:])
            else:
                s.r = set().union(*R)
        elif op.startswith("s_"):
            if R: s.w = R[0]; s.r = set().union(*R[1:]) if len(R) > 1 else set()
def need(p, c):
    n = 0
    vw = {x for x in p.w if x[0] in "va"}
    sw = {x for x in p.w if x[0] == "s"}
    if p.valu:
        if vw & c.r:
            if c.valu and (c.dpp or c.perm): n = max(n, 2)
            if c.mfma: n = max(n, 2)
            if p.trans and (c.valu and not c.trans or not c.valu): n = max(n, 1)
            if c.rl: n = max(n, 1)
            if ("op_sel" in p.mods or "dst_sel" in p.mods) and c.valu: n = max(n, 1)
        if p.dot and vw & (c.r | c.w):
            if c.op == p.op and not (vw & (c.r - c.srcC)) : pass
            elif c.op == p.op and vw & c.srcC and not any(vw & regs(o) for o in c.ops[1:3]): pass
            else: n = max(n, 3)
        if sw & c.r:
            if c.valu or c.mfma: n = max(n, 4 if c.op.startswith(("v_readlane", "v_writelane")) else 2)
            if c.vmem: n = max(n, 5)
    if p.mfma:
        if c.mfma:
            if vw & c.ab: n = max(n, 8)
            if vw & c.srcC and c.srcC != vw: n = max(n, 6)
            if vw & c.w and not (vw & c.srcC): n = max(n, 8)
        elif vw & (c.r | c.w): n = max(n, 8)
        if c.valu and p.srcC & c.w: n = max(n, 3)
    if p.sdata and p.sdata & c.w:
        n = max(n, 2 if c.valu else 1)
    return n
def fix(lines, W=9):
    ins = [I(l) for l in lines]
    changed = True
    total = 0
    while changed:
        changed = False
        labels = {x.label: i for i, x in enumerate(ins) if x.label}
        srcs = {}
        for i, x in enumerate(ins):
            if x.branch: srcs.setdefault(labels[x.ops[0]], []).append(i)
        def back(i, dist, seen):
            j = i - 1
            while j >= 0 and dist < W:
                x = ins[j]
                if x.label:
                    for sidx in srcs.get(j, []):
                        if (sidx, dist) not in seen:
                            seen.add((sidx, dist))
                            yield from back(sidx + 1, dist, seen)
                elif x.op in ("s_branch", "s_endpgm", "s_setpc_b64") and j != i - 1 or (x.op in ("s_endpgm",) ):
                    return
                elif x.op:
                    yield x, dist
                    dist += x.ws
                j -= 1
        for i, c in enumerate(ins):
            if not c.op or c.op == "s_nop": continue
            worst = 0
            for p, d in back(i, 0, set()):
                worst = max(worst, need(p, c) - d)
            if worst > 0:
                ins.insert(i, I("    s_nop %d" % (worst - 1)))
                total += 1
                changed = True
                break
    return [x.text for x in ins], total
```

```python
import sys
from asmlib import *
import hazard

WS_Q, WS_GU, WS_ST, WS_O, WS_B, WS_A = 0x10000, 0x80000, 0xC0000, 0x100000, 0x180000, 0x200000
L_Q, L_ST, L_PART, L_RED, L_BX = 0, 384, 512, 6656, 6912
LDS_BYTES = 7168
SPIN = 40000
LOG2E = "0x3fb8aa3b"
SCALE = "0x3d93cd3a"

def gen(T=4, P1=20, P2=24, stamps=False, NRED=80):
    a = Asm()
    NT = " nt"
    def stamp(k):
        if stamps: a("s_memrealtime s[%d:%d]" % (64 + 2 * k - 2, 64 + 2 * k - 1))
    def flush_stamps(ks):
        if not stamps: return
        a("s_waitcnt lgkmcnt(0)\ns_mov_b64 exec, 1\nv_mov_b32 v2, 0\ns_lshl_b32 s40, s2, 10\ns_lshl_b32 s41, s3, 6\ns_add_u32 s40, s40, s41\ns_add_u32 s40, s40, %d" % STAMP_OFF)
        for k in [0] + list(ks):
            r = 88 if k == 0 else 64 + 2 * k - 2
            a("v_mov_b32 v3, s%d\nbuffer_store_dword v3, v2, s[12:15], s40 offen offset:%d" % (r, 4 * k))
        a("v_mov_b32 v3, s58\nbuffer_store_dword v3, v2, s[12:15], s40 offen offset:60")
    def zero_stamps():
        if stamps:
            a("s_mov_b32 s58, 0")
            for k in range(1, 12): a("s_mov_b32 s%d, 0" % (64 + 2 * k - 2))
    def dpp(op, d, s0, s1, ctl, bank="0xf"):
        a("%s_dpp v%d, v%d, v%d %s row_mask:0xf bank_mask:%s" % (op, d, s0, s1, ctl, bank))
    def red8(op, regs_):
        for ctl in ("quad_perm:[1,0,3,2]", "quad_perm:[2,3,0,1]", "row_half_mirror"):
            for r in regs_: dpp(op, r, r, r, ctl)
    def redrows(op, pairs):
        for sw in ("v_permlane16_swap_b32", "v_permlane32_swap_b32"):
            for r, t in pairs: a("v_mov_b32 v%d, v%d" % (t, r))
            for r, t in pairs: a("%s v%d, v%d" % (sw, r, t))
            for r, t in pairs: a("%s v%d, v%d, v%d" % (op, r, r, t))
    def redhi(op, pairs):
        for r, t in pairs: dpp(op, r, r, r, "row_ror:8")
        redrows(op, pairs)
    def redall(op, pairs):
        red8(op, [r for r, t in pairs]); redhi(op, pairs)
    def rbf(d, s):
        a("v_cvt_pk_bf16_f32 v%d, v%d, v%d\nv_lshlrev_b32 v%d, 16, v%d" % (d, s, s, d, d))
    def operand(dst, c, H, tmp):
        a("v_cvt_pk_bf16_f32 v%d, v%d, v%d\nv_and_b32 v%d, v%d, v%d" % (tmp, c, c, tmp, tmp, H))
        for j in range(4): a("v_cndmask_b32 v%d, 0, v%d, s[%d:%d]" % (dst + j, tmp, 32 + 2 * j, 33 + 2 * j))
    def mfma(d, A, B, first):
        a("v_mfma_f32_16x16x32_bf16 v[%d:%d], v[%d:%d], v[%d:%d], %s" % (d, d + 3, A, A + 3, B, B + 3, "0" if first else "v[%d:%d]" % (d, d + 3)))
    def fold1(D, out):
        a("v_permlane32_swap_b32 v%d, v%d\nv_permlane32_swap_b32 v%d, v%d" % (D, D + 1, D + 2, D + 3))
        dpp("v_add_f32", out, D + 1, D, "row_ror:8", "0x3")
        dpp("v_add_f32", out, D + 2, D + 3, "row_ror:8", "0xc")
    def poll(loads, tags, errslot):
        L, D = a.label("poll"), a.label("polld")
        a("s_mov_b32 s27, %d" % SPIN)
        a(L + ":")
        for l in loads: a(l)
        a("s_waitcnt vmcnt(0)")
        a("v_cmp_ne_u32 s[40:41], s26, v%d" % tags[0])
        for t in tags[1:]:
            a("v_cmp_ne_u32 s[42:43], s26, v%d\ns_or_b64 s[40:41], s[40:41], s[42:43]" % t)
        a("s_cmp_eq_u64 s[40:41], 0\ns_cbranch_scc1 %s\ns_sub_u32 s27, s27, 1\ns_cbranch_scc0 %s" % (D, L))
        if stamps: a("s_or_b32 s58, s58, %d" % (1 << errslot))
        a(D + ":")
    def srd(base, ptr, size):
        a("s_mov_b32 s%d, s%d\ns_mov_b32 s%d, s%d\ns_mov_b32 s%d, %d\ns_mov_b32 s%d, 0x00020000" % (base, ptr, base + 1, ptr + 1, base + 2, size, base + 3))
    def nonce():
        a("s_waitcnt lgkmcnt(0)\ns_mul_i32 s26, s26, 0x19660d\ns_add_u32 s26, s26, 0x3c6ef35f")
    a("s_cmp_ge_u32 s2, 256\ns_cbranch_scc1 .Lend")
    a("s_load_dwordx16 s[64:79], s[0:1], 0\ns_load_dwordx8 s[80:87], s[0:1], 64")
    if stamps: a("s_memrealtime s[88:89]")
    a("""
    v_lshrrev_b32 v1, 6, v0
    v_and_b32 v0, 63, v0
    v_readfirstlane_b32 s3, v1
    s_and_b32 s24, s2, 7
    s_lshl_b32 s24, s24, 2
    s_bfe_u32 s25, s2, 0x20003
    s_or_b32 s24, s24, s25
    s_lshr_b32 s25, s2, 5
    v_lshrrev_b32 v4, 3, v0
    v_and_b32 v5, 7, v0
    s_mov_b32 s32, 0x03030303
    s_mov_b32 s33, 0x03030303
    s_mov_b32 s34, 0x0c0c0c0c
    s_mov_b32 s35, 0x0c0c0c0c
    s_mov_b32 s36, 0x30303030
    s_mov_b32 s37, 0x30303030
    s_mov_b32 s38, 0xc0c0c0c0
    s_mov_b32 s39, 0xc0c0c0c0
    s_cmp_lt_u32 s3, 5
    s_cbranch_scc1 .Laux
    """)
    KV = 32
    Q = 8
    SC = 20
    VOFF, H = 1, 2
    OP = 28
    T0, T1, T2, T3 = 3, 4, 5, 6
    TM = 7
    a("""
    v_mul_u32_u24 v1, 384, v4
    v_lshl_add_u32 v1, v5, 4, v1
    s_sub_u32 s48, s3, 5
    s_mul_i32 s28, s24, 1572864
    s_mul_i32 s29, s25, 196608
    s_add_u32 s28, s28, s29
    s_mul_i32 s29, s48, 24576
    s_add_u32 s28, s28, s29
    s_add_u32 s29, s28, 6144
    s_add_u32 s30, s28, 12288
    s_add_u32 s31, s28, 18432
    s_waitcnt lgkmcnt(0)
    """)
    srd(4, 66, 50331648)
    st = dict(n=0, landed=0)
    def need(idx):
        if idx >= st["landed"]:
            a("s_waitcnt vmcnt(%d)" % (st["n"] - 1 - idx)); st["landed"] = idx + 1
    def kvload(throttle=True):
        n = st["n"]; i = n % 24; t, ln = i // 3, i % 3
        if throttle and n >= T: need(n - T)
        r = KV + 4 * i
        a("buffer_load_dwordx4 v[%d:%d], v%d, s[%d:%d], s%d offen offset:%d%s" % (r, r + 3, VOFF, 4 if n < 24 else 8, 7 if n < 24 else 11, 28 + t // 2, 3072 * (t & 1) + 128 * ln, NT))
        st["n"] += 1
    for _ in range(T): kvload()
    a("s_load_dword s26, s[86:87], 0")
    srd(8, 68, 50331648); srd(12, 86, 268435456); srd(16, 64, 1280); srd(20, 82, 1280)
    zero_stamps()
    a("v_and_b32 v2, 1, v0\nv_lshlrev_b32 v2, 4, v2\nv_mov_b32 v3, 0xffff\nv_lshlrev_b32 v2, v2, v3\nv_lshlrev_b32 v6, 4, v5")
    while st["n"] < P1: kvload()
    nonce()
    stamp(1)
    a("s_barrier")
    stamp(2)
    for ln in range(3): a("ds_read_b128 v[%d:%d], v6 offset:%d" % (Q + 4 * ln, Q + 4 * ln + 3, L_Q + 128 * ln))
    a("s_waitcnt lgkmcnt(0)")
    def qk(t):
        acc = [T0, T1, T2]
        for j in range(4):
            for ln in range(3):
                a("v_dot2_f32_bf16 v%d, v%d, v%d, %s" % (acc[ln], KV + 12 * t + 4 * ln + j, Q + 4 * ln + j, "0" if j == 0 else "v%d" % acc[ln]))
        a("v_add_f32 v%d, v%d, v%d\nv_add_f32 v%d, v%d, v%d" % (T0, T0, T1, T0, T0, T2))
        red8("v_add_f32", [T0])
        rbf(T0, T0)
        a("v_mul_f32 v%d, %s, v%d" % (T0, SCALE, T0))
        rbf(SC + t, T0)
    tq = 0
    while tq < 8:
        did = 0
        while tq < 8 and did < 2 and 3 * tq + 2 < st["landed"]:
            qk(tq); tq += 1; did += 1
        if tq < 8:
            if st["n"] >= 24 and (st["n"] - 24) // 3 >= tq:
                need(3 * tq + 2)
            else:
                kvload()
    a("v_max3_f32 v%d, v%d, v%d, v%d" % (TM, SC, SC + 1, SC + 2))
    a("v_max3_f32 v%d, v%d, v%d, v%d" % (T0, SC + 3, SC + 4, SC + 5))
    a("v_max3_f32 v%d, v%d, v%d, v%d" % (TM, TM, SC + 6, SC + 7))
    a("v_max_f32 v%d, v%d, v%d" % (TM, TM, T0))
    redhi("v_max_f32", [(TM, T0)])
    a("v_mul_f32 v%d, %s, v%d" % (T1, LOG2E, TM))
    a("s_mov_b32 s49, %s" % LOG2E)
    for t in range(8): a("v_fma_f32 v%d, v%d, s49, -v%d" % (SC + t, SC + t, T1))
    for t in range(8): a("v_exp_f32 v%d, v%d" % (SC + t, SC + t))
    a("v_add_f32 v%d, v%d, v%d\nv_add_f32 v%d, v%d, v%d" % (T2, SC, SC + 1, T3, SC + 2, SC + 3))
    a("v_add_f32 v%d, v%d, v%d\nv_add_f32 v%d, v%d, v%d" % (T2, T2, SC + 4, T3, T3, SC + 5))
    a("v_add_f32 v%d, v%d, v%d\nv_add_f32 v%d, v%d, v%d" % (T2, T2, SC + 6, T3, T3, SC + 7))
    a("v_add_f32 v%d, v%d, v%d" % (OP + 2, T2, T3))
    redhi("v_add_f32", [(OP + 2, T0)])
    a("v_mov_b32 v%d, v%d\nv_mov_b32 v%d, s26\nv_mov_b32 v%d, s26\nv_mov_b32 v%d, 0" % (OP, TM, OP + 1, OP + 3, T0))
    a("s_lshl_b32 s50, s24, 10\ns_lshl_b32 s51, s25, 7\ns_add_u32 s50, s50, s51\ns_lshl_b32 s51, s48, 4\ns_add_u32 s50, s50, s51\ns_add_u32 s50, s50, %d" % WS_ST)
    a("s_mov_b64 exec, 1\nbuffer_store_dwordx4 v[%d:%d], v%d, s[12:15], s50 offen sc1\ns_mov_b64 exec, -1" % (OP, OP + 3, T0))
    stamp(3)
    while st["n"] < 24 + P2: kvload()
    stamp(4)
    a("s_barrier")
    stamp(5)
    while st["n"] < 48: kvload(throttle=False)
    a("v_mov_b32 v%d, %d\nds_read_b64 v[%d:%d], v%d\ns_waitcnt lgkmcnt(0)" % (T0, L_ST, T1, T2, T0))
    a("v_sub_f32 v%d, v%d, v%d\nv_mul_f32 v%d, %s, v%d\nv_exp_f32 v%d, v%d\nv_mul_f32 v%d, v%d, v%d" % (T0, TM, T1, T0, LOG2E, T0, T0, T0, TM, T0, T2))
    for t in range(8):
        a("v_mul_f32 v%d, v%d, v%d" % (T0, SC + t, TM))
        operand(OP, T0, H, T1)
        for ln in range(3):
            need(24 + 3 * t + ln)
            mfma(Q + 4 * ln, OP, KV + 12 * t + 4 * ln, t == 0)
    stamp(6)
    a("""
    v_and_b32 v3, 7, v0
    v_lshlrev_b32 v3, 5, v3
    v_bfe_u32 v4, v0, 4, 1
    v_lshl_add_u32 v3, v4, 4, v3
    v_bfe_u32 v4, v0, 3, 1
    v_lshl_add_u32 v3, v4, 3, v3
    v_bfe_u32 v4, v0, 5, 1
    v_lshl_add_u32 v3, v4, 2, v3
    s_mul_i32 s49, s48, 768
    v_add_u32 v3, s49, v3
    """)
    for ln in range(3): fold1(Q + 4 * ln, SC + ln)
    for ln in range(3): a("ds_write_b32 v3, v%d offset:%d" % (SC + ln, L_PART + 256 * ln))
    a("s_waitcnt lgkmcnt(0)")
    a("s_barrier")
    stamp(7)
    a("s_cmp_ge_u32 s2, %d\ns_cbranch_scc1 .Lbulk_end" % NRED)
    a("v_and_b32 v31, 3, v0\nv_lshlrev_b32 v31, 2, v31\ns_lshl_b32 s49, s2, 4\nbuffer_load_dword v30, v31, s[16:19], s49 offen")
    a("v_lshlrev_b32 v1, 4, v0\ns_lshl_b32 s50, s2, 14\ns_lshl_b32 s51, s48, 11\ns_add_u32 s50, s50, s51\ns_add_u32 s50, s50, %d" % WS_A)
    a("s_barrier")
    stamp(8)
    poll(["buffer_load_dwordx4 v[32:35], v1, s[12:15], s50 offen sc1", "buffer_load_dwordx4 v[36:39], v1, s[12:15], s50 offen offset:1024 sc1"], [33, 35, 37, 39], 4)
    stamp(9)
    a("v_add_f32 v8, v32, v36\nv_add_f32 v9, v34, v38")
    for r in (8, 9): dpp("v_add_f32", r, r, r, "row_ror:4")
    redhi("v_add_f32", [(8, 10), (9, 11)])
    a("v_lshlrev_b32 v3, 3, v0\ns_lshl_b32 s51, s48, 5\nv_add_u32 v3, s51, v3")
    a("s_mov_b64 exec, 15\nds_write_b64 v3, v[8:9] offset:%d\ns_mov_b64 exec, -1\ns_waitcnt lgkmcnt(0)" % L_RED)
    a("s_barrier")
    a("s_cmp_lg_u32 s48, 0\ns_cbranch_scc1 .Lbulk_end")
    a("v_and_b32 v3, 31, v0\nv_lshlrev_b32 v3, 3, v3\nds_read_b64 v[8:9], v3 offset:%d\nv_lshlrev_b32 v4, 1, v31\nds_read_b64 v[12:13], v4 offset:%d" % (L_RED, L_BX))
    a("v_lshlrev_b32 v14, 16, v30\nv_and_b32 v15, 0xffff0000, v30\ns_waitcnt lgkmcnt(0)")
    for ctl in ("row_ror:4", "row_ror:8"):
        for r in (8, 9): dpp("v_add_f32", r, r, r, ctl)
    a("v_mov_b32 v10, v8\nv_mov_b32 v11, v9\nv_permlane16_swap_b32 v8, v10\nv_permlane16_swap_b32 v9, v11\nv_add_f32 v8, v8, v10\nv_add_f32 v9, v9, v11")
    a("v_cvt_pk_bf16_f32 v8, v8, v9\nv_and_b32 v9, 0xffff0000, v8\nv_lshlrev_b32 v8, 16, v8\nv_add_f32 v8, v8, v14\nv_add_f32 v9, v9, v15")
    a("v_cvt_pk_bf16_f32 v8, v8, v9\nv_and_b32 v9, 0xffff0000, v8\nv_lshlrev_b32 v8, 16, v8\nv_add_f32 v8, v8, v12\nv_add_f32 v9, v9, v13")
    a("v_cvt_pk_bf16_f32 v8, v8, v9")
    a("s_mov_b64 exec, 15\nbuffer_store_dword v8, v31, s[20:23], s49 offen")
    a("s_cmp_lg_u32 s2, 0\ns_cbranch_scc1 .Lbulk_end")
    a("s_mov_b64 exec, 1\nv_mov_b32 v9, s26\nv_mov_b32 v1, 0\nbuffer_store_dword v9, v1, s[12:15], 0 offen sc1")
    a(".Lbulk_end:")
    stamp(10)
    flush_stamps(range(1, 11))
    a("s_endpgm")

    a(".Laux:\ns_setprio 3")
    W1 = 32
    W2 = 72
    XF = 8
    XC = 16
    G = 96
    AOP = 24
    ACC = 112
    H = 2
    a("""
    s_cmp_lt_u32 s3, 3
    s_cbranch_scc1 .Laux_q
    s_lshr_b32 s52, s24, 3
    s_lshl_b32 s52, s52, 1
    s_sub_u32 s53, s3, 3
    s_add_u32 s52, s52, s53
    s_mul_i32 s48, s52, 80
    s_and_b32 s53, s24, 3
    s_mul_i32 s53, s53, 6
    s_add_u32 s53, s53, s25
    s_lshl_b32 s49, s53, 7
    s_movk_i32 s50, 3072
    s_mul_i32 s51, s52, 24576
    s_lshl_b32 s53, s53, 9
    s_add_u32 s51, s51, s53
    s_bfe_u32 s53, s24, 0x10002
    s_mul_i32 s54, s53, 12288
    s_add_u32 s51, s51, s54
    s_add_u32 s51, s51, %d
    s_waitcnt lgkmcnt(0)
    s_cmp_eq_u32 s53, 0
    s_cselect_b32 s4, s76, s78
    s_cselect_b32 s5, s77, s79
    s_mov_b32 s6, 1966080
    s_branch .Laux_p
    .Laux_q:
    s_mul_i32 s48, s25, 80
    s_mul_i32 s49, s24, 384
    s_lshl_b32 s53, s3, 7
    s_add_u32 s49, s49, s53
    s_movk_i32 s50, 12288
    s_mul_i32 s51, s24, 12288
    s_mul_i32 s52, s25, 1536
    s_add_u32 s51, s51, s52
    s_lshl_b32 s53, s3, 9
    s_add_u32 s51, s51, s53
    s_add_u32 s51, s51, %d
    s_waitcnt lgkmcnt(0)
    s_mov_b32 s4, s70
    s_mov_b32 s5, s71
    s_mov_b32 s6, 7864320
    .Laux_p:
    s_mov_b32 s7, 0x00020000
    s_load_dword s26, s[86:87], 0
    """ % (WS_GU, WS_Q))
    srd(16, 64, 1280); srd(8, 72, 7864320); srd(12, 86, 268435456); srd(20, 80, 1966080)
    zero_stamps()
    a("v_mul_u32_u24 v7, 1280, v4\nv_lshl_add_u32 v7, v5, 4, v7")
    a("v_and_b32 v2, 1, v0\nv_lshlrev_b32 v2, 4, v2\nv_mov_b32 v3, 0xffff\nv_lshlrev_b32 v2, v2, v3")
    a("s_cmp_lt_u32 s3, 3\ns_cbranch_scc1 .Laux_s1\ns_cmp_ge_u32 s25, 6\ns_cbranch_scc1 .Laux_wd_loads_only")
    a(".Laux_s1:")
    a("v_lshlrev_b32 v1, 2, v0")
    for j in range(5): a("buffer_load_dword v%d, v1, s[16:19], 0 offen offset:%d" % (XF + j, 256 * j))
    a("v_mul_u32_u24 v3, 20, v4\ns_lshl_b32 s52, s48, 1")
    a("buffer_load_dwordx4 v[%d:%d], v3, s[16:19], s52 offen\nbuffer_load_dword v%d, v3, s[16:19], s52 offen offset:16" % (XC, XC + 3, XC + 4))
    a("s_mul_i32 s52, s50, 10\nv_mul_lo_u32 v6, v4, s52\nv_lshl_add_u32 v6, v5, 4, v6\ns_mul_i32 s52, s48, s50\ns_add_u32 s52, s52, s49")
    for t in range(10):
        a("buffer_load_dwordx4 v[%d:%d], v6, s[4:7], s52 offen%s" % (W1 + 4 * t, W1 + 4 * t + 3, NT))
        if t < 9: a("s_add_u32 s52, s52, s50")
    def stage2_loads(srdb, rowbase_sgpr):
        a("s_mul_i32 s52, s%d, 1280\ns_lshl_b32 s53, s3, 8\ns_add_u32 s52, s52, s53" % rowbase_sgpr)
        for t in range(3):
            for ln in range(2):
                r = W2 + 8 * t + 4 * ln
                a("buffer_load_dwordx4 v[%d:%d], v7, s[%d:%d], s52 offen offset:%d%s" % (r, r + 3, srdb, srdb + 3, 128 * ln, NT))
            if t < 2: a("s_add_u32 s52, s52, 10240")
    a("s_lshl_b32 s55, s24, 1\ns_add_u32 s55, s55, s25\ns_sub_u32 s55, s55, 6\ns_mul_i32 s56, s55, 24")
    a("s_cmp_lt_u32 s25, 6\ns_cbranch_scc1 .Laux_ln")
    stage2_loads(20, 56)
    a("s_waitcnt vmcnt(16)\ns_branch .Laux_ln2")
    a(".Laux_ln:\ns_waitcnt vmcnt(10)\n.Laux_ln2:")
    stamp(1)
    U = 96
    for j in range(5): a("v_lshlrev_b32 v%d, 16, v%d\nv_and_b32 v%d, 0xffff0000, v%d" % (U + 2 * j, XF + j, U + 2 * j + 1, XF + j))
    a("v_add_f32 v13, v%d, v%d" % (U, U + 1))
    for j in range(2, 10): a("v_add_f32 v13, v13, v%d" % (U + j))
    redall("v_add_f32", [(13, 14)])
    a("v_mul_f32 v13, 0x3acccccd, v13")
    for j in range(10): a("v_sub_f32 v%d, v%d, v13" % (U + j, U + j))
    a("v_mul_f32 v14, v%d, v%d" % (U, U))
    for j in range(1, 10): a("v_fma_f32 v14, v%d, v%d, v14" % (U + j, U + j))
    redall("v_add_f32", [(14, 15)])
    a("v_mul_f32 v14, 0x3acccccd, v14")
    rbf(14, 14); a("v_add_f32 v14, 0x3727c5ac, v14"); rbf(14, 14)
    a("v_sqrt_f32 v14, v14"); rbf(14, 14); a("v_rcp_f32 v14, v14")
    rbf(13, 13)
    for j in range(5): a("v_lshlrev_b32 v%d, 16, v%d\nv_and_b32 v%d, 0xffff0000, v%d" % (U + 2 * j, XC + j, U + 2 * j + 1, XC + j))
    for j in range(10):
        a("v_sub_f32 v%d, v%d, v13" % (U + j, U + j)); rbf(U + j, U + j); a("v_mul_f32 v%d, v%d, v14" % (U + j, U + j))
    stamp(2)
    for t in range(10):
        op = AOP + 4 * (t & 1)
        operand(op, U + t, H, 3)
        a("s_waitcnt vmcnt(%d)" % (9 - t))
        mfma(ACC, op, W1 + 4 * t, t == 0)
    a("""
    v_lshlrev_b32 v1, 6, v5
    v_bfe_u32 v3, v0, 4, 1
    v_lshl_add_u32 v1, v3, 5, v1
    v_bfe_u32 v3, v0, 3, 1
    v_lshl_add_u32 v1, v3, 4, v1
    v_bfe_u32 v3, v0, 5, 1
    v_lshl_add_u32 v1, v3, 3, v1
    """)
    nonce()
    a("v_mov_b32 v15, s26")
    fold1(ACC, 14)
    a("buffer_store_dwordx2 v[14:15], v1, s[12:15], s51 offen sc1")
    stamp(3)
    a("s_cmp_ge_u32 s3, 3\ns_cbranch_scc1 .Laux_s1done")
    a("v_lshlrev_b32 v1, 3, v0\ns_mul_i32 s52, s24, 12288\ns_lshl_b32 s53, s3, 9\ns_add_u32 s52, s52, s53\ns_add_u32 s52, s52, %d\ns_add_u32 s53, s52, 3072\ns_add_u32 s54, s52, 6144\ns_add_u32 s57, s52, 9216" % WS_Q)
    so = [52, 53, 54, 57]
    poll(["buffer_load_dwordx2 v[%d:%d], v1, s[12:15], s%d offen offset:%d sc1" % (G + 2 * p, G + 2 * p + 1, so[p // 2], 1536 * (p & 1)) for p in range(8)], [G + 2 * p + 1 for p in range(8)], 0)
    for p in range(1, 8): a("v_add_f32 v%d, v%d, v%d" % (G, G, G + 2 * p))
    a("v_cvt_pk_bf16_f32 v%d, v%d, v%d\nv_lshlrev_b32 v1, 1, v0\ns_lshl_b32 s53, s3, 7\nv_add_u32 v1, s53, v1\nds_write_b16 v1, v%d offset:%d" % (G, G, G, G, L_Q))
    stamp(4)
    a("s_cmp_lt_u32 s25, 6\ns_cbranch_scc1 .Laux_s1done\ns_branch .Laux_wd")
    a(".Laux_wd_loads_only:")
    a("s_lshl_b32 s55, s24, 1\ns_add_u32 s55, s55, s25\ns_sub_u32 s55, s55, 6\ns_mul_i32 s56, s55, 24")
    stage2_loads(20, 56)
    nonce()
    a(".Laux_wd:")
    a("v_mul_u32_u24 v1, 24576, v5\nv_lshl_add_u32 v1, v4, 3, v1\ns_lshl_b32 s52, s56, 3\ns_add_u32 s52, s52, %d\ns_add_u32 s53, s52, 12288" % WS_GU)
    poll(["buffer_load_dwordx2 v[%d:%d], v1, s[12:15], s%d offen offset:%d sc1" % (G + 2 * i, G + 2 * i + 1, 52 + i // 3, 64 * (i % 3)) for i in range(6)], [G + 2 * i + 1 for i in range(6)], 1)
    red8("v_add_f32", [G + 2 * i for i in range(6)])
    for i in range(6): rbf(G + 2 * i, G + 2 * i)
    for t in range(3):
        g, u = G + 2 * t, G + 6 + 2 * t
        a("v_mul_f32 v%d, 0xbfb8aa3b, v%d\nv_exp_f32 v%d, v%d\nv_add_f32 v%d, 1.0, v%d\nv_rcp_f32 v%d, v%d" % (g, g, g, g, g, g, g, g))
        rbf(g, g)
        a("v_mul_f32 v%d, v%d, v%d" % (g, g, u))
    def stage2(rs_log2, region, prod_sgpr):
        for t in range(3):
            op = AOP + 4 * (t & 1)
            operand(op, G + 2 * t, H, 3)
            mfma(ACC, op, W2 + 8 * t, t == 0)
            mfma(ACC + 4, op, W2 + 8 * t + 4, t == 0)
        a("v_bfe_u32 v3, v0, 5, 1\nv_lshl_add_u32 v1, v3, 3, v5\nv_lshlrev_b32 v1, %d, v1\nv_bfe_u32 v3, v0, 4, 1\nv_lshl_add_u32 v1, v3, 5, v1\nv_bfe_u32 v3, v0, 3, 1\nv_lshl_add_u32 v1, v3, 4, v1" % rs_log2)
        a("s_lshl_b32 s52, s3, %d\ns_lshl_b32 s53, s%d, 6\ns_add_u32 s52, s52, s53\ns_add_u32 s52, s52, %d" % (rs_log2 + 4, prod_sgpr, region))
        a("v_mov_b32 v13, s26\nv_mov_b32 v15, s26")
        for r in range(4): a("v_permlane32_swap_b32 v%d, v%d" % (ACC + r, ACC + 4 + r))
        X, Y = ACC, ACC + 4
        dpp("v_add_f32", 12, Y + 0, X + 0, "row_ror:8", "0x3")
        dpp("v_add_f32", 14, Y + 1, X + 1, "row_ror:8", "0x3")
        dpp("v_add_f32", 12, X + 2, Y + 2, "row_ror:8", "0xc")
        dpp("v_add_f32", 14, X + 3, Y + 3, "row_ror:8", "0xc")
        a("buffer_store_dwordx4 v[12:15], v1, s[12:15], s52 offen sc1")
    stage2(12, WS_B, 55)
    stamp(5)
    a(".Laux_s1done:")
    a("s_waitcnt lgkmcnt(0)")
    a("s_barrier")
    stamp(6)
    a("s_cmp_eq_u32 s3, 0\ns_cbranch_scc1 .Laux_stats\ns_cmp_lg_u32 s3, 3\ns_cbranch_scc1 .Laux_s2\ns_cmp_ge_u32 s2, %d\ns_cbranch_scc1 .Laux_s2" % NRED)
    a("v_lshlrev_b32 v1, 4, v0\ns_lshl_b32 s52, s2, 12\ns_add_u32 s52, s52, %d" % WS_B)
    poll(["buffer_load_dwordx4 v[%d:%d], v1, s[12:15], s52 offen offset:%d sc1" % (G + 4 * j, G + 4 * j + 3, 1024 * j) for j in range(4)], [G + 2 * i + 1 for i in range(8)], 2)
    a("v_add_f32 v12, v%d, v%d\nv_add_f32 v13, v%d, v%d" % (G, G + 4, G + 2, G + 6))
    a("v_add_f32 v14, v%d, v%d\nv_add_f32 v15, v%d, v%d" % (G + 8, G + 12, G + 10, G + 14))
    a("v_add_f32 v12, v12, v14\nv_add_f32 v13, v13, v15")
    for r in (12, 13): dpp("v_add_f32", r, r, r, "row_ror:4")
    redhi("v_add_f32", [(12, 14), (13, 15)])
    rbf(12, 12); rbf(13, 13)
    a("v_lshlrev_b32 v1, 3, v0\ns_mov_b64 exec, 15\nds_write_b64 v1, v[12:13] offset:%d\ns_mov_b64 exec, -1\ns_branch .Laux_s2" % L_BX)
    a(".Laux_stats:")
    a("v_lshlrev_b32 v1, 4, v0\ns_lshl_b32 s52, s24, 10\ns_add_u32 s52, s52, %d" % WS_ST)
    poll(["buffer_load_dwordx4 v[%d:%d], v1, s[12:15], s52 offen sc1" % (G, G + 3)], [G + 1, G + 3], 3)
    a("v_mov_b32 v12, v%d" % G)
    redall("v_max_f32", [(12, 14)])
    a("v_sub_f32 v13, v%d, v12\nv_mul_f32 v13, %s, v13\nv_exp_f32 v13, v13\nv_mul_f32 v13, v13, v%d" % (G, LOG2E, G + 2))
    redall("v_add_f32", [(13, 14)])
    a("v_rcp_f32 v13, v13\nv_mov_b32 v1, %d\ns_mov_b64 exec, 1\nds_write_b64 v1, v[12:13]\ns_mov_b64 exec, -1" % L_ST)
    a(".Laux_s2:")
    stamp(7)
    a("s_mul_i32 s56, s24, 192\ns_mul_i32 s52, s25, 24\ns_add_u32 s56, s56, s52")
    a("s_waitcnt lgkmcnt(0)")
    a("s_barrier")
    stage2_loads(8, 56)
    a("v_lshlrev_b32 v6, 2, v0\ns_lshl_b32 s53, s3, 8\nv_add_u32 v6, s53, v6")
    a("v_lshlrev_b32 v16, 3, v0\ns_mul_i32 s54, s24, 12288\ns_add_u32 s54, s54, %d\ns_mul_i32 s52, s25, 1536\ns_add_u32 s57, s54, s52\ns_lshl_b32 s53, s3, 9\ns_add_u32 s57, s57, s53" % WS_O)
    a("v_mul_u32_u24 v17, 1536, v5\nv_lshl_add_u32 v17, v4, 3, v17\ns_mul_i32 s52, s25, 192\ns_add_u32 s54, s54, s52")
    a("v_mov_b32 v15, s26")
    stamp(8)
    a("s_barrier")
    a("s_cmp_ge_u32 s3, 3\ns_cbranch_scc1 .Laux_og")
    for k in range(4): a("ds_read2st64_b32 v[%d:%d], v6 offset0:%d offset1:%d" % (G + 2 * k, G + 2 * k + 1, L_PART // 256 + 6 * k, L_PART // 256 + 6 * k + 3))
    a("s_waitcnt lgkmcnt(0)")
    for k in range(4): a("v_add_f32 v%d, v%d, v%d" % (G + 2 * k, G + 2 * k, G + 2 * k + 1))
    a("v_add_f32 v%d, v%d, v%d\nv_add_f32 v%d, v%d, v%d\nv_add_f32 v14, v%d, v%d" % (G, G, G + 2, G + 4, G + 4, G + 6, G, G + 4))
    a("buffer_store_dwordx2 v[14:15], v16, s[12:15], s57 offen sc1")
    a(".Laux_og:")
    stamp(9)
    poll(["buffer_load_dwordx2 v[%d:%d], v17, s[12:15], s54 offen offset:%d sc1" % (G + 2 * t, G + 2 * t + 1, 64 * t) for t in range(3)], [G + 1, G + 3, G + 5], 5)
    stamp(10)
    red8("v_add_f32", [G, G + 2, G + 4])
    stage2(14, WS_A, 2)
    stamp(11)
    a("s_cmp_ge_u32 s2, %d\ns_cbranch_scc1 .Laux_end\ns_barrier" % NRED)
    a(".Laux_end:")
    flush_stamps(range(1, 12))
    a(".Lend:\ns_endpgm")
    a.l, n = hazard.fix(a.l)
    return a.text(256, 832, LDS_BYTES, 128)

if __name__ == "__main__":
    out = sys.argv[1]
    kw = dict(x.split("=") for x in sys.argv[2:])
    kw = {k: int(v) for k, v in kw.items()}
    open(out, "w").write(gen(**kw))
```

```python
import sys
from asmlib import *
import hazard

WS_Q, WS_GU, WS_ST, WS_O, WS_B, WS_A = 0x10000, 0x80000, 0xC0000, 0x100000, 0x180000, 0x200000
L_Q, L_ST, L_FLAG, L_PART, L_RED, L_REDB = 0, 384, 448, 512, 6656, 6912
F_PROG, F_QRDY, F_STRDY, F_WOGO = L_FLAG, L_FLAG + 4, L_FLAG + 8, L_FLAG + 12
LDS_BYTES = 7168
SPIN = 40000
LOG2E = "0x3fb8aa3b"
SCALE = "0x3d93cd3a"

def gen(T=4, P1=20, P2=22, PW=22, CW=8, G1=12, G3=26, G2=36, stamps=0, NRED=80, SLP=2):
    a = Asm()
    NT = " nt"
    def stamp(k):
        if stamps: a("s_memrealtime s[%d:%d]" % (64 + 2 * k - 2, 64 + 2 * k - 1))
    def flush_stamps(ks):
        if not stamps: return
        a("s_waitcnt lgkmcnt(0)\ns_mov_b64 exec, 1\nv_mov_b32 v2, 0\ns_lshl_b32 s40, s2, 10\ns_lshl_b32 s41, s3, 6\ns_add_u32 s40, s40, s41\ns_add_u32 s40, s40, %d" % STAMP_OFF)
        for k in [0] + list(ks):
            r = 88 if k == 0 else 64 + 2 * k - 2
            a("v_mov_b32 v3, s%d\nbuffer_store_dword v3, v2, s[12:15], s40 offen offset:%d" % (r, 4 * k))
        a("v_mov_b32 v3, s58\nbuffer_store_dword v3, v2, s[12:15], s40 offen offset:60")
        a("v_mov_b32 v3, s59\nbuffer_store_dword v3, v2, s[12:15], s40 offen offset:56")
    def zero_stamps():
        if stamps:
            a("s_mov_b32 s58, 0\ns_mov_b32 s59, 0")
            for k in range(1, 12): a("s_mov_b32 s%d, 0" % (64 + 2 * k - 2))
    def dpp(op, d, s0, s1, ctl, bank="0xf"):
        a("%s_dpp v%d, v%d, v%d %s row_mask:0xf bank_mask:%s" % (op, d, s0, s1, ctl, bank))
    def red8(op, regs_):
        for ctl in ("quad_perm:[1,0,3,2]", "quad_perm:[2,3,0,1]", "row_half_mirror"):
            for r in regs_: dpp(op, r, r, r, ctl)
    def redrows(op, pairs):
        for sw in ("v_permlane16_swap_b32", "v_permlane32_swap_b32"):
            for r, t in pairs: a("v_mov_b32 v%d, v%d" % (t, r))
            for r, t in pairs: a("%s v%d, v%d" % (sw, r, t))
            for r, t in pairs: a("%s v%d, v%d, v%d" % (op, r, r, t))
    def redhi(op, pairs):
        for r, t in pairs: dpp(op, r, r, r, "row_ror:8")
        redrows(op, pairs)
    def redall(op, pairs):
        red8(op, [r for r, t in pairs]); redhi(op, pairs)
    def rbf(d, s):
        a("v_cvt_pk_bf16_f32 v%d, v%d, v%d\nv_lshlrev_b32 v%d, 16, v%d" % (d, s, s, d, d))
    def operand(dst, c, H, tmp):
        a("v_cvt_pk_bf16_f32 v%d, v%d, v%d\nv_and_b32 v%d, v%d, v%d" % (tmp, c, c, tmp, tmp, H))
        for j in range(4): a("v_cndmask_b32 v%d, 0, v%d, s[%d:%d]" % (dst + j, tmp, 32 + 2 * j, 33 + 2 * j))
    def mfma(d, A, B, first):
        a("v_mfma_f32_16x16x32_bf16 v[%d:%d], v[%d:%d], v[%d:%d], %s" % (d, d + 3, A, A + 3, B, B + 3, "0" if first else "v[%d:%d]" % (d, d + 3)))
    def fold1(D, out):
        a("v_permlane32_swap_b32 v%d, v%d\nv_permlane32_swap_b32 v%d, v%d" % (D, D + 1, D + 2, D + 3))
        dpp("v_add_f32", out, D + 1, D, "row_ror:8", "0x3")
        dpp("v_add_f32", out, D + 2, D + 3, "row_ror:8", "0xc")
    def poll(loads, tags, errslot):
        L, D = a.label("poll"), a.label("polld")
        a("s_mov_b32 s27, %d" % SPIN)
        a(L + ":")
        for l in loads: a(l)
        if stamps: a("s_add_u32 s59, s59, %d" % (1 << (5 * errslot)))
        a("s_waitcnt vmcnt(0)")
        a("v_cmp_ne_u32 s[40:41], s26, v%d" % tags[0])
        for t in tags[1:]:
            a("v_cmp_ne_u32 s[42:43], s26, v%d\ns_or_b64 s[40:41], s[40:41], s[42:43]" % t)
        a("s_cmp_eq_u64 s[40:41], 0\ns_cbranch_scc1 %s\ns_sub_u32 s27, s27, 1\ns_cbranch_scc0 %s" % (D, L))
        if stamps: a("s_or_b32 s58, s58, %d" % (1 << errslot))
        a(D + ":")
    def lwait(flag, thr, vaddr, vtmp, extra=(), sleep=SLP):
        L, D = a.label("lw"), a.label("lwd")
        a("s_mov_b32 s27, %d" % (SPIN * 8))
        a(L + ":")
        a("ds_read_b32 v%d, v%d offset:%d" % (vtmp, vaddr, flag))
        for l in extra: a(l)
        a("s_waitcnt lgkmcnt(0)\nv_readfirstlane_b32 s40, v%d\ns_cmp_ge_u32 s40, %d\ns_cbranch_scc1 %s" % (vtmp, thr, D))
        a("s_sleep %d\ns_sub_u32 s27, s27, 1\ns_cbranch_scc0 %s" % (sleep, L))
        if stamps: a("s_or_b32 s58, s58, 256")
        a(D + ":")
    def srd(base, ptr, size):
        a("s_mov_b32 s%d, s%d\ns_mov_b32 s%d, s%d\ns_mov_b32 s%d, %d\ns_mov_b32 s%d, 0x00020000" % (base, ptr, base + 1, ptr + 1, base + 2, size, base + 3))
    def nonce():
        a("s_waitcnt lgkmcnt(0)\ns_mul_i32 s26, s26, 0x19660d\ns_add_u32 s26, s26, 0x3c6ef35f")
    a("s_cmp_ge_u32 s2, 256\ns_cbranch_scc1 .Lend")
    a("s_load_dwordx16 s[64:79], s[0:1], 0\ns_load_dwordx8 s[80:87], s[0:1], 64")
    if stamps: a("s_memrealtime s[88:89]")
    a("""
    v_lshrrev_b32 v1, 6, v0
    v_and_b32 v0, 63, v0
    v_readfirstlane_b32 s3, v1
    s_and_b32 s24, s2, 7
    s_lshl_b32 s24, s24, 2
    s_bfe_u32 s25, s2, 0x20003
    s_or_b32 s24, s24, s25
    s_lshr_b32 s25, s2, 5
    v_lshrrev_b32 v4, 3, v0
    v_and_b32 v5, 7, v0
    s_cmp_lt_u32 s3, 5
    s_cbranch_scc1 .Laux
    """)
    def masks():
        for j, m in enumerate(("0x03030303", "0x0c0c0c0c", "0x30303030", "0xc0c0c0c0")):
            a("s_mov_b32 s%d, %s\ns_mov_b32 s%d, %s" % (32 + 2 * j, m, 33 + 2 * j, m))
        a("v_and_b32 v2, 1, v0\nv_lshlrev_b32 v2, 4, v2\nv_mov_b32 v3, 0xffff\nv_lshlrev_b32 v2, v2, v3")
    KV = 32
    Q = 8
    SC = 20
    VOFF, H = 1, 2
    OP = 28
    T0, T1, T2, T3 = 3, 4, 5, 6
    TM = 7
    a("""
    v_mul_u32_u24 v1, 384, v4
    v_lshl_add_u32 v1, v5, 4, v1
    s_sub_u32 s48, s3, 5
    s_mul_i32 s28, s24, 1572864
    s_mul_i32 s29, s25, 196608
    s_add_u32 s28, s28, s29
    s_mul_i32 s29, s48, 24576
    s_add_u32 s28, s28, s29
    s_add_u32 s29, s28, 6144
    s_add_u32 s30, s28, 12288
    s_add_u32 s31, s28, 18432
    s_waitcnt lgkmcnt(0)
    """)
    srd(4, 66, 50331648)
    st = dict(n=0, landed=0)
    def need(idx):
        if idx >= st["landed"]:
            a("s_waitcnt vmcnt(%d)" % (st["n"] - 1 - idx)); st["landed"] = idx + 1
    def kvload(throttle=True):
        n = st["n"]; i = n % 24; t, ln = i // 3, i % 3
        if throttle and n >= T: need(n - T)
        r = KV + 4 * i
        a("buffer_load_dwordx4 v[%d:%d], v%d, s[%d:%d], s%d offen offset:%d%s" % (r, r + 3, VOFF, 4 if n < 24 else 8, 7 if n < 24 else 11, 28 + t // 2, 3072 * (t & 1) + 128 * ln, NT))
        st["n"] += 1
        n = st["n"]
        if n in (G1, G2, G3):
            a("s_mov_b64 exec, 1\nv_mov_b32 v%d, 0\nv_mov_b32 v%d, %d\nds_max_u32 v%d, v%d offset:%d\ns_mov_b64 exec, -1" % (OP, OP + 1, n, OP, OP + 1, F_PROG))
        if n == 24 + PW:
            a("s_mov_b64 exec, 1\nv_mov_b32 v%d, 0\nv_mov_b32 v%d, 1\nds_add_u32 v%d, v%d offset:%d\ns_mov_b64 exec, -1" % (OP, OP + 1, OP, OP + 1, F_WOGO))
    for _ in range(T): kvload()
    a("s_load_dword s26, s[86:87], 0")
    srd(8, 68, 50331648); srd(12, 86, 268435456); srd(16, 64, 1280); srd(20, 82, 1280)
    zero_stamps()
    masks()
    a("v_lshlrev_b32 v6, 4, v5")
    a("s_barrier")
    while st["n"] < P1: kvload()
    nonce()
    stamp(1)
    lwait(F_QRDY, 3, 6, T0, ["ds_read_b128 v[%d:%d], v6 offset:%d" % (Q + 4 * ln, Q + 4 * ln + 3, L_Q + 128 * ln) for ln in range(3)], sleep=1)
    stamp(2)
    def qk(t):
        acc = [T0, T1, T2]
        for j in range(4):
            for ln in range(3):
                a("v_dot2_f32_bf16 v%d, v%d, v%d, %s" % (acc[ln], KV + 12 * t + 4 * ln + j, Q + 4 * ln + j, "0" if j == 0 else "v%d" % acc[ln]))
        a("v_add_f32 v%d, v%d, v%d\nv_add_f32 v%d, v%d, v%d" % (T0, T0, T1, T0, T0, T2))
        red8("v_add_f32", [T0])
        rbf(T0, T0)
        a("v_mul_f32 v%d, %s, v%d" % (T0, SCALE, T0))
        rbf(SC + t, T0)
    tq = 0
    while tq < 8:
        did = 0
        while tq < 8 and did < 2 and 3 * tq + 2 < st["landed"]:
            qk(tq); tq += 1; did += 1
        if tq < 8:
            if st["n"] >= 24 and (st["n"] - 24) // 3 >= tq:
                need(3 * tq + 2)
            else:
                kvload()
    a("v_max3_f32 v%d, v%d, v%d, v%d" % (TM, SC, SC + 1, SC + 2))
    a("v_max3_f32 v%d, v%d, v%d, v%d" % (T0, SC + 3, SC + 4, SC + 5))
    a("v_max3_f32 v%d, v%d, v%d, v%d" % (TM, TM, SC + 6, SC + 7))
    a("v_max_f32 v%d, v%d, v%d" % (TM, TM, T0))
    redhi("v_max_f32", [(TM, T0)])
    a("v_mul_f32 v%d, %s, v%d" % (T1, LOG2E, TM))
    a("s_mov_b32 s49, %s" % LOG2E)
    for t in range(8): a("v_fma_f32 v%d, v%d, s49, -v%d" % (SC + t, SC + t, T1))
    for t in range(8): a("v_exp_f32 v%d, v%d" % (SC + t, SC + t))
    a("v_add_f32 v%d, v%d, v%d\nv_add_f32 v%d, v%d, v%d" % (T2, SC, SC + 1, T3, SC + 2, SC + 3))
    a("v_add_f32 v%d, v%d, v%d\nv_add_f32 v%d, v%d, v%d" % (T2, T2, SC + 4, T3, T3, SC + 5))
    a("v_add_f32 v%d, v%d, v%d\nv_add_f32 v%d, v%d, v%d" % (T2, T2, SC + 6, T3, T3, SC + 7))
    S4 = Q
    a("v_add_f32 v%d, v%d, v%d" % (S4 + 2, T2, T3))
    redhi("v_add_f32", [(S4 + 2, T0)])
    a("v_mov_b32 v%d, v%d\nv_mov_b32 v%d, s26\nv_mov_b32 v%d, s26\nv_mov_b32 v%d, 0" % (S4, TM, S4 + 1, S4 + 3, T3))
    a("s_lshl_b32 s50, s24, 10\ns_lshl_b32 s51, s25, 7\ns_add_u32 s50, s50, s51\ns_lshl_b32 s51, s48, 4\ns_add_u32 s50, s50, s51\ns_add_u32 s50, s50, %d" % WS_ST)
    a("s_mov_b64 exec, 1\nbuffer_store_dwordx4 v[%d:%d], v%d, s[12:15], s50 offen sc1\ns_mov_b64 exec, -1" % (S4, S4 + 3, T3))
    stamp(3)
    while st["n"] < 24 + P2: kvload()
    stamp(4)
    lwait(F_STRDY, 1, T3, T0, ["ds_read_b64 v[%d:%d], v%d offset:%d" % (T1, T2, T3, L_ST)], sleep=1)
    stamp(5)
    a("v_sub_f32 v%d, v%d, v%d\nv_mul_f32 v%d, %s, v%d\nv_exp_f32 v%d, v%d\nv_mul_f32 v%d, v%d, v%d" % (T0, TM, T1, T0, LOG2E, T0, T0, T0, TM, T0, T2))
    for t in range(8):
        if st["n"] < 48 and t >= 1: kvload()
        a("v_mul_f32 v%d, v%d, v%d" % (T0, SC + t, TM))
        operand(OP, T0, H, T1)
        for ln in range(3):
            while st["n"] <= 24 + 3 * t + ln: kvload()
            need(24 + 3 * t + ln)
            mfma(Q + 4 * ln, OP, KV + 12 * t + 4 * ln, t == 0)
        if t == 5:
            a("""
            v_and_b32 v6, 7, v0
            v_lshlrev_b32 v6, 5, v6
            v_bfe_u32 v5, v0, 4, 1
            v_lshl_add_u32 v6, v5, 4, v6
            v_bfe_u32 v5, v0, 3, 1
            v_lshl_add_u32 v6, v5, 3, v6
            v_bfe_u32 v5, v0, 5, 1
            v_lshl_add_u32 v6, v5, 2, v6
            s_mul_i32 s49, s48, 768
            v_add_u32 v6, s49, v6
            """)
    stamp(6)
    for ln in range(3): fold1(Q + 4 * ln, SC + ln)
    for ln in range(3): a("ds_write_b32 v6, v%d offset:%d" % (SC + ln, L_PART + 256 * ln))
    a("s_waitcnt lgkmcnt(0)")
    a("s_barrier")
    stamp(7)
    a("s_cmp_ge_u32 s2, %d\ns_cbranch_scc1 .Lbulk_end" % NRED)
    a("v_and_b32 v31, 3, v0\nv_lshlrev_b32 v31, 2, v31\ns_lshl_b32 s49, s2, 4\nbuffer_load_dword v30, v31, s[16:19], s49 offen")
    a("v_lshlrev_b32 v1, 3, v0\ns_lshl_b32 s50, s2, 12\ns_lshl_b32 s51, s48, 9\ns_add_u32 s50, s50, s51\ns_add_u32 s50, s50, %d" % WS_B)
    poll(["buffer_load_dwordx2 v[32:33], v1, s[12:15], s50 offen sc1"], [33], 2)
    redhi("v_add_f32", [(32, 10)])
    a("v_lshlrev_b32 v3, 2, v0\ns_lshl_b32 s51, s48, 5\nv_add_u32 v3, s51, v3")
    a("s_mov_b64 exec, 0xff\nds_write_b32 v3, v32 offset:%d\ns_mov_b64 exec, -1" % L_REDB)
    a("v_lshlrev_b32 v1, 4, v0\ns_lshl_b32 s50, s2, 14\ns_lshl_b32 s51, s48, 11\ns_add_u32 s50, s50, s51\ns_add_u32 s50, s50, %d" % WS_A)
    a("v_lshlrev_b32 v3, 3, v0\ns_lshl_b32 s51, s48, 5\nv_add_u32 v3, s51, v3")
    a("s_barrier")
    stamp(8)
    poll(["buffer_load_dwordx4 v[32:35], v1, s[12:15], s50 offen sc1", "buffer_load_dwordx4 v[36:39], v1, s[12:15], s50 offen offset:1024 sc1"], [33, 35, 37, 39], 4)
    stamp(9)
    a("v_add_f32 v8, v32, v36\nv_add_f32 v9, v34, v38")
    for r in (8, 9): dpp("v_add_f32", r, r, r, "row_ror:4")
    redhi("v_add_f32", [(8, 10), (9, 11)])
    a("s_mov_b64 exec, 15\nds_write_b64 v3, v[8:9] offset:%d\ns_mov_b64 exec, -1\ns_waitcnt lgkmcnt(0)" % L_RED)
    a("s_barrier")
    a("s_cmp_lg_u32 s48, 0\ns_cbranch_scc1 .Lbulk_end")
    a("v_lshlrev_b32 v3, 3, v0\nds_read_b64 v[8:9], v3 offset:%d" % L_RED)
    a("v_lshlrev_b32 v14, 16, v30\nv_and_b32 v15, 0xffff0000, v30\ns_waitcnt lgkmcnt(0)")
    for ctl in ("row_ror:4", "row_ror:8"):
        for r in (8, 9): dpp("v_add_f32", r, r, r, ctl)
    a("v_mov_b32 v10, v8\nv_mov_b32 v11, v9\nv_permlane16_swap_b32 v8, v10\nv_permlane16_swap_b32 v9, v11\nv_add_f32 v8, v8, v10\nv_add_f32 v9, v9, v11")
    a("v_cvt_pk_bf16_f32 v8, v8, v9\nv_mov_b32 v12, v8\nv_permlane32_swap_b32 v8, v12")
    a("v_and_b32 v9, 0xffff0000, v8\nv_lshlrev_b32 v8, 16, v8\nv_add_f32 v8, v8, v14\nv_add_f32 v9, v9, v15")
    a("v_and_b32 v13, 0xffff0000, v12\nv_lshlrev_b32 v12, 16, v12")
    a("v_cvt_pk_bf16_f32 v8, v8, v9\nv_and_b32 v9, 0xffff0000, v8\nv_lshlrev_b32 v8, 16, v8\nv_add_f32 v8, v8, v12\nv_add_f32 v9, v9, v13")
    a("v_cvt_pk_bf16_f32 v8, v8, v9")
    a("s_mov_b64 exec, 15\nbuffer_store_dword v8, v31, s[20:23], s49 offen")
    a("s_cmp_lg_u32 s2, 0\ns_cbranch_scc1 .Lbulk_end")
    a("s_mov_b64 exec, 1\nv_mov_b32 v9, s26\nv_mov_b32 v1, 0\nbuffer_store_dword v9, v1, s[12:15], 0 offen sc1")
    a(".Lbulk_end:")
    stamp(10)
    flush_stamps(range(1, 11))
    a("s_endpgm")

    a(".Laux:\ns_setprio 3")
    W1 = 32
    W2 = 72
    XF = 8
    XC = 16
    G = 96
    AOP = 24
    ACC = 112
    Z = 120
    H = 2
    a("""
    s_cmp_lt_u32 s3, 3
    s_cbranch_scc1 .Laux_q
    s_lshr_b32 s52, s24, 3
    s_lshl_b32 s52, s52, 1
    s_sub_u32 s53, s3, 3
    s_add_u32 s52, s52, s53
    s_mul_i32 s48, s52, 80
    s_and_b32 s53, s24, 3
    s_mul_i32 s53, s53, 6
    s_add_u32 s53, s53, s25
    s_lshl_b32 s49, s53, 7
    s_movk_i32 s50, 3072
    s_mul_i32 s51, s52, 24576
    s_lshl_b32 s53, s53, 9
    s_add_u32 s51, s51, s53
    s_bfe_u32 s53, s24, 0x10002
    s_mul_i32 s54, s53, 12288
    s_add_u32 s51, s51, s54
    s_add_u32 s51, s51, %d
    s_waitcnt lgkmcnt(0)
    s_cmp_eq_u32 s53, 0
    s_cselect_b32 s4, s76, s78
    s_cselect_b32 s5, s77, s79
    s_mov_b32 s6, 1966080
    s_branch .Laux_p
    .Laux_q:
    s_mul_i32 s48, s25, 80
    s_mul_i32 s49, s24, 384
    s_lshl_b32 s53, s3, 7
    s_add_u32 s49, s49, s53
    s_movk_i32 s50, 12288
    s_mul_i32 s51, s24, 12288
    s_mul_i32 s52, s25, 1536
    s_add_u32 s51, s51, s52
    s_lshl_b32 s53, s3, 9
    s_add_u32 s51, s51, s53
    s_add_u32 s51, s51, %d
    s_waitcnt lgkmcnt(0)
    s_mov_b32 s4, s70
    s_mov_b32 s5, s71
    s_mov_b32 s6, 7864320
    .Laux_p:
    s_mov_b32 s7, 0x00020000
    s_load_dword s26, s[86:87], 0
    """ % (WS_GU, WS_Q))
    srd(16, 64, 1280)
    a("s_lshl_b32 s55, s24, 1\ns_add_u32 s55, s55, s25\ns_sub_u32 s55, s55, 6\ns_mul_i32 s56, s55, 24")
    a("s_cmp_lt_u32 s3, 3\ns_cbranch_scc1 .Laux_s1\ns_cmp_ge_u32 s25, 6\ns_cbranch_scc1 .Laux_s1skip")
    a(".Laux_s1:")
    a("v_lshlrev_b32 v1, 2, v0")
    for j in range(5): a("buffer_load_dword v%d, v1, s[16:19], 0 offen offset:%d" % (XF + j, 256 * j))
    a("v_mul_u32_u24 v3, 20, v4\ns_lshl_b32 s52, s48, 1")
    a("buffer_load_dwordx4 v[%d:%d], v3, s[16:19], s52 offen\nbuffer_load_dword v%d, v3, s[16:19], s52 offen offset:16" % (XC, XC + 3, XC + 4))
    a("s_mul_i32 s52, s50, 10\nv_mul_lo_u32 v6, v4, s52\nv_lshl_add_u32 v6, v5, 4, v6\ns_mul_i32 s52, s48, s50\ns_add_u32 s52, s52, s49")
    for t in range(10):
        a("buffer_load_dwordx4 v[%d:%d], v6, s[4:7], s52 offen%s" % (W1 + 4 * t, W1 + 4 * t + 3, NT))
        if t < 9: a("s_add_u32 s52, s52, s50")
    a(".Laux_s1skip:")
    srd(8, 72, 7864320); srd(12, 86, 268435456); srd(20, 80, 1966080)
    zero_stamps()
    masks()
    a("v_mul_u32_u24 v7, 1280, v4\nv_lshl_add_u32 v7, v5, 4, v7")
    a("v_mov_b32 v%d, 0\nv_mov_b32 v%d, 0\nv_mov_b32 v%d, 0\nv_mov_b32 v%d, 0\nv_mov_b32 v%d, 1" % (Z, Z + 1, Z + 2, Z + 3, Z + 4))
    a("ds_write_b128 v%d, v[%d:%d] offset:%d" % (Z, Z, Z + 3, L_FLAG))
    nonce()
    a("s_barrier")
    a("s_cmp_lt_u32 s3, 3\ns_cbranch_scc1 .Laux_ln\ns_cmp_ge_u32 s25, 6\ns_cbranch_scc1 .Laux_pub_done")
    a(".Laux_ln:\ns_waitcnt vmcnt(10)")
    stamp(1)
    def stage2_loads(srdb, rowbase_sgpr):
        a("s_mul_i32 s52, s%d, 1280\ns_lshl_b32 s53, s3, 8\ns_add_u32 s52, s52, s53" % rowbase_sgpr)
        for t in range(3):
            for ln in range(2):
                r = W2 + 8 * t + 4 * ln
                a("buffer_load_dwordx4 v[%d:%d], v7, s[%d:%d], s52 offen offset:%d%s" % (r, r + 3, srdb, srdb + 3, 128 * ln, NT))
            if t < 2: a("s_add_u32 s52, s52, 10240")
    U = 96
    for j in range(5): a("v_lshlrev_b32 v%d, 16, v%d\nv_and_b32 v%d, 0xffff0000, v%d" % (U + 2 * j, XF + j, U + 2 * j + 1, XF + j))
    a("v_add_f32 v13, v%d, v%d" % (U, U + 1))
    for j in range(2, 10): a("v_add_f32 v13, v13, v%d" % (U + j))
    redall("v_add_f32", [(13, 14)])
    a("v_mul_f32 v13, 0x3acccccd, v13")
    for j in range(10): a("v_sub_f32 v%d, v%d, v13" % (U + j, U + j))
    a("v_mul_f32 v14, v%d, v%d" % (U, U))
    for j in range(1, 10): a("v_fma_f32 v14, v%d, v%d, v14" % (U + j, U + j))
    redall("v_add_f32", [(14, 15)])
    a("v_mul_f32 v14, 0x3acccccd, v14")
    rbf(14, 14); a("v_add_f32 v14, 0x3727c5ac, v14"); rbf(14, 14)
    a("v_sqrt_f32 v14, v14"); rbf(14, 14); a("v_rcp_f32 v14, v14")
    rbf(13, 13)
    for j in range(5): a("v_lshlrev_b32 v%d, 16, v%d\nv_and_b32 v%d, 0xffff0000, v%d" % (U + 2 * j, XC + j, U + 2 * j + 1, XC + j))
    for j in range(10):
        a("v_sub_f32 v%d, v%d, v13" % (U + j, U + j)); rbf(U + j, U + j); a("v_mul_f32 v%d, v%d, v14" % (U + j, U + j))
    stamp(2)
    for t in range(10):
        op = AOP + 4 * (t & 1)
        operand(op, U + t, H, 3)
        a("s_waitcnt vmcnt(%d)" % (9 - t))
        mfma(ACC, op, W1 + 4 * t, t == 0)
    a("""
    v_lshlrev_b32 v1, 6, v5
    v_bfe_u32 v3, v0, 4, 1
    v_lshl_add_u32 v1, v3, 5, v1
    v_bfe_u32 v3, v0, 3, 1
    v_lshl_add_u32 v1, v3, 4, v1
    v_bfe_u32 v3, v0, 5, 1
    v_lshl_add_u32 v1, v3, 3, v1
    """)
    a("v_mov_b32 v15, s26")
    fold1(ACC, 14)
    a("buffer_store_dwordx2 v[14:15], v1, s[12:15], s51 offen sc1")
    stamp(3)
    a(".Laux_pub_done:")
    a("s_cmp_lt_u32 s25, 6\ns_cbranch_scc1 .Laux_nowdl")
    stage2_loads(20, 56)
    a(".Laux_nowdl:")
    a("s_cmp_ge_u32 s3, 3\ns_cbranch_scc1 .Laux_qdone")
    a("v_lshlrev_b32 v1, 3, v0\ns_mul_i32 s52, s24, 12288\ns_lshl_b32 s53, s3, 9\ns_add_u32 s52, s52, s53\ns_add_u32 s52, s52, %d\ns_add_u32 s53, s52, 3072\ns_add_u32 s54, s52, 6144\ns_add_u32 s57, s52, 9216" % WS_Q)
    so = [52, 53, 54, 57]
    lwait(F_PROG, G1, Z, 3)
    poll(["buffer_load_dwordx2 v[%d:%d], v1, s[12:15], s%d offen offset:%d sc1" % (G + 2 * p, G + 2 * p + 1, so[p // 2], 1536 * (p & 1)) for p in range(8)], [G + 2 * p + 1 for p in range(8)], 0)
    for p in range(1, 8): a("v_add_f32 v%d, v%d, v%d" % (G, G, G + 2 * p))
    a("v_cvt_pk_bf16_f32 v%d, v%d, v%d\nv_lshlrev_b32 v1, 1, v0\ns_lshl_b32 s53, s3, 7\nv_add_u32 v1, s53, v1\nds_write_b16 v1, v%d offset:%d" % (G, G, G, G, L_Q))
    a("s_waitcnt lgkmcnt(0)\ns_mov_b64 exec, 1\nds_add_u32 v%d, v%d offset:%d\ns_mov_b64 exec, -1" % (Z, Z + 4, F_QRDY))
    stamp(4)
    a(".Laux_qdone:")
    a("s_cmp_lt_u32 s25, 6\ns_cbranch_scc1 .Laux_wddone")
    a("v_mul_u32_u24 v1, 24576, v5\nv_lshl_add_u32 v1, v4, 3, v1\ns_lshl_b32 s52, s56, 3\ns_add_u32 s52, s52, %d\ns_add_u32 s53, s52, 12288" % WS_GU)
    lwait(F_PROG, G3, Z, 3)
    poll(["buffer_load_dwordx2 v[%d:%d], v1, s[12:15], s%d offen offset:%d sc1" % (G + 2 * i, G + 2 * i + 1, 52 + i // 3, 64 * (i % 3)) for i in range(6)], [G + 2 * i + 1 for i in range(6)], 1)
    red8("v_add_f32", [G + 2 * i for i in range(6)])
    for i in range(6): rbf(G + 2 * i, G + 2 * i)
    for t in range(3):
        g, u = G + 2 * t, G + 6 + 2 * t
        a("v_mul_f32 v%d, 0xbfb8aa3b, v%d\nv_exp_f32 v%d, v%d\nv_add_f32 v%d, 1.0, v%d\nv_rcp_f32 v%d, v%d" % (g, g, g, g, g, g, g, g))
        rbf(g, g)
        a("v_mul_f32 v%d, v%d, v%d" % (g, g, u))
    def stage2_addr(rs_log2, region, prod_sgpr):
        a("v_bfe_u32 v3, v0, 5, 1\nv_lshl_add_u32 v18, v3, 3, v5\nv_lshlrev_b32 v18, %d, v18\nv_bfe_u32 v3, v0, 4, 1\nv_lshl_add_u32 v18, v3, 5, v18\nv_bfe_u32 v3, v0, 3, 1\nv_lshl_add_u32 v18, v3, 4, v18" % rs_log2)
        a("s_lshl_b32 s60, s3, %d\ns_lshl_b32 s53, s%d, 6\ns_add_u32 s60, s60, s53\ns_add_u32 s60, s60, %d" % (rs_log2 + 4, prod_sgpr, region))
        a("v_mov_b32 v21, s26\nv_mov_b32 v23, s26")
    def stage2():
        for t in range(3):
            op = AOP + 4 * (t & 1)
            operand(op, G + 2 * t, H, 3)
            mfma(ACC, op, W2 + 8 * t, t == 0)
            mfma(ACC + 4, op, W2 + 8 * t + 4, t == 0)
        for r in range(4): a("v_permlane32_swap_b32 v%d, v%d" % (ACC + r, ACC + 4 + r))
        X, Y = ACC, ACC + 4
        dpp("v_add_f32", 20, Y + 0, X + 0, "row_ror:8", "0x3")
        dpp("v_add_f32", 22, Y + 1, X + 1, "row_ror:8", "0x3")
        dpp("v_add_f32", 20, X + 2, Y + 2, "row_ror:8", "0xc")
        dpp("v_add_f32", 22, X + 3, Y + 3, "row_ror:8", "0xc")
        a("buffer_store_dwordx4 v[20:23], v18, s[12:15], s60 offen sc1")
    stage2_addr(12, WS_B, 55)
    stage2()
    stamp(5)
    a(".Laux_wddone:")
    a("s_cmp_lg_u32 s3, 0\ns_cbranch_scc1 .Laux_s2")
    a("v_lshlrev_b32 v1, 4, v0\ns_lshl_b32 s52, s24, 10\ns_add_u32 s52, s52, %d" % WS_ST)
    lwait(F_PROG, G2, Z, 3)
    stamp(6)
    poll(["buffer_load_dwordx4 v[%d:%d], v1, s[12:15], s52 offen sc1" % (G, G + 3)], [G + 1, G + 3], 3)
    a("v_mov_b32 v12, v%d" % G)
    redall("v_max_f32", [(12, 14)])
    a("v_sub_f32 v13, v%d, v12\nv_mul_f32 v13, %s, v13\nv_exp_f32 v13, v13\nv_mul_f32 v13, v13, v%d" % (G, LOG2E, G + 2))
    redall("v_add_f32", [(13, 14)])
    a("v_rcp_f32 v13, v13\ns_mov_b64 exec, 1\nds_write_b64 v%d, v[12:13] offset:%d\ns_waitcnt lgkmcnt(0)\nds_write_b32 v%d, v%d offset:%d\ns_mov_b64 exec, -1" % (Z, L_ST, Z, Z + 4, F_STRDY))
    a(".Laux_s2:")
    stamp(7)
    a("s_mul_i32 s56, s24, 192\ns_mul_i32 s52, s25, 24\ns_add_u32 s56, s56, s52")
    a("v_lshlrev_b32 v6, 2, v0\ns_lshl_b32 s53, s3, 8\nv_add_u32 v6, s53, v6")
    a("v_lshlrev_b32 v16, 3, v0\ns_mul_i32 s54, s24, 12288\ns_add_u32 s54, s54, %d\ns_mul_i32 s52, s25, 1536\ns_add_u32 s57, s54, s52\ns_lshl_b32 s53, s3, 9\ns_add_u32 s57, s57, s53" % WS_O)
    a("v_mul_u32_u24 v17, 1536, v5\nv_lshl_add_u32 v17, v4, 3, v17\ns_mul_i32 s52, s25, 192\ns_add_u32 s54, s54, s52")
    a("v_mov_b32 v15, s26")
    stage2_addr(14, WS_A, 2)
    lwait(F_WOGO, CW, Z, 3)
    stage2_loads(8, 56)
    stamp(8)
    a("s_barrier")
    a("s_cmp_ge_u32 s3, 3\ns_cbranch_scc1 .Laux_og")
    for k in range(4): a("ds_read2st64_b32 v[%d:%d], v6 offset0:%d offset1:%d" % (G + 2 * k, G + 2 * k + 1, L_PART // 256 + 6 * k, L_PART // 256 + 6 * k + 3))
    a("s_waitcnt lgkmcnt(0)")
    for k in range(4): a("v_add_f32 v%d, v%d, v%d" % (G + 2 * k, G + 2 * k, G + 2 * k + 1))
    a("v_add_f32 v%d, v%d, v%d\nv_add_f32 v%d, v%d, v%d\nv_add_f32 v14, v%d, v%d" % (G, G, G + 2, G + 4, G + 4, G + 6, G, G + 4))
    a("buffer_store_dwordx2 v[14:15], v16, s[12:15], s57 offen sc1")
    a(".Laux_og:")
    stamp(9)
    poll(["buffer_load_dwordx2 v[%d:%d], v17, s[12:15], s54 offen offset:%d sc1" % (G + 2 * t, G + 2 * t + 1, 64 * t) for t in range(3)], [G + 1, G + 3, G + 5], 5)
    stamp(10)
    red8("v_add_f32", [G, G + 2, G + 4])
    stage2()
    stamp(11)
    a("s_cmp_ge_u32 s2, %d\ns_cbranch_scc1 .Laux_end\ns_barrier" % NRED)
    a(".Laux_end:")
    flush_stamps(range(1, 12))
    a(".Lend:\ns_endpgm")
    a.l, n = hazard.fix(a.l)
    return a.text(256, 832, LDS_BYTES, 128)

if __name__ == "__main__":
    out = sys.argv[1]
    kw = dict(x.split("=") for x in sys.argv[2:])
    kw = {k: int(v) for k, v in kw.items()}
    open(out, "w").write(gen(**kw))
```

```python
import sys
from asmlib import *
import hazard

WS_Q, WS_GU, WS_ST, WS_O, WS_B, WS_A = 0x10000, 0x80000, 0xC0000, 0x100000, 0x180000, 0x200000
L_Q, L_ST, L_FLAG, L_PART, L_RED, L_REDB = 0, 384, 448, 512, 6656, 6912
F_PROG, F_QRDY, F_STRDY, F_WOGO = L_FLAG, L_FLAG + 4, L_FLAG + 8, L_FLAG + 12
LDS_BYTES = 7168
SPIN = 40000
LOG2E = "0x3fb8aa3b"
SCALE = "0x3d93cd3a"

def gen(T=4, P1=20, P2=22, PW=22, CW=8, G1=12, G3=26, G2=36, stamps=0, NRED=80, SLP=2, dbgst=0, pol=0):
    a = Asm()
    NT = [" nt", "", " sc1 nt", " sc0 sc1 nt", " sc1", " sc0 sc1", " sc0 nt"][pol]
    def stamp(k):
        if stamps: a("s_memrealtime s[%d:%d]" % (64 + 2 * k - 2, 64 + 2 * k - 1))
    def flush_stamps(ks):
        if dbgst and len(ks) == 10:
            a("s_cmp_lg_u32 s3, 5\ns_cbranch_scc1 .Lend")
            a("s_memrealtime s[90:91]\ns_mov_b32 s40, s84\ns_mov_b32 s41, s85\ns_mov_b32 s42, 256\ns_mov_b32 s43, 0x00020000\ns_waitcnt lgkmcnt(0)\ns_mov_b64 exec, 1\nv_mov_b32 v2, 0\ns_not_b32 s88, s88\nv_mov_b32 v3, s88\nv_mov_b32 v4, s90")
            a("buffer_atomic_umax v3, v2, s[40:43], 0 offen sc1\nbuffer_atomic_umax v4, v2, s[40:43], 0 offen offset:4 sc1")
        if not stamps: return
        a("s_waitcnt lgkmcnt(0)\ns_mov_b64 exec, 1\nv_mov_b32 v2, 0\ns_lshl_b32 s40, s2, 10\ns_lshl_b32 s41, s3, 6\ns_add_u32 s40, s40, s41\ns_add_u32 s40, s40, %d" % STAMP_OFF)
        for k in [0] + list(ks):
            r = 88 if k == 0 else 64 + 2 * k - 2
            a("v_mov_b32 v3, s%d\nbuffer_store_dword v3, v2, s[12:15], s40 offen offset:%d" % (r, 4 * k))
        a("v_mov_b32 v3, s58\nbuffer_store_dword v3, v2, s[12:15], s40 offen offset:60")
        a("v_mov_b32 v3, s59\nbuffer_store_dword v3, v2, s[12:15], s40 offen offset:56")
    def zero_stamps():
        if stamps:
            a("s_mov_b32 s58, 0\ns_mov_b32 s59, 0")
            for k in range(1, 12): a("s_mov_b32 s%d, 0" % (64 + 2 * k - 2))
    def dpp(op, d, s0, s1, ctl, bank="0xf"):
        a("%s_dpp v%d, v%d, v%d %s row_mask:0xf bank_mask:%s" % (op, d, s0, s1, ctl, bank))
    def red8(op, regs_):
        for ctl in ("quad_perm:[1,0,3,2]", "quad_perm:[2,3,0,1]", "row_half_mirror"):
            for r in regs_: dpp(op, r, r, r, ctl)
    def redrows(op, pairs):
        for sw in ("v_permlane16_swap_b32", "v_permlane32_swap_b32"):
            for r, t in pairs: a("v_mov_b32 v%d, v%d" % (t, r))
            for r, t in pairs: a("%s v%d, v%d" % (sw, r, t))
            for r, t in pairs: a("%s v%d, v%d, v%d" % (op, r, r, t))
    def redhi(op, pairs):
        for r, t in pairs: dpp(op, r, r, r, "row_ror:8")
        redrows(op, pairs)
    def redall(op, pairs):
        red8(op, [r for r, t in pairs]); redhi(op, pairs)
    def rbf(d, s):
        a("v_cvt_pk_bf16_f32 v%d, v%d, v%d\nv_lshlrev_b32 v%d, 16, v%d" % (d, s, s, d, d))
    def operand(dst, c, H, tmp):
        a("v_cvt_pk_bf16_f32 v%d, v%d, v%d\nv_and_b32 v%d, v%d, v%d" % (tmp, c, c, tmp, tmp, H))
        for j in range(4): a("v_cndmask_b32 v%d, 0, v%d, s[%d:%d]" % (dst + j, tmp, 32 + 2 * j, 33 + 2 * j))
    def mfma(d, A, B, first):
        a("v_mfma_f32_16x16x32_bf16 v[%d:%d], v[%d:%d], v[%d:%d], %s" % (d, d + 3, A, A + 3, B, B + 3, "0" if first else "v[%d:%d]" % (d, d + 3)))
    def fold1(D, out):
        a("v_permlane32_swap_b32 v%d, v%d\nv_permlane32_swap_b32 v%d, v%d" % (D, D + 1, D + 2, D + 3))
        dpp("v_add_f32", out, D + 1, D, "row_ror:8", "0x3")
        dpp("v_add_f32", out, D + 2, D + 3, "row_ror:8", "0xc")
    def poll(loads, tags, errslot):
        L, D = a.label("poll"), a.label("polld")
        a("s_mov_b32 s27, %d" % SPIN)
        a(L + ":")
        for l in loads: a(l)
        if stamps: a("s_add_u32 s59, s59, %d" % (1 << (5 * errslot)))
        a("s_waitcnt vmcnt(0)")
        a("v_cmp_ne_u32 s[40:41], s26, v%d" % tags[0])
        for t in tags[1:]:
            a("v_cmp_ne_u32 s[42:43], s26, v%d\ns_or_b64 s[40:41], s[40:41], s[42:43]" % t)
        a("s_cmp_eq_u64 s[40:41], 0\ns_cbranch_scc1 %s\ns_sub_u32 s27, s27, 1\ns_cbranch_scc0 %s" % (D, L))
        if stamps: a("s_or_b32 s58, s58, %d" % (1 << errslot))
        a(D + ":")
    def lwait(flag, thr, vaddr, vtmp, extra=(), sleep=SLP):
        L, D = a.label("lw"), a.label("lwd")
        a("s_mov_b32 s27, %d" % (SPIN * 8))
        a(L + ":")
        a("ds_read_b32 v%d, v%d offset:%d" % (vtmp, vaddr, flag))
        for l in extra: a(l)
        a("s_waitcnt lgkmcnt(0)\nv_readfirstlane_b32 s40, v%d\ns_cmp_ge_u32 s40, %d\ns_cbranch_scc1 %s" % (vtmp, thr, D))
        a("s_sleep %d\ns_sub_u32 s27, s27, 1\ns_cbranch_scc0 %s" % (sleep, L))
        if stamps: a("s_or_b32 s58, s58, 256")
        a(D + ":")
    def srd(base, ptr, size):
        a("s_mov_b32 s%d, s%d\ns_mov_b32 s%d, s%d\ns_mov_b32 s%d, %d\ns_mov_b32 s%d, 0x00020000" % (base, ptr, base + 1, ptr + 1, base + 2, size, base + 3))
    def nonce():
        a("s_waitcnt lgkmcnt(0)\ns_mul_i32 s26, s26, 0x19660d\ns_add_u32 s26, s26, 0x3c6ef35f")
    a("s_cmp_ge_u32 s2, 256\ns_cbranch_scc1 .Lend")
    a("s_load_dwordx16 s[64:79], s[0:1], 0\ns_load_dwordx8 s[80:87], s[0:1], 64")
    if stamps or dbgst: a("s_memrealtime s[88:89]")
    a("""
    v_lshrrev_b32 v1, 6, v0
    v_and_b32 v0, 63, v0
    v_readfirstlane_b32 s3, v1
    s_and_b32 s24, s2, 7
    s_lshl_b32 s24, s24, 2
    s_bfe_u32 s25, s2, 0x20003
    s_or_b32 s24, s24, s25
    s_lshr_b32 s25, s2, 5
    v_lshrrev_b32 v4, 3, v0
    v_and_b32 v5, 7, v0
    s_cmp_lt_u32 s3, 5
    s_cbranch_scc1 .Laux
    """)
    def masks():
        for j, m in enumerate(("0x03030303", "0x0c0c0c0c", "0x30303030", "0xc0c0c0c0")):
            a("s_mov_b32 s%d, %s\ns_mov_b32 s%d, %s" % (32 + 2 * j, m, 33 + 2 * j, m))
        a("v_and_b32 v2, 1, v0\nv_lshlrev_b32 v2, 4, v2\nv_mov_b32 v3, 0xffff\nv_lshlrev_b32 v2, v2, v3")
    KV = 32
    Q = 8
    SC = 20
    VOFF, H = 1, 2
    OP = 28
    T0, T1, T2, T3 = 3, 4, 5, 6
    TM = 7
    a("""
    v_mul_u32_u24 v1, 384, v4
    v_lshl_add_u32 v1, v5, 4, v1
    s_sub_u32 s48, s3, 5
    s_mul_i32 s28, s24, 1572864
    s_mul_i32 s29, s25, 196608
    s_add_u32 s28, s28, s29
    s_mul_i32 s29, s48, 24576
    s_add_u32 s28, s28, s29
    s_add_u32 s29, s28, 6144
    s_add_u32 s30, s28, 12288
    s_add_u32 s31, s28, 18432
    s_waitcnt lgkmcnt(0)
    """)
    srd(4, 66, 50331648)
    st = dict(n=0, landed=0)
    def need(idx):
        if idx >= st["landed"]:
            a("s_waitcnt vmcnt(%d)" % (st["n"] - 1 - idx)); st["landed"] = idx + 1
    def kvload(throttle=True):
        n = st["n"]; i = n % 24; t, ln = i // 3, i % 3
        if throttle and n >= T: need(n - T)
        r = KV + 4 * i
        a("buffer_load_dwordx4 v[%d:%d], v%d, s[%d:%d], s%d offen offset:%d%s" % (r, r + 3, VOFF, 4 if n < 24 else 8, 7 if n < 24 else 11, 28 + t // 2, 3072 * (t & 1) + 128 * ln, NT))
        st["n"] += 1
        n = st["n"]
        if n in (G1, G2, G3):
            a("s_mov_b64 exec, 1\nv_mov_b32 v%d, 0\nv_mov_b32 v%d, %d\nds_max_u32 v%d, v%d offset:%d\ns_mov_b64 exec, -1" % (OP, OP + 1, n, OP, OP + 1, F_PROG))
        if n == 24 + PW:
            a("s_mov_b64 exec, 1\nv_mov_b32 v%d, 0\nv_mov_b32 v%d, 1\nds_add_u32 v%d, v%d offset:%d\ns_mov_b64 exec, -1" % (OP, OP + 1, OP, OP + 1, F_WOGO))
    for _ in range(T): kvload()
    a("s_load_dword s26, s[86:87], 0")
    srd(8, 68, 50331648); srd(12, 86, 268435456); srd(16, 64, 1280); srd(20, 82, 1280)
    zero_stamps()
    masks()
    a("v_lshlrev_b32 v6, 4, v5")
    a("s_barrier")
    while st["n"] < P1: kvload()
    nonce()
    stamp(1)
    lwait(F_QRDY, 3, 6, T0, ["ds_read_b128 v[%d:%d], v6 offset:%d" % (Q + 4 * ln, Q + 4 * ln + 3, L_Q + 128 * ln) for ln in range(3)], sleep=1)
    stamp(2)
    def qk(t):
        acc = [T0, T1, T2]
        for j in range(4):
            for ln in range(3):
                a("v_dot2_f32_bf16 v%d, v%d, v%d, %s" % (acc[ln], KV + 12 * t + 4 * ln + j, Q + 4 * ln + j, "0" if j == 0 else "v%d" % acc[ln]))
        a("v_add_f32 v%d, v%d, v%d\nv_add_f32 v%d, v%d, v%d" % (T0, T0, T1, T0, T0, T2))
        red8("v_add_f32", [T0])
        rbf(T0, T0)
        a("v_mul_f32 v%d, %s, v%d" % (T0, SCALE, T0))
        rbf(SC + t, T0)
    tq = 0
    while tq < 8:
        did = 0
        while tq < 8 and did < 2 and 3 * tq + 2 < st["landed"]:
            qk(tq); tq += 1; did += 1
        if tq < 8:
            if st["n"] >= 24 and (st["n"] - 24) // 3 >= tq:
                need(3 * tq + 2)
            else:
                kvload()
    a("v_max3_f32 v%d, v%d, v%d, v%d" % (TM, SC, SC + 1, SC + 2))
    a("v_max3_f32 v%d, v%d, v%d, v%d" % (T0, SC + 3, SC + 4, SC + 5))
    a("v_max3_f32 v%d, v%d, v%d, v%d" % (TM, TM, SC + 6, SC + 7))
    a("v_max_f32 v%d, v%d, v%d" % (TM, TM, T0))
    redhi("v_max_f32", [(TM, T0)])
    a("v_mul_f32 v%d, %s, v%d" % (T1, LOG2E, TM))
    a("s_mov_b32 s49, %s" % LOG2E)
    for t in range(8): a("v_fma_f32 v%d, v%d, s49, -v%d" % (SC + t, SC + t, T1))
    for t in range(8): a("v_exp_f32 v%d, v%d" % (SC + t, SC + t))
    a("v_add_f32 v%d, v%d, v%d\nv_add_f32 v%d, v%d, v%d" % (T2, SC, SC + 1, T3, SC + 2, SC + 3))
    a("v_add_f32 v%d, v%d, v%d\nv_add_f32 v%d, v%d, v%d" % (T2, T2, SC + 4, T3, T3, SC + 5))
    a("v_add_f32 v%d, v%d, v%d\nv_add_f32 v%d, v%d, v%d" % (T2, T2, SC + 6, T3, T3, SC + 7))
    S4 = Q
    a("v_add_f32 v%d, v%d, v%d" % (S4 + 2, T2, T3))
    redhi("v_add_f32", [(S4 + 2, T0)])
    a("v_mov_b32 v%d, v%d\nv_mov_b32 v%d, s26\nv_mov_b32 v%d, s26\nv_mov_b32 v%d, 0" % (S4, TM, S4 + 1, S4 + 3, T3))
    a("s_lshl_b32 s50, s24, 10\ns_lshl_b32 s51, s25, 7\ns_add_u32 s50, s50, s51\ns_lshl_b32 s51, s48, 4\ns_add_u32 s50, s50, s51\ns_add_u32 s50, s50, %d" % WS_ST)
    a("s_mov_b64 exec, 1\nbuffer_store_dwordx4 v[%d:%d], v%d, s[12:15], s50 offen sc1\ns_mov_b64 exec, -1" % (S4, S4 + 3, T3))
    stamp(3)
    while st["n"] < 24 + P2: kvload()
    stamp(4)
    lwait(F_STRDY, 1, T3, T0, ["ds_read_b64 v[%d:%d], v%d offset:%d" % (T1, T2, T3, L_ST)], sleep=1)
    stamp(5)
    a("v_sub_f32 v%d, v%d, v%d\nv_mul_f32 v%d, %s, v%d\nv_exp_f32 v%d, v%d\nv_mul_f32 v%d, v%d, v%d" % (T0, TM, T1, T0, LOG2E, T0, T0, T0, TM, T0, T2))
    for t in range(8):
        if st["n"] < 48 and t >= 1: kvload()
        a("v_mul_f32 v%d, v%d, v%d" % (T0, SC + t, TM))
        operand(OP, T0, H, T1)
        for ln in range(3):
            while st["n"] <= 24 + 3 * t + ln: kvload()
            need(24 + 3 * t + ln)
            mfma(Q + 4 * ln, OP, KV + 12 * t + 4 * ln, t == 0)
        if t == 5:
            a("""
            v_and_b32 v6, 7, v0
            v_lshlrev_b32 v6, 5, v6
            v_bfe_u32 v5, v0, 4, 1
            v_lshl_add_u32 v6, v5, 4, v6
            v_bfe_u32 v5, v0, 3, 1
            v_lshl_add_u32 v6, v5, 3, v6
            v_bfe_u32 v5, v0, 5, 1
            v_lshl_add_u32 v6, v5, 2, v6
            s_mul_i32 s49, s48, 768
            v_add_u32 v6, s49, v6
            """)
    stamp(6)
    for ln in range(3): fold1(Q + 4 * ln, SC + ln)
    for ln in range(3): a("ds_write_b32 v6, v%d offset:%d" % (SC + ln, L_PART + 256 * ln))
    a("s_waitcnt lgkmcnt(0)")
    a("s_barrier")
    stamp(7)
    a("s_cmp_ge_u32 s2, %d\ns_cbranch_scc1 .Lbulk_end" % NRED)
    a("v_and_b32 v31, 3, v0\nv_lshlrev_b32 v31, 2, v31\ns_lshl_b32 s49, s2, 4\nbuffer_load_dword v30, v31, s[16:19], s49 offen")
    a("v_lshlrev_b32 v1, 3, v0\ns_lshl_b32 s50, s2, 12\ns_lshl_b32 s51, s48, 9\ns_add_u32 s50, s50, s51\ns_add_u32 s50, s50, %d" % WS_B)
    poll(["buffer_load_dwordx2 v[32:33], v1, s[12:15], s50 offen sc1"], [33], 2)
    redhi("v_add_f32", [(32, 10)])
    a("v_lshlrev_b32 v3, 2, v0\ns_lshl_b32 s51, s48, 5\nv_add_u32 v3, s51, v3")
    a("s_mov_b64 exec, 0xff\nds_write_b32 v3, v32 offset:%d\ns_mov_b64 exec, -1" % L_REDB)
    a("v_lshlrev_b32 v1, 4, v0\ns_lshl_b32 s50, s2, 14\ns_lshl_b32 s51, s48, 11\ns_add_u32 s50, s50, s51\ns_add_u32 s50, s50, %d" % WS_A)
    a("v_lshlrev_b32 v3, 3, v0\ns_lshl_b32 s51, s48, 5\nv_add_u32 v3, s51, v3")
    a("s_barrier")
    stamp(8)
    poll(["buffer_load_dwordx4 v[32:35], v1, s[12:15], s50 offen sc1", "buffer_load_dwordx4 v[36:39], v1, s[12:15], s50 offen offset:1024 sc1"], [33, 35, 37, 39], 4)
    stamp(9)
    a("v_add_f32 v8, v32, v36\nv_add_f32 v9, v34, v38")
    for r in (8, 9): dpp("v_add_f32", r, r, r, "row_ror:4")
    redhi("v_add_f32", [(8, 10), (9, 11)])
    a("s_mov_b64 exec, 15\nds_write_b64 v3, v[8:9] offset:%d\ns_mov_b64 exec, -1\ns_waitcnt lgkmcnt(0)" % L_RED)
    a("s_barrier")
    a("s_cmp_lg_u32 s48, 0\ns_cbranch_scc1 .Lbulk_end")
    a("v_lshlrev_b32 v3, 3, v0\nds_read_b64 v[8:9], v3 offset:%d" % L_RED)
    a("v_lshlrev_b32 v14, 16, v30\nv_and_b32 v15, 0xffff0000, v30\ns_waitcnt lgkmcnt(0)")
    for ctl in ("row_ror:4", "row_ror:8"):
        for r in (8, 9): dpp("v_add_f32", r, r, r, ctl)
    a("v_mov_b32 v10, v8\nv_mov_b32 v11, v9\nv_permlane16_swap_b32 v8, v10\nv_permlane16_swap_b32 v9, v11\nv_add_f32 v8, v8, v10\nv_add_f32 v9, v9, v11")
    a("v_cvt_pk_bf16_f32 v8, v8, v9\nv_mov_b32 v12, v8\nv_permlane32_swap_b32 v8, v12")
    a("v_and_b32 v9, 0xffff0000, v8\nv_lshlrev_b32 v8, 16, v8\nv_add_f32 v8, v8, v14\nv_add_f32 v9, v9, v15")
    a("v_and_b32 v13, 0xffff0000, v12\nv_lshlrev_b32 v12, 16, v12")
    a("v_cvt_pk_bf16_f32 v8, v8, v9\nv_and_b32 v9, 0xffff0000, v8\nv_lshlrev_b32 v8, 16, v8\nv_add_f32 v8, v8, v12\nv_add_f32 v9, v9, v13")
    a("v_cvt_pk_bf16_f32 v8, v8, v9")
    a("s_mov_b64 exec, 15\nbuffer_store_dword v8, v31, s[20:23], s49 offen")
    a("s_cmp_lg_u32 s2, 0\ns_cbranch_scc1 .Lbulk_end")
    a("s_mov_b64 exec, 1\nv_mov_b32 v9, s26\nv_mov_b32 v1, 0\nbuffer_store_dword v9, v1, s[12:15], 0 offen sc1")
    a(".Lbulk_end:")
    stamp(10)
    flush_stamps(range(1, 11))
    a("s_endpgm")

    a(".Laux:\ns_setprio 3")
    W1 = 32
    W2 = 72
    XF = 8
    XC = 16
    G = 96
    AOP = 24
    ACC = 112
    Z = 120
    H = 2
    a("""
    s_cmp_lt_u32 s3, 3
    s_cbranch_scc1 .Laux_q
    s_lshr_b32 s52, s24, 3
    s_lshl_b32 s52, s52, 1
    s_sub_u32 s53, s3, 3
    s_add_u32 s52, s52, s53
    s_mul_i32 s48, s52, 80
    s_and_b32 s53, s24, 3
    s_mul_i32 s53, s53, 6
    s_add_u32 s53, s53, s25
    s_lshl_b32 s49, s53, 7
    s_movk_i32 s50, 3072
    s_mul_i32 s51, s52, 24576
    s_lshl_b32 s53, s53, 9
    s_add_u32 s51, s51, s53
    s_bfe_u32 s53, s24, 0x10002
    s_mul_i32 s54, s53, 12288
    s_add_u32 s51, s51, s54
    s_add_u32 s51, s51, %d
    s_waitcnt lgkmcnt(0)
    s_cmp_eq_u32 s53, 0
    s_cselect_b32 s4, s76, s78
    s_cselect_b32 s5, s77, s79
    s_mov_b32 s6, 1966080
    s_branch .Laux_p
    .Laux_q:
    s_mul_i32 s48, s25, 80
    s_mul_i32 s49, s24, 384
    s_lshl_b32 s53, s3, 7
    s_add_u32 s49, s49, s53
    s_movk_i32 s50, 12288
    s_mul_i32 s51, s24, 12288
    s_mul_i32 s52, s25, 1536
    s_add_u32 s51, s51, s52
    s_lshl_b32 s53, s3, 9
    s_add_u32 s51, s51, s53
    s_add_u32 s51, s51, %d
    s_waitcnt lgkmcnt(0)
    s_mov_b32 s4, s70
    s_mov_b32 s5, s71
    s_mov_b32 s6, 7864320
    .Laux_p:
    s_mov_b32 s7, 0x00020000
    s_load_dword s26, s[86:87], 0
    """ % (WS_GU, WS_Q))
    srd(16, 64, 1280)
    a("s_lshl_b32 s55, s24, 1\ns_add_u32 s55, s55, s25\ns_sub_u32 s55, s55, 6\ns_mul_i32 s56, s55, 24")
    a("s_cmp_lt_u32 s3, 3\ns_cbranch_scc1 .Laux_s1\ns_cmp_ge_u32 s25, 6\ns_cbranch_scc1 .Laux_s1skip")
    a(".Laux_s1:")
    a("v_lshlrev_b32 v1, 2, v0")
    for j in range(5): a("buffer_load_dword v%d, v1, s[16:19], 0 offen offset:%d" % (XF + j, 256 * j))
    a("v_mul_u32_u24 v3, 20, v4\ns_lshl_b32 s52, s48, 1")
    a("buffer_load_dwordx4 v[%d:%d], v3, s[16:19], s52 offen\nbuffer_load_dword v%d, v3, s[16:19], s52 offen offset:16" % (XC, XC + 3, XC + 4))
    a("s_mul_i32 s52, s50, 10\nv_mul_lo_u32 v6, v4, s52\nv_lshl_add_u32 v6, v5, 4, v6\ns_mul_i32 s52, s48, s50\ns_add_u32 s52, s52, s49")
    for t in range(10):
        a("buffer_load_dwordx4 v[%d:%d], v6, s[4:7], s52 offen%s" % (W1 + 4 * t, W1 + 4 * t + 3, NT))
        if t < 9: a("s_add_u32 s52, s52, s50")
    a(".Laux_s1skip:")
    srd(8, 72, 7864320); srd(12, 86, 268435456); srd(20, 80, 1966080)
    zero_stamps()
    masks()
    a("v_mul_u32_u24 v7, 1280, v4\nv_lshl_add_u32 v7, v5, 4, v7")
    a("v_mov_b32 v%d, 0\nv_mov_b32 v%d, 0\nv_mov_b32 v%d, 0\nv_mov_b32 v%d, 0\nv_mov_b32 v%d, 1" % (Z, Z + 1, Z + 2, Z + 3, Z + 4))
    a("ds_write_b128 v%d, v[%d:%d] offset:%d" % (Z, Z, Z + 3, L_FLAG))
    nonce()
    a("s_barrier")
    a("s_cmp_lt_u32 s3, 3\ns_cbranch_scc1 .Laux_ln\ns_cmp_ge_u32 s25, 6\ns_cbranch_scc1 .Laux_pub_done")
    a(".Laux_ln:\ns_waitcnt vmcnt(10)")
    stamp(1)
    def stage2_loads(srdb, rowbase_sgpr):
        a("s_mul_i32 s52, s%d, 1280\ns_lshl_b32 s53, s3, 8\ns_add_u32 s52, s52, s53" % rowbase_sgpr)
        for t in range(3):
            for ln in range(2):
                r = W2 + 8 * t + 4 * ln
                a("buffer_load_dwordx4 v[%d:%d], v7, s[%d:%d], s52 offen offset:%d%s" % (r, r + 3, srdb, srdb + 3, 128 * ln, NT))
            if t < 2: a("s_add_u32 s52, s52, 10240")
    U = 96
    for j in range(5): a("v_lshlrev_b32 v%d, 16, v%d\nv_and_b32 v%d, 0xffff0000, v%d" % (U + 2 * j, XF + j, U + 2 * j + 1, XF + j))
    a("v_add_f32 v13, v%d, v%d" % (U, U + 1))
    for j in range(2, 10): a("v_add_f32 v13, v13, v%d" % (U + j))
    redall("v_add_f32", [(13, 14)])
    a("v_mul_f32 v13, 0x3acccccd, v13")
    for j in range(10): a("v_sub_f32 v%d, v%d, v13" % (U + j, U + j))
    a("v_mul_f32 v14, v%d, v%d" % (U, U))
    for j in range(1, 10): a("v_fma_f32 v14, v%d, v%d, v14" % (U + j, U + j))
    redall("v_add_f32", [(14, 15)])
    a("v_mul_f32 v14, 0x3acccccd, v14")
    rbf(14, 14); a("v_add_f32 v14, 0x3727c5ac, v14"); rbf(14, 14)
    a("v_sqrt_f32 v14, v14"); rbf(14, 14); a("v_rcp_f32 v14, v14")
    rbf(13, 13)
    for j in range(5): a("v_lshlrev_b32 v%d, 16, v%d\nv_and_b32 v%d, 0xffff0000, v%d" % (U + 2 * j, XC + j, U + 2 * j + 1, XC + j))
    for j in range(10):
        a("v_sub_f32 v%d, v%d, v13" % (U + j, U + j)); rbf(U + j, U + j); a("v_mul_f32 v%d, v%d, v14" % (U + j, U + j))
    stamp(2)
    for t in range(10):
        op = AOP + 4 * (t & 1)
        operand(op, U + t, H, 3)
        a("s_waitcnt vmcnt(%d)" % (9 - t))
        mfma(ACC, op, W1 + 4 * t, t == 0)
    a("""
    v_lshlrev_b32 v1, 6, v5
    v_bfe_u32 v3, v0, 4, 1
    v_lshl_add_u32 v1, v3, 5, v1
    v_bfe_u32 v3, v0, 3, 1
    v_lshl_add_u32 v1, v3, 4, v1
    v_bfe_u32 v3, v0, 5, 1
    v_lshl_add_u32 v1, v3, 3, v1
    """)
    a("v_mov_b32 v15, s26")
    fold1(ACC, 14)
    a("buffer_store_dwordx2 v[14:15], v1, s[12:15], s51 offen sc1")
    stamp(3)
    a(".Laux_pub_done:")
    a("s_cmp_lt_u32 s25, 6\ns_cbranch_scc1 .Laux_nowdl")
    stage2_loads(20, 56)
    a(".Laux_nowdl:")
    a("s_cmp_ge_u32 s3, 3\ns_cbranch_scc1 .Laux_qdone")
    a("v_lshlrev_b32 v1, 3, v0\ns_mul_i32 s52, s24, 12288\ns_lshl_b32 s53, s3, 9\ns_add_u32 s52, s52, s53\ns_add_u32 s52, s52, %d\ns_add_u32 s53, s52, 3072\ns_add_u32 s54, s52, 6144\ns_add_u32 s57, s52, 9216" % WS_Q)
    so = [52, 53, 54, 57]
    lwait(F_PROG, G1, Z, 3)
    poll(["buffer_load_dwordx2 v[%d:%d], v1, s[12:15], s%d offen offset:%d sc1" % (G + 2 * p, G + 2 * p + 1, so[p // 2], 1536 * (p & 1)) for p in range(8)], [G + 2 * p + 1 for p in range(8)], 0)
    for p in range(1, 8): a("v_add_f32 v%d, v%d, v%d" % (G, G, G + 2 * p))
    a("v_cvt_pk_bf16_f32 v%d, v%d, v%d\nv_lshlrev_b32 v1, 1, v0\ns_lshl_b32 s53, s3, 7\nv_add_u32 v1, s53, v1\nds_write_b16 v1, v%d offset:%d" % (G, G, G, G, L_Q))
    a("s_waitcnt lgkmcnt(0)\ns_mov_b64 exec, 1\nds_add_u32 v%d, v%d offset:%d\ns_mov_b64 exec, -1" % (Z, Z + 4, F_QRDY))
    stamp(4)
    a(".Laux_qdone:")
    a("s_cmp_lt_u32 s25, 6\ns_cbranch_scc1 .Laux_wddone")
    a("v_mul_u32_u24 v1, 24576, v5\nv_lshl_add_u32 v1, v4, 3, v1\ns_lshl_b32 s52, s56, 3\ns_add_u32 s52, s52, %d\ns_add_u32 s53, s52, 12288" % WS_GU)
    lwait(F_PROG, G3, Z, 3)
    poll(["buffer_load_dwordx2 v[%d:%d], v1, s[12:15], s%d offen offset:%d sc1" % (G + 2 * i, G + 2 * i + 1, 52 + i // 3, 64 * (i % 3)) for i in range(6)], [G + 2 * i + 1 for i in range(6)], 1)
    red8("v_add_f32", [G + 2 * i for i in range(6)])
    for i in range(6): rbf(G + 2 * i, G + 2 * i)
    for t in range(3):
        g, u = G + 2 * t, G + 6 + 2 * t
        a("v_mul_f32 v%d, 0xbfb8aa3b, v%d\nv_exp_f32 v%d, v%d\nv_add_f32 v%d, 1.0, v%d\nv_rcp_f32 v%d, v%d" % (g, g, g, g, g, g, g, g))
        rbf(g, g)
        a("v_mul_f32 v%d, v%d, v%d" % (g, g, u))
    def stage2_addr(rs_log2, region, prod_sgpr):
        a("v_bfe_u32 v3, v0, 5, 1\nv_lshl_add_u32 v18, v3, 3, v5\nv_lshlrev_b32 v18, %d, v18\nv_bfe_u32 v3, v0, 4, 1\nv_lshl_add_u32 v18, v3, 5, v18\nv_bfe_u32 v3, v0, 3, 1\nv_lshl_add_u32 v18, v3, 4, v18" % rs_log2)
        a("s_lshl_b32 s60, s3, %d\ns_lshl_b32 s53, s%d, 6\ns_add_u32 s60, s60, s53\ns_add_u32 s60, s60, %d" % (rs_log2 + 4, prod_sgpr, region))
        a("v_mov_b32 v21, s26\nv_mov_b32 v23, s26")
    def stage2():
        for t in range(3):
            op = AOP + 4 * (t & 1)
            operand(op, G + 2 * t, H, 3)
            mfma(ACC, op, W2 + 8 * t, t == 0)
            mfma(ACC + 4, op, W2 + 8 * t + 4, t == 0)
        for r in range(4): a("v_permlane32_swap_b32 v%d, v%d" % (ACC + r, ACC + 4 + r))
        X, Y = ACC, ACC + 4
        dpp("v_add_f32", 20, Y + 0, X + 0, "row_ror:8", "0x3")
        dpp("v_add_f32", 22, Y + 1, X + 1, "row_ror:8", "0x3")
        dpp("v_add_f32", 20, X + 2, Y + 2, "row_ror:8", "0xc")
        dpp("v_add_f32", 22, X + 3, Y + 3, "row_ror:8", "0xc")
        a("buffer_store_dwordx4 v[20:23], v18, s[12:15], s60 offen sc1")
    stage2_addr(12, WS_B, 55)
    stage2()
    stamp(5)
    a(".Laux_wddone:")
    a("s_cmp_lg_u32 s3, 0\ns_cbranch_scc1 .Laux_s2")
    a("v_lshlrev_b32 v1, 4, v0\ns_lshl_b32 s52, s24, 10\ns_add_u32 s52, s52, %d" % WS_ST)
    lwait(F_PROG, G2, Z, 3)
    stamp(6)
    poll(["buffer_load_dwordx4 v[%d:%d], v1, s[12:15], s52 offen sc1" % (G, G + 3)], [G + 1, G + 3], 3)
    a("v_mov_b32 v12, v%d" % G)
    redall("v_max_f32", [(12, 14)])
    a("v_sub_f32 v13, v%d, v12\nv_mul_f32 v13, %s, v13\nv_exp_f32 v13, v13\nv_mul_f32 v13, v13, v%d" % (G, LOG2E, G + 2))
    redall("v_add_f32", [(13, 14)])
    a("v_rcp_f32 v13, v13\ns_mov_b64 exec, 1\nds_write_b64 v%d, v[12:13] offset:%d\ns_waitcnt lgkmcnt(0)\nds_write_b32 v%d, v%d offset:%d\ns_mov_b64 exec, -1" % (Z, L_ST, Z, Z + 4, F_STRDY))
    a(".Laux_s2:")
    stamp(7)
    a("s_mul_i32 s56, s24, 192\ns_mul_i32 s52, s25, 24\ns_add_u32 s56, s56, s52")
    a("v_lshlrev_b32 v6, 2, v0\ns_lshl_b32 s53, s3, 8\nv_add_u32 v6, s53, v6")
    a("v_lshlrev_b32 v16, 3, v0\ns_mul_i32 s54, s24, 12288\ns_add_u32 s54, s54, %d\ns_mul_i32 s52, s25, 1536\ns_add_u32 s57, s54, s52\ns_lshl_b32 s53, s3, 9\ns_add_u32 s57, s57, s53" % WS_O)
    a("v_mul_u32_u24 v17, 1536, v5\nv_lshl_add_u32 v17, v4, 3, v17\ns_mul_i32 s52, s25, 192\ns_add_u32 s54, s54, s52")
    a("v_mov_b32 v15, s26")
    stage2_addr(14, WS_A, 2)
    lwait(F_WOGO, CW, Z, 3)
    stage2_loads(8, 56)
    stamp(8)
    a("s_barrier")
    a("s_cmp_ge_u32 s3, 3\ns_cbranch_scc1 .Laux_og")
    for k in range(4): a("ds_read2st64_b32 v[%d:%d], v6 offset0:%d offset1:%d" % (G + 2 * k, G + 2 * k + 1, L_PART // 256 + 6 * k, L_PART // 256 + 6 * k + 3))
    a("s_waitcnt lgkmcnt(0)")
    for k in range(4): a("v_add_f32 v%d, v%d, v%d" % (G + 2 * k, G + 2 * k, G + 2 * k + 1))
    a("v_add_f32 v%d, v%d, v%d\nv_add_f32 v%d, v%d, v%d\nv_add_f32 v14, v%d, v%d" % (G, G, G + 2, G + 4, G + 4, G + 6, G, G + 4))
    a("buffer_store_dwordx2 v[14:15], v16, s[12:15], s57 offen sc1")
    a(".Laux_og:")
    stamp(9)
    poll(["buffer_load_dwordx2 v[%d:%d], v17, s[12:15], s54 offen offset:%d sc1" % (G + 2 * t, G + 2 * t + 1, 64 * t) for t in range(3)], [G + 1, G + 3, G + 5], 5)
    stamp(10)
    red8("v_add_f32", [G, G + 2, G + 4])
    stage2()
    stamp(11)
    a("s_cmp_ge_u32 s2, %d\ns_cbranch_scc1 .Laux_end\ns_barrier" % NRED)
    a(".Laux_end:")
    flush_stamps(range(1, 12))
    a(".Lend:\ns_endpgm")
    a.l, n = hazard.fix(a.l)
    return a.text(256, 832, LDS_BYTES, 128)

if __name__ == "__main__":
    out = sys.argv[1]
    kw = dict(x.split("=") for x in sys.argv[2:])
    kw = {k: int(v) for k, v in kw.items()}
    open(out, "w").write(gen(**kw))
```

```python
import sys
from asmlib import *
import hazard

WS_Q, WS_GU, WS_ST, WS_O, WS_B, WS_A = 0x10000, 0x80000, 0xC0000, 0x100000, 0x180000, 0x200000
L_Q, L_ST, L_FLAG, L_PART, L_RED, L_REDB = 0, 384, 448, 512, 6656, 6912
L_XN, L_H, L_OT = 7168, 8512, 8576
F_PROG, F_QRDY, F_STRDY, F_WOGO, F_HRDY = L_FLAG, L_FLAG + 4, L_FLAG + 8, L_FLAG + 12, L_FLAG + 16
LDS_BYTES = 8960
SPIN = 40000
LOG2E = "0x3fb8aa3b"
SCALE = "0x3d93cd3a"
M12 = "0x0fff0fff"

def gen(T=4, P1=20, PW=24, CW=34567, G1=12, G3=26, G2=36, stamps=0, NRED=80, SLP=0, dbgst=0, pol=0, QA=88, QB=56):
    a = Asm()
    NT = [" nt", "", " sc1 nt", " sc0 sc1 nt", " sc1", " sc0 sc1", " sc0 nt"][pol]
    assert 6 * QA + 2 * QB == 640 and QA % 8 == 0 and QB % 8 == 0
    NT1 = max(QA, QB, 80) // 8
    def stamp(k):
        if stamps: a("s_memrealtime s[%d:%d]" % (64 + 2 * k - 2, 64 + 2 * k - 1))
    def flush_stamps(ks):
        if not stamps: return
        a("s_waitcnt lgkmcnt(0)\ns_mov_b64 exec, 1\nv_mov_b32 v2, 0\ns_lshl_b32 s40, s2, 10\ns_lshl_b32 s41, s3, 6\ns_add_u32 s40, s40, s41\ns_add_u32 s40, s40, %d" % STAMP_OFF)
        for k in [0] + list(ks):
            r = 88 if k == 0 else 64 + 2 * k - 2
            a("v_mov_b32 v3, s%d\nbuffer_store_dword v3, v2, s[12:15], s40 offen offset:%d" % (r, 4 * k))
        a("v_mov_b32 v3, s58\nbuffer_store_dword v3, v2, s[12:15], s40 offen offset:60")
        a("v_mov_b32 v3, s59\nbuffer_store_dword v3, v2, s[12:15], s40 offen offset:56")
    def zero_stamps():
        if stamps:
            a("s_mov_b32 s58, 0\ns_mov_b32 s59, 0")
            for k in range(1, 12): a("s_mov_b32 s%d, 0" % (64 + 2 * k - 2))
    def dpp(op, d, s0, s1, ctl, bank="0xf"):
        a("%s_dpp v%d, v%d, v%d %s row_mask:0xf bank_mask:%s" % (op, d, s0, s1, ctl, bank))
    def red8(op, regs_):
        for ctl in ("quad_perm:[1,0,3,2]", "quad_perm:[2,3,0,1]", "row_half_mirror"):
            for r in regs_: dpp(op, r, r, r, ctl)
    def redsw(op, pairs, sws):
        for sw in sws:
            for r, t in pairs: a("v_mov_b32 v%d, v%d" % (t, r))
            for r, t in pairs: a("%s v%d, v%d" % (sw, r, t))
            for r, t in pairs: a("%s v%d, v%d, v%d" % (op, r, r, t))
    def redrows(op, pairs):
        redsw(op, pairs, ("v_permlane16_swap_b32", "v_permlane32_swap_b32"))
    def redhi(op, pairs):
        for r, t in pairs: dpp(op, r, r, r, "row_ror:8")
        redrows(op, pairs)
    def redall(op, pairs):
        red8(op, [r for r, t in pairs]); redhi(op, pairs)
    def rbf(d, s):
        a("v_cvt_pk_bf16_f32 v%d, v%d, v%d\nv_lshlrev_b32 v%d, 16, v%d" % (d, s, s, d, d))
    def onehot(dst, tmp):
        for j in range(4): a("v_cndmask_b32 v%d, 0, v%d, s[%d:%d]" % (dst + j, tmp, 32 + 2 * j, 33 + 2 * j))
    def operand(dst, c, H, tmp):
        a("v_cvt_pk_bf16_f32 v%d, v%d, v%d\nv_and_b32 v%d, v%d, v%d" % (tmp, c, c, tmp, tmp, H))
        onehot(dst, tmp)
    def operand16(dst, c, SH):
        a("v_lshlrev_b32 v%d, v%d, v%d" % (c, SH, c))
        onehot(dst, c)
    def mfma(d, A, B, first):
        a("v_mfma_f32_16x16x32_bf16 v[%d:%d], v[%d:%d], v[%d:%d], %s" % (d, d + 3, A, A + 3, B, B + 3, "0" if first else "v[%d:%d]" % (d, d + 3)))
    def fold1(D, out):
        a("v_permlane32_swap_b32 v%d, v%d\nv_permlane32_swap_b32 v%d, v%d" % (D, D + 1, D + 2, D + 3))
        dpp("v_add_f32", out, D + 1, D, "row_ror:8", "0x3")
        dpp("v_add_f32", out, D + 2, D + 3, "row_ror:8", "0xc")
    def poll(loads, tags, errslot):
        L, D = a.label("poll"), a.label("polld")
        a("s_mov_b32 s27, %d" % SPIN)
        a(L + ":")
        for l in loads: a(l)
        if stamps: a("s_add_u32 s59, s59, %d" % (1 << (5 * errslot)))
        a("s_waitcnt vmcnt(0)")
        a("v_cmp_ne_u32 s[40:41], s26, v%d" % tags[0])
        for t in tags[1:]:
            a("v_cmp_ne_u32 s[42:43], s26, v%d\ns_or_b64 s[40:41], s[40:41], s[42:43]" % t)
        a("s_cmp_eq_u64 s[40:41], 0\ns_cbranch_scc1 %s\ns_sub_u32 s27, s27, 1\ns_cbranch_scc0 %s" % (D, L))
        if stamps: a("s_or_b32 s58, s58, %d" % (1 << errslot))
        a(D + ":")
    def lwait(flag, thr, vaddr, vtmp, extra=()):
        L, D = a.label("lw"), a.label("lwd")
        a("s_mov_b32 s27, %d" % (SPIN * 8))
        a(L + ":")
        a("ds_read_b32 v%d, v%d offset:%d" % (vtmp, vaddr, flag))
        for l in extra: a(l)
        a("s_waitcnt lgkmcnt(0)\nv_readfirstlane_b32 s40, v%d\ns_cmp_ge_u32 s40, %s\ns_cbranch_scc1 %s" % (vtmp, thr, D))
        if SLP: a("s_sleep %d" % SLP)
        a("s_sub_u32 s27, s27, 1\ns_cbranch_scc0 %s" % L)
        if stamps: a("s_or_b32 s58, s58, 256")
        a(D + ":")
    def srd(base, ptr, size):
        a("s_mov_b32 s%d, s%d\ns_mov_b32 s%d, s%d\ns_mov_b32 s%d, %d\ns_mov_b32 s%d, 0x00020000" % (base, ptr, base + 1, ptr + 1, base + 2, size, base + 3))
    def nonce():
        a("s_waitcnt lgkmcnt(0)\ns_mul_i32 s26, s26, 0x19660d\ns_add_u32 s26, s26, 0x3c6ef35f")
    def masks():
        for j, m in enumerate(("0x03030303", "0x0c0c0c0c", "0x30303030", "0xc0c0c0c0")):
            a("s_mov_b32 s%d, %s\ns_mov_b32 s%d, %s" % (32 + 2 * j, m, 33 + 2 * j, m))
        a("v_and_b32 v2, 1, v0\nv_lshlrev_b32 v2, 4, v2")
    a("s_cmp_ge_u32 s2, 256\ns_cbranch_scc1 .Lend")
    a("s_load_dwordx16 s[64:79], s[0:1], 0\ns_load_dwordx8 s[80:87], s[0:1], 64")
    if stamps: a("s_memrealtime s[88:89]")
    a("""
    v_lshrrev_b32 v1, 6, v0
    v_and_b32 v0, 63, v0
    v_readfirstlane_b32 s3, v1
    s_and_b32 s24, s2, 7
    s_lshl_b32 s24, s24, 2
    s_bfe_u32 s25, s2, 0x20003
    s_or_b32 s24, s24, s25
    s_lshr_b32 s25, s2, 5
    v_lshrrev_b32 v4, 3, v0
    v_and_b32 v5, 7, v0
    s_cmp_lt_u32 s3, 5
    s_cbranch_scc1 .Laux
    """)
    KV = 32
    Q = 8
    SC = 20
    VOFF, H = 1, 2
    OP = 28
    T0, T1, T2, T3 = 3, 4, 5, 6
    TM = 7
    a("""
    v_mul_u32_u24 v1, 384, v4
    v_lshl_add_u32 v1, v5, 4, v1
    s_sub_u32 s48, s3, 5
    s_mul_i32 s28, s24, 1572864
    s_mul_i32 s29, s25, 196608
    s_add_u32 s28, s28, s29
    s_mul_i32 s29, s48, 24576
    s_add_u32 s28, s28, s29
    s_add_u32 s29, s28, 6144
    s_add_u32 s30, s28, 12288
    s_add_u32 s31, s28, 18432
    s_waitcnt lgkmcnt(0)
    """)
    srd(4, 66, 50331648)
    st = dict(n=0, landed=0)
    def need(idx):
        if idx >= st["landed"]:
            a("s_waitcnt vmcnt(%d)" % (st["n"] - 1 - idx)); st["landed"] = idx + 1
    def kvload(throttle=True):
        n = st["n"]; i = n % 24; t, ln = i // 3, i % 3
        if throttle and n >= T: need(n - T)
        r = KV + 4 * i
        a("buffer_load_dwordx4 v[%d:%d], v%d, s[%d:%d], s%d offen offset:%d%s" % (r, r + 3, VOFF, 4 if n < 24 else 8, 7 if n < 24 else 11, 28 + t // 2, 3072 * (t & 1) + 128 * ln, NT))
        st["n"] += 1
        n = st["n"]
        if n in (G1, G2, G3):
            a("s_mov_b64 exec, 1\nv_mov_b32 v%d, 0\nv_mov_b32 v%d, %d\nds_max_u32 v%d, v%d offset:%d\ns_mov_b64 exec, -1" % (OP, OP + 1, n, OP, OP + 1, F_PROG))
        if n == 24 + PW:
            a("s_mov_b64 exec, 1\nv_mov_b32 v%d, 0\nv_mov_b32 v%d, 1\nds_add_u32 v%d, v%d offset:%d\ns_mov_b64 exec, -1" % (OP, OP + 1, OP, OP + 1, F_WOGO))
    for _ in range(T): kvload()
    a("s_load_dword s26, s[86:87], 0")
    srd(8, 68, 50331648); srd(12, 86, 268435456); srd(16, 64, 1280); srd(20, 82, 1280)
    zero_stamps()
    masks()
    a("v_mov_b32 v3, 0xffff\nv_lshlrev_b32 v2, v2, v3")
    a("v_lshlrev_b32 v6, 4, v5")
    a("s_barrier")
    while st["n"] < P1: kvload()
    nonce()
    stamp(1)
    lwait(F_QRDY, "3", 6, T0, ["ds_read_b128 v[%d:%d], v6 offset:%d" % (Q + 4 * ln, Q + 4 * ln + 3, L_Q + 128 * ln) for ln in range(3)])
    stamp(2)
    def qk(t):
        acc = [T0, T1, T2]
        for j in range(4):
            for ln in range(3):
                a("v_dot2_f32_bf16 v%d, v%d, v%d, %s" % (acc[ln], KV + 12 * t + 4 * ln + j, Q + 4 * ln + j, "0" if j == 0 else "v%d" % acc[ln]))
        a("v_add_f32 v%d, v%d, v%d\nv_add_f32 v%d, v%d, v%d" % (T0, T0, T1, T0, T0, T2))
        red8("v_add_f32", [T0])
        rbf(T0, T0)
        a("v_mul_f32 v%d, %s, v%d" % (T0, SCALE, T0))
        rbf(SC + t, T0)
    tq = 0
    while tq < 8:
        did = 0
        while tq < 8 and did < 2 and 3 * tq + 2 < st["landed"]:
            qk(tq); tq += 1; did += 1
        if tq < 8:
            if st["n"] >= 24 and (st["n"] - 24) // 3 >= tq:
                need(3 * tq + 2)
            else:
                kvload()
    a("v_max3_f32 v%d, v%d, v%d, v%d" % (TM, SC, SC + 1, SC + 2))
    a("v_max3_f32 v%d, v%d, v%d, v%d" % (T0, SC + 3, SC + 4, SC + 5))
    a("v_max3_f32 v%d, v%d, v%d, v%d" % (TM, TM, SC + 6, SC + 7))
    a("v_max_f32 v%d, v%d, v%d" % (TM, TM, T0))
    redhi("v_max_f32", [(TM, T0)])
    a("v_mul_f32 v%d, %s, v%d" % (T1, LOG2E, TM))
    a("s_mov_b32 s49, %s" % LOG2E)
    for t in range(8): a("v_fma_f32 v%d, v%d, s49, -v%d" % (SC + t, SC + t, T1))
    for t in range(8): a("v_exp_f32 v%d, v%d" % (SC + t, SC + t))
    a("v_add_f32 v%d, v%d, v%d\nv_add_f32 v%d, v%d, v%d" % (T2, SC, SC + 1, T3, SC + 2, SC + 3))
    a("v_add_f32 v%d, v%d, v%d\nv_add_f32 v%d, v%d, v%d" % (T2, T2, SC + 4, T3, T3, SC + 5))
    a("v_add_f32 v%d, v%d, v%d\nv_add_f32 v%d, v%d, v%d" % (T2, T2, SC + 6, T3, T3, SC + 7))
    S4 = Q
    a("v_add_f32 v%d, v%d, v%d" % (S4 + 2, T2, T3))
    redhi("v_add_f32", [(S4 + 2, T0)])
    a("v_mov_b32 v%d, v%d\nv_mov_b32 v%d, s26\nv_mov_b32 v%d, s26\nv_mov_b32 v%d, 0" % (S4, TM, S4 + 1, S4 + 3, T3))
    a("s_lshl_b32 s50, s24, 10\ns_lshl_b32 s51, s25, 7\ns_add_u32 s50, s50, s51\ns_lshl_b32 s51, s48, 4\ns_add_u32 s50, s50, s51\ns_add_u32 s50, s50, %d" % WS_ST)
    a("s_mov_b64 exec, 1\nbuffer_store_dwordx4 v[%d:%d], v%d, s[12:15], s50 offen sc1\ns_mov_b64 exec, -1" % (S4, S4 + 3, T3))
    nst = st["n"]
    def need2(idx):
        if idx >= st["landed"]:
            a("s_waitcnt vmcnt(%d)" % (st["n"] - 1 - idx + (1 if idx < nst else 0))); st["landed"] = idx + 1
    need = need2
    stamp(3)
    while st["n"] < 48: kvload()
    a("""
    v_and_b32 v1, 7, v0
    v_lshlrev_b32 v1, 5, v1
    v_bfe_u32 v5, v0, 4, 1
    v_lshl_add_u32 v1, v5, 4, v1
    v_bfe_u32 v5, v0, 3, 1
    v_lshl_add_u32 v1, v5, 3, v1
    v_bfe_u32 v5, v0, 5, 1
    v_lshl_add_u32 v1, v5, 2, v1
    s_mul_i32 s49, s48, 768
    v_add_u32 v1, s49, v1
    """)
    stamp(4)
    lwait(F_STRDY, "1", T3, T0, ["ds_read_b64 v[%d:%d], v%d offset:%d" % (T1, T2, T3, L_ST)])
    stamp(5)
    a("v_sub_f32 v%d, v%d, v%d\nv_mul_f32 v%d, %s, v%d\nv_exp_f32 v%d, v%d\nv_mul_f32 v%d, v%d, v%d" % (T0, TM, T1, T0, LOG2E, T0, T0, T0, TM, T0, T2))
    for t in range(8):
        a("v_mul_f32 v%d, v%d, v%d" % (T0, SC + t, TM))
        operand(OP, T0, H, T1)
        for ln in range(3):
            need(24 + 3 * t + ln)
            mfma(Q + 4 * ln, OP, KV + 12 * t + 4 * ln, t == 0)
    stamp(6)
    for ln in range(3): fold1(Q + 4 * ln, SC + ln)
    for ln in range(3): a("ds_write_b32 v1, v%d offset:%d" % (SC + ln, L_PART + 256 * ln))
    a("s_waitcnt lgkmcnt(0)")
    a("s_barrier")
    stamp(7)
    a("s_cmp_ge_u32 s2, %d\ns_cbranch_scc1 .Lbulk_end" % NRED)
    a("""
    v_and_b32 v31, 3, v0
    v_lshlrev_b32 v31, 4, v31
    s_lshr_b32 s49, s2, 3
    s_lshl_b32 s49, s49, 7
    s_and_b32 s50, s2, 1
    s_lshl_b32 s50, s50, 6
    s_add_u32 s49, s49, s50
    s_and_b32 s50, s2, 6
    s_lshl_b32 s50, s50, 1
    s_add_u32 s49, s49, s50
    buffer_load_dword v30, v31, s[16:19], s49 offen
    """)
    a("v_lshlrev_b32 v1, 3, v0\ns_lshl_b32 s50, s2, 12\ns_lshl_b32 s51, s48, 9\ns_add_u32 s50, s50, s51\ns_add_u32 s50, s50, %d" % WS_B)
    poll(["buffer_load_dwordx2 v[32:33], v1, s[12:15], s50 offen sc1"], [33], 2)
    redhi("v_add_f32", [(32, 10)])
    a("v_lshlrev_b32 v3, 2, v0\ns_lshl_b32 s51, s48, 5\nv_add_u32 v3, s51, v3")
    a("s_mov_b64 exec, 0xff\nds_write_b32 v3, v32 offset:%d\ns_mov_b64 exec, -1" % L_REDB)
    a("v_lshlrev_b32 v1, 4, v0\ns_lshl_b32 s50, s2, 14\ns_lshl_b32 s51, s48, 11\ns_add_u32 s50, s50, s51\ns_add_u32 s50, s50, %d" % WS_A)
    a("v_lshlrev_b32 v3, 3, v0\ns_lshl_b32 s51, s48, 5\nv_add_u32 v3, s51, v3")
    a("s_barrier")
    stamp(8)
    poll(["buffer_load_dwordx4 v[32:35], v1, s[12:15], s50 offen sc1", "buffer_load_dwordx4 v[36:39], v1, s[12:15], s50 offen offset:1024 sc1"], [33, 35, 37, 39], 4)
    stamp(9)
    a("v_add_f32 v8, v32, v36\nv_add_f32 v9, v34, v38")
    for r in (8, 9): dpp("v_add_f32", r, r, r, "row_ror:4")
    redhi("v_add_f32", [(8, 10), (9, 11)])
    a("s_mov_b64 exec, 15\nds_write_b64 v3, v[8:9] offset:%d\ns_mov_b64 exec, -1\ns_waitcnt lgkmcnt(0)" % L_RED)
    a("s_barrier")
    a("s_cmp_lg_u32 s48, 0\ns_cbranch_scc1 .Lbulk_end")
    a("v_lshlrev_b32 v3, 3, v0\nds_read_b64 v[8:9], v3 offset:%d" % L_RED)
    a("v_lshlrev_b32 v14, 16, v30\nv_and_b32 v15, 0xffff0000, v30\ns_waitcnt lgkmcnt(0)")
    for ctl in ("row_ror:4", "row_ror:8"):
        for r in (8, 9): dpp("v_add_f32", r, r, r, ctl)
    a("v_mov_b32 v10, v8\nv_mov_b32 v11, v9\nv_permlane16_swap_b32 v8, v10\nv_permlane16_swap_b32 v9, v11\nv_add_f32 v8, v8, v10\nv_add_f32 v9, v9, v11")
    a("v_cvt_pk_bf16_f32 v8, v8, v9\nv_mov_b32 v12, v8\nv_permlane32_swap_b32 v8, v12")
    a("v_and_b32 v9, 0xffff0000, v8\nv_lshlrev_b32 v8, 16, v8\nv_add_f32 v8, v8, v14\nv_add_f32 v9, v9, v15")
    a("v_and_b32 v13, 0xffff0000, v12\nv_lshlrev_b32 v12, 16, v12")
    a("v_cvt_pk_bf16_f32 v8, v8, v9\nv_and_b32 v9, 0xffff0000, v8\nv_lshlrev_b32 v8, 16, v8\nv_add_f32 v8, v8, v12\nv_add_f32 v9, v9, v13")
    a("v_cvt_pk_bf16_f32 v8, v8, v9")
    a("s_mov_b64 exec, 15\nbuffer_store_dword v8, v31, s[20:23], s49 offen")
    a("s_cmp_lg_u32 s2, 0\ns_cbranch_scc1 .Lbulk_end")
    a("s_mov_b64 exec, 1\nv_mov_b32 v9, s26\nv_mov_b32 v1, 0\nbuffer_store_dword v9, v1, s[12:15], 0 offen sc1")
    a(".Lbulk_end:")
    stamp(10)
    flush_stamps(range(1, 11))
    a("s_endpgm")

    a(".Laux:\ns_setprio 3")
    W1 = 32
    W2 = 76
    XF = 8
    C = 13
    G = 100
    AOP = 24
    ACC = 116
    Z = 124
    ONE = 127
    SH = 2
    a("v_mov_b32 v%d, 0\nv_mov_b32 v%d, 0\nv_mov_b32 v%d, 0\nv_mov_b32 v%d, 1\nv_lshlrev_b32 v1, 2, v0\nv_and_b32 v3, 60, v1" % (Z, Z + 1, Z + 2, ONE))
    a("ds_write_b32 v3, v%d offset:%d\nds_write_b32 v3, v%d offset:%d" % (Z, L_FLAG, Z, L_XN + 1280))
    a("""
    s_cmp_lt_u32 s3, 3
    s_cbranch_scc1 .Laux_q
    s_lshr_b32 s52, s24, 3
    s_lshl_b32 s52, s52, 1
    s_sub_u32 s53, s3, 3
    s_add_u32 s52, s52, s53
    s_mul_i32 s48, s52, 80
    s_and_b32 s53, s24, 3
    s_mul_i32 s53, s53, 6
    s_add_u32 s53, s53, s25
    s_lshl_b32 s49, s53, 7
    s_movk_i32 s50, 3072
    s_mul_i32 s51, s52, 12288
    s_lshl_b32 s53, s53, 9
    s_add_u32 s51, s51, s53
    s_bfe_u32 s53, s24, 0x10002
    s_mul_i32 s54, s53, 98304
    s_add_u32 s51, s51, s54
    s_add_u32 s51, s51, %d
    s_add_u32 s6, s48, 80
    s_waitcnt lgkmcnt(0)
    s_cmp_eq_u32 s53, 0
    s_cselect_b32 s4, s76, s78
    s_cselect_b32 s5, s77, s79
    s_branch .Laux_p
    .Laux_q:
    s_mul_i32 s48, s25, %d
    s_add_u32 s6, s48, %d
    s_mul_i32 s52, s25, %d
    s_add_u32 s52, s52, %d
    s_add_u32 s53, s52, %d
    s_cmp_ge_u32 s25, 6
    s_cselect_b32 s48, s52, s48
    s_cselect_b32 s6, s53, s6
    s_mul_i32 s49, s24, 384
    s_lshl_b32 s53, s3, 7
    s_add_u32 s49, s49, s53
    s_movk_i32 s50, 12288
    s_mul_i32 s51, s24, 12288
    s_mul_i32 s52, s25, 1536
    s_add_u32 s51, s51, s52
    s_lshl_b32 s53, s3, 9
    s_add_u32 s51, s51, s53
    s_add_u32 s51, s51, %d
    s_waitcnt lgkmcnt(0)
    s_mov_b32 s4, s70
    s_mov_b32 s5, s71
    .Laux_p:
    s_mul_i32 s6, s6, s50
    s_mov_b32 s7, 0x00020000
    """ % (WS_GU, QA, QA, QB, 6 * QA - 6 * QB, QB, WS_Q))
    srd(16, 64, 1280)
    a("s_cmp_lt_u32 s3, 3\ns_cbranch_scc1 .Laux_s1\ns_cmp_ge_u32 s25, 6\ns_cbranch_scc1 .Laux_s1skip")
    a(".Laux_s1:")
    for j in range(5): a("buffer_load_dword v%d, v1, s[16:19], 0 offen offset:%d" % (XF + j, 256 * j))
    a("v_mul_lo_u32 v6, v4, s50\nv_lshl_add_u32 v6, v5, 4, v6\ns_mul_i32 s52, s48, s50\ns_add_u32 s52, s52, s49\ns_lshl_b32 s50, s50, 3")
    for t in range(NT1):
        a("buffer_load_dwordx4 v[%d:%d], v6, s[4:7], s52 offen%s" % (W1 + 4 * t, W1 + 4 * t + 3, NT))
        if t < NT1 - 1: a("s_add_u32 s52, s52, s50")
    a(".Laux_s1skip:")
    a("s_barrier")
    a("s_load_dword s26, s[86:87], 0")
    srd(8, 72, 7864320); srd(12, 86, 268435456); srd(20, 80, 1966080)
    zero_stamps()
    masks()
    a("s_lshl_b32 s55, s24, 1\ns_add_u32 s55, s55, s25\ns_sub_u32 s55, s55, 6")
    a("s_cmp_lt_u32 s3, 3\ns_cbranch_scc1 .Laux_ln\ns_cmp_ge_u32 s25, 6\ns_cbranch_scc1 .Laux_pub_skip")
    a(".Laux_ln:\ns_waitcnt vmcnt(%d)" % NT1)
    stamp(1)
    U = G
    for j in range(5): a("v_lshlrev_b32 v%d, 16, v%d\nv_and_b32 v%d, 0xffff0000, v%d" % (U + 2 * j, XF + j, U + 2 * j + 1, XF + j))
    a("v_add_f32 v13, v%d, v%d" % (U, U + 1))
    for j in range(2, 10): a("v_add_f32 v13, v13, v%d" % (U + j))
    redall("v_add_f32", [(13, 14)])
    a("v_mul_f32 v13, 0x3acccccd, v13")
    a("v_sub_f32 v15, v%d, v13\nv_mul_f32 v14, v15, v15" % U)
    for j in range(1, 10): a("v_sub_f32 v15, v%d, v13\nv_fma_f32 v14, v15, v15, v14" % (U + j))
    redall("v_add_f32", [(14, 15)])
    a("v_mul_f32 v14, 0x3acccccd, v14")
    rbf(14, 14); a("v_add_f32 v14, 0x3727c5ac, v14"); rbf(14, 14)
    a("v_sqrt_f32 v14, v14"); rbf(14, 14); a("v_rcp_f32 v14, v14")
    rbf(13, 13)
    for j in range(10): a("v_sub_f32 v%d, v%d, v13" % (U + j, U + j))
    for j in range(5):
        a("v_cvt_pk_bf16_f32 v%d, v%d, v%d" % (XF + j, U + 2 * j, U + 2 * j + 1))
        a("v_lshlrev_b32 v%d, 16, v%d\nv_and_b32 v%d, 0xffff0000, v%d" % (U + 2 * j, XF + j, U + 2 * j + 1, XF + j))
        a("v_mul_f32 v%d, v%d, v14\nv_mul_f32 v%d, v%d, v14" % (U + 2 * j, U + 2 * j, U + 2 * j + 1, U + 2 * j + 1))
        a("v_cvt_pk_bf16_f32 v%d, v%d, v%d" % (XF + j, U + 2 * j, U + 2 * j + 1))
        a("ds_write_b32 v1, v%d offset:%d" % (XF + j, L_XN + 256 * j))
    a("v_add_lshl_u32 v3, v4, s48, 1")
    for t in range(NT1): a("ds_read_u16 v%d, v3 offset:%d" % (C + t, L_XN + 16 * t))
    nonce()
    stamp(2)
    for t in range(NT1):
        op = AOP + 4 * (t & 1)
        operand16(op, C + t, SH)
        a("s_waitcnt vmcnt(%d)" % (NT1 - 1 - t))
        mfma(ACC, op, W1 + 4 * t, t == 0)
    a("v_lshlrev_b32 v1, 4, v0\nv_mov_b32 v9, s26\nv_mov_b32 v11, s26")
    fold1(ACC, 8)
    a("v_permlane32_swap_b32 v8, v10")
    a("s_mov_b32 exec_hi, 0\nbuffer_store_dwordx4 v[8:11], v1, s[12:15], s51 offen sc1\ns_mov_b64 exec, -1")
    stamp(3)
    a("s_branch .Laux_pub_done\n.Laux_pub_skip:")
    nonce()
    a(".Laux_pub_done:")
    def stage2_loads(srdb, voffs, step):
        for t in range(3):
            for ln in range(2):
                r = W2 + 8 * t + 4 * ln
                a("buffer_load_dwordx4 v[%d:%d], v%d, s[%d:%d], s52 offen offset:%d%s" % (r, r + 3, voffs[t], srdb, srdb + 3, 128 * ln, NT))
            if t < 2 and step: a("s_add_u32 s52, s52, %d" % step)
    a("s_cmp_lt_u32 s25, 6\ns_cbranch_scc1 .Laux_nowdl")
    a("s_mul_i32 s56, s55, 24")
    for t in range(3):
        r = 16 + t
        a("v_add_u32 v3, s56, v4\nv_and_b32 v%d, 0xffffffc1, v3\nv_bfe_u32 v6, v3, 1, 3\nv_lshl_or_b32 v%d, v6, 3, v%d\nv_bfe_u32 v6, v3, 4, 2\nv_lshl_or_b32 v%d, v6, 1, v%d" % (r, r, r, r, r))
        a("v_mul_u32_u24 v%d, 1280, v%d\nv_lshl_add_u32 v%d, v5, 4, v%d" % (r, r, r, r))
        if t < 2: a("s_add_u32 s56, s56, 8")
    a("s_lshl_b32 s52, s3, 8")
    stage2_loads(20, [16, 17, 18], 0)
    a(".Laux_nowdl:")
    a("v_lshrrev_b32 v3, 2, v0\nv_and_b32 v6, 3, v0\nv_lshlrev_b32 v6, 4, v6\nv_lshl_add_u32 v19, v3, 12, v6\nv_lshl_add_u32 v20, v3, 14, v6\nv_lshlrev_b32 v12, 1, v4")
    a("v_and_b32 v13, 15, v0\nv_lshrrev_b32 v14, 4, v0")
    a("s_cmp_ge_u32 s3, 3\ns_cbranch_scc1 .Laux_qdone")
    a("v_and_b32 v1, 31, v0\nv_lshlrev_b32 v1, 4, v1\nv_lshrrev_b32 v3, 5, v0\nv_mul_u32_u24 v3, 1536, v3\nv_add_u32 v1, v1, v3")
    a("s_mul_i32 s52, s24, 12288\ns_lshl_b32 s53, s3, 9\ns_add_u32 s52, s52, s53\ns_add_u32 s52, s52, %d\ns_add_u32 s53, s52, 6144" % WS_Q)
    a("v_lshlrev_b32 v6, 4, v5\nv_bfe_u32 v3, v0, 4, 1\nv_lshl_add_u32 v6, v3, 3, v6\nv_bfe_u32 v3, v0, 3, 1\nv_lshl_add_u32 v6, v3, 2, v6\ns_lshl_b32 s54, s3, 7\nv_add_u32 v6, s54, v6")
    lwait(F_PROG, str(G1), Z, 3)
    poll(["buffer_load_dwordx4 v[%d:%d], v1, s[12:15], s%d offen offset:%d sc1" % (G + 4 * i, G + 4 * i + 3, 52 + i // 2, 3072 * (i & 1)) for i in range(4)], [G + 2 * i + 1 for i in range(8)], 0)
    for e in (0, 2): a("v_add_f32 v%d, v%d, v%d\nv_add_f32 v%d, v%d, v%d" % (G + e, G + e, G + 4 + e, G + 8 + e, G + 8 + e, G + 12 + e))
    for e in (0, 2): a("v_add_f32 v%d, v%d, v%d" % (G + e, G + e, G + 8 + e))
    redsw("v_add_f32", [(G, G + 1), (G + 2, G + 3)], ("v_permlane32_swap_b32",))
    a("v_cvt_pk_bf16_f32 v%d, v%d, v%d\nds_write_b32 v6, v%d offset:%d" % (G, G, G + 2, G, L_Q))
    a("s_waitcnt lgkmcnt(0)\ns_mov_b64 exec, 1\nds_add_u32 v%d, v%d offset:%d\ns_mov_b64 exec, -1" % (Z, ONE, F_QRDY))
    stamp(4)
    a(".Laux_qdone:")
    a("s_cmp_lt_u32 s25, 6\ns_cbranch_scc1 .Laux_wddone")
    a("s_cmp_lg_u32 s3, 3\ns_cbranch_scc1 .Laux_hwait")
    a("v_mul_u32_u24 v1, 12288, v14\nv_lshl_add_u32 v1, v13, 4, v1\ns_mul_i32 s52, s55, 192\ns_add_u32 s52, s52, %d\ns_add_u32 s53, s52, 49152\ns_add_u32 s54, s52, 98304\ns_add_u32 s57, s52, 147456\nv_lshlrev_b32 v6, 2, v13" % WS_GU)
    lwait(F_PROG, str(G3), Z, 3)
    a("s_mov_b32 exec_lo, %s\ns_mov_b32 exec_hi, %s" % (M12, M12))
    poll(["buffer_load_dwordx4 v[%d:%d], v1, s[12:15], s%d offen sc1" % (G + 4 * i, G + 4 * i + 3, [52, 53, 54, 57][i]) for i in range(4)], [G + 2 * i + 1 for i in range(8)], 1)
    for e in (0, 2): a("v_add_f32 v%d, v%d, v%d\nv_add_f32 v%d, v%d, v%d" % (G + e, G + e, G + 4 + e, G + 8 + e, G + 8 + e, G + 12 + e))
    redrows("v_add_f32", [(G, G + 1), (G + 2, G + 3), (G + 8, G + 9), (G + 10, G + 11)])
    for r in (G, G + 2, G + 8, G + 10): rbf(r, r)
    for e in (0, 2):
        g, u = G + e, G + 8 + e
        a("v_mul_f32 v%d, 0xbfb8aa3b, v%d\nv_exp_f32 v%d, v%d\nv_add_f32 v%d, 1.0, v%d\nv_rcp_f32 v%d, v%d" % (g, g, g, g, g, g, g, g))
        rbf(g, g)
        a("v_mul_f32 v%d, v%d, v%d" % (g, g, u))
    a("v_cvt_pk_bf16_f32 v%d, v%d, v%d\nds_write_b32 v6, v%d offset:%d" % (G, G, G + 2, G, L_H))
    a("s_waitcnt lgkmcnt(0)\ns_mov_b64 exec, 1\nds_write_b32 v%d, v%d offset:%d\ns_mov_b64 exec, -1" % (Z, ONE, F_HRDY))
    a(".Laux_hwait:")
    def stage2(vaddr):
        for t in range(3):
            op = AOP + 4 * (t & 1)
            operand16(op, G + t, SH)
            mfma(ACC, op, W2 + 8 * t, t == 0)
            mfma(ACC + 4, op, W2 + 8 * t + 4, t == 0)
        for r in range(4): a("v_permlane32_swap_b32 v%d, v%d" % (ACC + r, ACC + 4 + r))
        X, Y = ACC, ACC + 4
        dpp("v_add_f32", 8, Y + 0, X + 0, "row_ror:8", "0x3")
        dpp("v_add_f32", 10, Y + 1, X + 1, "row_ror:8", "0x3")
        dpp("v_add_f32", 8, X + 2, Y + 2, "row_ror:8", "0xc")
        dpp("v_add_f32", 10, X + 3, Y + 3, "row_ror:8", "0xc")
        a("buffer_store_dwordx4 v[8:11], v%d, s[12:15], s60 offen sc1" % vaddr)
    a("s_lshl_b32 s60, s3, 16\ns_lshl_b32 s53, s55, 6\ns_add_u32 s60, s60, s53\ns_add_u32 s60, s60, %d\nv_mov_b32 v9, s26\nv_mov_b32 v11, s26" % WS_B)
    lwait(F_HRDY, "1", Z, 3, ["ds_read_u16 v%d, v12 offset:%d" % (G + t, L_H + 16 * t) for t in range(3)])
    a("s_waitcnt vmcnt(0)")
    stage2(19)
    stamp(5)
    a(".Laux_wddone:")
    a("s_cmp_lg_u32 s3, 4\ns_cbranch_scc1 .Laux_s2")
    a("v_lshlrev_b32 v1, 4, v0\ns_lshl_b32 s52, s24, 10\ns_add_u32 s52, s52, %d" % WS_ST)
    lwait(F_PROG, str(G2), Z, 3)
    stamp(6)
    poll(["buffer_load_dwordx4 v[%d:%d], v1, s[12:15], s52 offen sc1" % (G, G + 3)], [G + 1, G + 3], 3)
    a("v_mov_b32 v16, v%d" % G)
    redall("v_max_f32", [(16, 18)])
    a("v_sub_f32 v17, v%d, v16\nv_mul_f32 v17, %s, v17\nv_exp_f32 v17, v17\nv_mul_f32 v17, v17, v%d" % (G, LOG2E, G + 2))
    redall("v_add_f32", [(17, 18)])
    a("v_rcp_f32 v17, v17\ns_mov_b64 exec, 1\nds_write_b64 v%d, v[16:17] offset:%d\ns_waitcnt lgkmcnt(0)\nds_write_b32 v%d, v%d offset:%d\ns_mov_b64 exec, -1" % (Z, L_ST, Z, ONE, F_STRDY))
    a(".Laux_s2:")
    stamp(7)
    a("v_mul_u32_u24 v7, 1280, v4\nv_lshl_add_u32 v7, v5, 4, v7")
    a("s_mul_i32 s52, s24, 192\ns_mul_i32 s53, s25, 24\ns_add_u32 s52, s52, s53\ns_mul_i32 s52, s52, 1280\ns_lshl_b32 s53, s3, 8\ns_add_u32 s52, s52, s53")
    a("v_mul_u32_u24 v6, 96, v14\nv_lshl_add_u32 v6, v13, 3, v6\ns_mul_i32 s53, s3, 384\nv_add_u32 v6, s53, v6")
    a("v_lshlrev_b32 v16, 11, v14\nv_lshl_add_u32 v16, v13, 4, v16")
    a("s_lshl_b32 s54, s24, 14\ns_add_u32 s54, s54, %d\ns_lshl_b32 s53, s3, 13\ns_add_u32 s57, s54, s53\ns_lshl_b32 s53, s25, 8\ns_add_u32 s57, s57, s53" % WS_O)
    a("v_lshlrev_b32 v17, 4, v0\ns_lshl_b32 s53, s25, 11\ns_add_u32 s54, s54, s53")
    a("s_lshl_b32 s53, s3, 6\nv_lshl_add_u32 v18, v13, 2, s53\nv_add_u32 v12, s53, v12")
    a("v_mov_b32 v9, s26\nv_mov_b32 v11, s26")
    a("s_lshl_b32 s60, s3, 18\ns_lshl_b32 s53, s2, 6\ns_add_u32 s60, s60, s53\ns_add_u32 s60, s60, %d" % WS_A)
    cw = [int(c) for c in "%05d" % CW]
    a("s_lshl_b32 s53, s3, 2\ns_lshr_b32 s61, 0x%x, s53\ns_and_b32 s61, s61, 15" % sum(c << (4 * i) for i, c in enumerate(cw)))
    lwait(F_WOGO, "s61", Z, 3)
    stage2_loads(8, [7, 7, 7], 10240)
    stamp(8)
    a("s_mov_b32 exec_lo, %s\ns_mov_b32 exec_hi, %s" % (M12, M12))
    a("s_barrier")
    a("s_cmp_ge_u32 s3, 2\ns_cbranch_scc1 .Laux_og")
    for k in range(8): a("ds_read_b64 v[%d:%d], v6 offset:%d" % (G + 2 * k, G + 2 * k + 1, L_PART + 768 * k))
    a("s_waitcnt lgkmcnt(0)")
    for k in range(4): a("v_pk_add_f32 v[%d:%d], v[%d:%d], v[%d:%d]" % (G + 4 * k, G + 4 * k + 1, G + 4 * k, G + 4 * k + 1, G + 4 * k + 2, G + 4 * k + 3))
    for k in range(2): a("v_pk_add_f32 v[%d:%d], v[%d:%d], v[%d:%d]" % (G + 8 * k, G + 8 * k + 1, G + 8 * k, G + 8 * k + 1, G + 8 * k + 4, G + 8 * k + 5))
    a("v_add_f32 v8, v%d, v%d\nv_add_f32 v10, v%d, v%d" % (G, G + 8, G + 1, G + 9))
    a("buffer_store_dwordx4 v[8:11], v16, s[12:15], s57 offen sc1")
    a(".Laux_og:")
    stamp(9)
    poll(["buffer_load_dwordx4 v[%d:%d], v17, s[12:15], s54 offen offset:%d sc1" % (G + 4 * i, G + 4 * i + 3, 1024 * i) for i in range(2)], [G + 1, G + 3, G + 5, G + 7], 5)
    stamp(10)
    a("v_add_f32 v%d, v%d, v%d\nv_add_f32 v%d, v%d, v%d" % (G, G, G + 4, G + 2, G + 2, G + 6))
    redrows("v_add_f32", [(G, G + 1), (G + 2, G + 3)])
    a("v_cvt_pk_bf16_f32 v%d, v%d, v%d\nds_write_b32 v18, v%d offset:%d\ns_mov_b64 exec, -1" % (G + 4, G, G + 2, G + 4, L_OT))
    for t in range(3): a("ds_read_u16 v%d, v12 offset:%d" % (G + t, L_OT + 16 * t))
    a("s_waitcnt lgkmcnt(0)")
    stage2(20)
    stamp(11)
    a("s_cmp_ge_u32 s2, %d\ns_cbranch_scc1 .Laux_end\ns_barrier" % NRED)
    a(".Laux_end:")
    flush_stamps(range(1, 12))
    a(".Lend:\ns_endpgm")
    a.l, n = hazard.fix(a.l)
    return a.text(256, 832, LDS_BYTES, 128)

if __name__ == "__main__":
    out = sys.argv[1]
    kw = dict(x.split("=") for x in sys.argv[2:])
    kw = {k: int(v) for k, v in kw.items()}
    open(out, "w").write(gen(**kw))
```

```python
import sys
from asmlib import *
import hazard

WS_Q, WS_GU, WS_ST, WS_O, WS_B, WS_A = 0x10000, 0x80000, 0xC0000, 0x100000, 0x180000, 0x200000
YD = 0x400000
L_Q, L_ST, L_FLAG, L_PART, L_RED, L_REDB = 0, 384, 448, 512, 8704, 8960
L_XN, L_H, L_WST = 9216, 10560, 10624
F_PROG, F_QRDY, F_STRDY, F_WOGO, F_HRDY, F_STC, F_MODE = [L_FLAG + 4 * i for i in range(7)]
LDS_BYTES = 11136
SPIN = 40000
LOG2E = "0x3fb8aa3b"
SCALE = "0x3d93cd3a"
M12 = "0x0fff0fff"

def gen(T=4, P1=20, PW=8, CW=88888, G1=12, G3=16, G2=36, stamps=0, NRED=80, SLP=0, dbgst=0, pol=0, QA=88, QB=56, TT=48, TTT=24, nodep=0, ack=0, pre=0, abl=0, NS=4, TH=32, NXQ=2, NXO=60, noy=0, aslot=0):
    a = Asm()
    NT = [" nt", "", " sc1 nt", " sc0 sc1 nt", " sc1", " sc0 sc1", " sc0 nt"][pol]
    assert 6 * QA + 2 * QB == 640 and QA % 8 == 0 and QB % 8 == 0
    NT1 = max(QA, QB, 80) // 8
    def stamp(k):
        if stamps: a("s_memrealtime s[%d:%d]" % (64 + 2 * k - 2, 64 + 2 * k - 1))
    def flush_stamps(ks):
        if not stamps: return
        a("s_waitcnt lgkmcnt(0)\ns_mov_b64 exec, 1\nv_mov_b32 v2, 0\ns_lshl_b32 s40, s2, 10\ns_lshl_b32 s41, s3, 6\ns_add_u32 s40, s40, s41\ns_add_u32 s40, s40, %d" % STAMP_OFF)
        for k in [0] + list(ks):
            r = 88 if k == 0 else 64 + 2 * k - 2
            a("v_mov_b32 v3, s%d\nbuffer_store_dword v3, v2, s[12:15], s40 offen offset:%d" % (r, 4 * k))
        a("v_mov_b32 v3, s58\nbuffer_store_dword v3, v2, s[12:15], s40 offen offset:60")
        a("v_mov_b32 v3, s59\nbuffer_store_dword v3, v2, s[12:15], s40 offen offset:56")
    def zero_stamps():
        if stamps:
            a("s_mov_b32 s58, 0\ns_mov_b32 s59, 0")
            for k in range(1, 12): a("s_mov_b32 s%d, 0" % (64 + 2 * k - 2))
    def dpp(op, d, s0, s1, ctl, bank="0xf"):
        a("%s_dpp v%d, v%d, v%d %s row_mask:0xf bank_mask:%s" % (op, d, s0, s1, ctl, bank))
    def red8(op, regs_):
        for ctl in ("quad_perm:[1,0,3,2]", "quad_perm:[2,3,0,1]", "row_half_mirror"):
            for r in regs_: dpp(op, r, r, r, ctl)
    def redsw(op, pairs, sws):
        for sw in sws:
            for r, t in pairs: a("v_mov_b32 v%d, v%d" % (t, r))
            for r, t in pairs: a("%s v%d, v%d" % (sw, r, t))
            for r, t in pairs: a("%s v%d, v%d, v%d" % (op, r, r, t))
    def redrows(op, pairs):
        redsw(op, pairs, ("v_permlane16_swap_b32", "v_permlane32_swap_b32"))
    def redhi(op, pairs):
        for r, t in pairs: dpp(op, r, r, r, "row_ror:8")
        redrows(op, pairs)
    def redall(op, pairs):
        red8(op, [r for r, t in pairs]); redhi(op, pairs)
    def rbf(d, s):
        a("v_cvt_pk_bf16_f32 v%d, v%d, v%d\nv_lshlrev_b32 v%d, 16, v%d" % (d, s, s, d, d))
    def onehot(dst, tmp):
        for j in range(4): a("v_cndmask_b32 v%d, 0, v%d, s[%d:%d]" % (dst + j, tmp, 32 + 2 * j, 33 + 2 * j))
    def operand(dst, c, H, tmp):
        a("v_cvt_pk_bf16_f32 v%d, v%d, v%d\nv_and_b32 v%d, v%d, v%d" % (tmp, c, c, tmp, tmp, H))
        onehot(dst, tmp)
    def operand16(dst, c, SH):
        a("v_lshlrev_b32 v%d, v%d, v%d" % (c, SH, c))
        onehot(dst, c)
    def mfma(d, A, B, first):
        a("v_mfma_f32_16x16x32_bf16 v[%d:%d], v[%d:%d], v[%d:%d], %s" % (d, d + 3, A, A + 3, B, B + 3, "0" if first else "v[%d:%d]" % (d, d + 3)))
    def fold1(D, out):
        a("v_permlane32_swap_b32 v%d, v%d\nv_permlane32_swap_b32 v%d, v%d" % (D, D + 1, D + 2, D + 3))
        dpp("v_add_f32", out, D + 1, D, "row_ror:8", "0x3")
        dpp("v_add_f32", out, D + 2, D + 3, "row_ror:8", "0xc")
    def poll(loads, tags, errslot, vaddr=None, nx=0, vmode=None):
        L, D = a.label("poll"), a.label("polld")
        a("s_mov_b32 s27, %d" % SPIN)
        if vaddr is not None:
            if vmode is None: a("s_mov_b32 s62, %d" % (nx - 1))
            else: a("v_readfirstlane_b32 s62, v%d\ns_cmp_eq_u32 s62, 0\ns_cselect_b32 s63, 0, %d\ns_cselect_b32 s62, %d, 0\nv_xor_b32 v%d, s63, v%d" % (vmode, YD, nx - 1, vaddr, vaddr))
        a(L + ":")
        if stamps and errslot == 5 and not ack: stamp(12)
        for l in loads: a(l)
        if stamps: a("s_add_u32 s59, s59, %d" % (1 << (5 * errslot)))
        a("s_waitcnt vmcnt(0)")
        a("v_cmp_ne_u32 s[40:41], s26, v%d" % tags[0])
        for t in tags[1:]:
            a("v_cmp_ne_u32 s[42:43], s26, v%d\ns_or_b64 s[40:41], s[40:41], s[42:43]" % t)
        if not (nodep >> errslot) & 1:
            a("s_cmp_eq_u64 s[40:41], 0\ns_cbranch_scc1 %s" % D)
            if vaddr is not None:
                a("s_sub_u32 s62, s62, 1\ns_cbranch_scc0 %s\ns_mov_b32 s62, 0\nv_xor_b32 v%d, %d, v%d" % (L, vaddr, YD, vaddr))
            a("s_sub_u32 s27, s27, 1\ns_cbranch_scc0 %s" % L)
        if stamps: a("s_or_b32 s58, s58, %d" % (1 << errslot))
        a(D + ":")
    def lwait(flag, thr, vaddr, vtmp, extra=()):
        L, D = a.label("lw"), a.label("lwd")
        if nodep & 64 and flag in (F_QRDY, F_STRDY, F_HRDY): thr = "0"
        a("s_mov_b32 s27, %d" % (SPIN * 8))
        a(L + ":")
        a("ds_read_b32 v%d, v%d offset:%d" % (vtmp, vaddr, flag))
        for l in extra: a(l)
        a("s_waitcnt lgkmcnt(0)\nv_readfirstlane_b32 s40, v%d\ns_cmp_ge_u32 s40, %s\ns_cbranch_scc1 %s" % (vtmp, thr, D))
        if SLP: a("s_sleep %d" % SLP)
        a("s_sub_u32 s27, s27, 1\ns_cbranch_scc0 %s" % L)
        if stamps: a("s_or_b32 s58, s58, 256")
        a(D + ":")
    def srd(base, ptr, size):
        a("s_mov_b32 s%d, s%d\ns_mov_b32 s%d, s%d\ns_mov_b32 s%d, %d\ns_mov_b32 s%d, 0x00020000" % (base, ptr, base + 1, ptr + 1, base + 2, size, base + 3))
    def nonce():
        a("s_waitcnt lgkmcnt(0)\ns_mul_i32 s26, s26, 0x19660d\ns_add_u32 s26, s26, 0x3c6ef35f")
    def masks():
        for j, m in enumerate(("0x03030303", "0x0c0c0c0c", "0x30303030", "0xc0c0c0c0")):
            a("s_mov_b32 s%d, %s\ns_mov_b32 s%d, %s" % (32 + 2 * j, m, 33 + 2 * j, m))
        a("v_and_b32 v2, 1, v0\nv_lshlrev_b32 v2, 4, v2")
    a("s_cmp_ge_u32 s2, 256\ns_cbranch_scc1 .Lend")
    a("s_load_dwordx16 s[64:79], s[0:1], 0\ns_load_dwordx8 s[80:87], s[0:1], 64")
    if stamps: a("s_memrealtime s[88:89]")
    a("""
    v_lshrrev_b32 v1, 6, v0
    v_and_b32 v0, 63, v0
    v_readfirstlane_b32 s3, v1
    s_and_b32 s24, s2, 7
    s_lshl_b32 s24, s24, 2
    s_bfe_u32 s25, s2, 0x20003
    s_or_b32 s24, s24, s25
    s_lshr_b32 s25, s2, 5
    v_lshrrev_b32 v4, 3, v0
    v_and_b32 v5, 7, v0
    s_cmp_lt_u32 s3, 5
    s_cbranch_scc1 .Laux
    """)
    KV = 32
    Q = 8
    SC = 20
    VOFF, H = 1, 2
    OP = 28
    T0, T1, T2, T3 = 3, 4, 5, 6
    TM = 7
    a("""
    v_mul_u32_u24 v1, 384, v4
    v_lshl_add_u32 v1, v5, 4, v1
    s_sub_u32 s48, s3, 5
    s_mul_i32 s28, s24, 1572864
    s_mul_i32 s29, s25, 196608
    s_add_u32 s28, s28, s29
    s_mul_i32 s29, s48, 24576
    s_add_u32 s28, s28, s29
    s_add_u32 s29, s28, 6144
    s_add_u32 s30, s28, 12288
    s_add_u32 s31, s28, 18432
    s_waitcnt lgkmcnt(0)
    """)
    srd(4, 66, 50331648)
    st = dict(n=0, landed=0)
    def need(idx):
        if idx >= st["landed"]:
            a("s_waitcnt vmcnt(%d)" % (st["n"] - 1 - idx)); st["landed"] = idx + 1
    def kvload(throttle=True):
        n = st["n"]; i = n % 24; t, ln = i // 3, i % 3
        Tn = T if n < TT else TTT
        if throttle and n >= Tn: need(n - Tn)
        r = KV + 4 * i
        a("buffer_load_dwordx4 v[%d:%d], v%d, s[%d:%d], s%d offen offset:%d%s" % (r, r + 3, VOFF, 4 if n < 24 else 8, 7 if n < 24 else 11, 28 + t // 2, 3072 * (t & 1) + 128 * ln, NT))
        st["n"] += 1
        n = st["n"]
        if n in (G1, G2, G3):
            a("s_mov_b64 exec, 1\nv_mov_b32 v%d, 0\nv_mov_b32 v%d, %d\nds_max_u32 v%d, v%d offset:%d\ns_mov_b64 exec, -1" % (OP, OP + 1, n, OP, OP + 1, F_PROG))
        if n == 24 + PW:
            a("s_mov_b64 exec, 1\nv_mov_b32 v%d, 0\nv_mov_b32 v%d, 1\nds_add_u32 v%d, v%d offset:%d\ns_mov_b64 exec, -1" % (OP, OP + 1, OP, OP + 1, F_WOGO))
    for _ in range(T): kvload()
    a("s_load_dword s26, s[86:87], 0")
    srd(8, 68, 50331648); srd(12, 86, 268435456); srd(16, 64, 1280); srd(20, 82, 1280)
    zero_stamps()
    masks()
    a("v_mov_b32 v3, 0xffff\nv_lshlrev_b32 v2, v2, v3")
    a("v_lshlrev_b32 v6, 4, v5")
    a("s_barrier")
    while st["n"] < P1: kvload()
    nonce()
    stamp(1)
    lwait(F_QRDY, "3", 6, T0, ["ds_read_b128 v[%d:%d], v6 offset:%d" % (Q + 4 * ln, Q + 4 * ln + 3, L_Q + 128 * ln) for ln in range(3)])
    stamp(2)
    def qk(t):
        if abl & 1: return
        acc = [T0, T1, T2]
        for j in range(4):
            for ln in range(3):
                a("v_dot2_f32_bf16 v%d, v%d, v%d, %s" % (acc[ln], KV + 12 * t + 4 * ln + j, Q + 4 * ln + j, "0" if j == 0 else "v%d" % acc[ln]))
        a("v_add_f32 v%d, v%d, v%d\nv_add_f32 v%d, v%d, v%d" % (T0, T0, T1, T0, T0, T2))
        red8("v_add_f32", [T0])
        rbf(T0, T0)
        a("v_mul_f32 v%d, %s, v%d" % (T0, SCALE, T0))
        rbf(SC + t, T0)
    tq = 0
    while tq < 8:
        did = 0
        while tq < 8 and did < 2 and 3 * tq + 2 < st["landed"]:
            qk(tq); tq += 1; did += 1
        if tq < 8:
            if st["n"] >= 24 and (st["n"] - 24) // 3 >= tq:
                need(3 * tq + 2)
            else:
                kvload()
    a("v_max3_f32 v%d, v%d, v%d, v%d" % (TM, SC, SC + 1, SC + 2))
    a("v_max3_f32 v%d, v%d, v%d, v%d" % (T0, SC + 3, SC + 4, SC + 5))
    a("v_max3_f32 v%d, v%d, v%d, v%d" % (TM, TM, SC + 6, SC + 7))
    a("v_max_f32 v%d, v%d, v%d" % (TM, TM, T0))
    redhi("v_max_f32", [(TM, T0)])
    a("v_mul_f32 v%d, %s, v%d" % (T1, LOG2E, TM))
    a("s_mov_b32 s49, %s" % LOG2E)
    for t in range(8): a("v_fma_f32 v%d, v%d, s49, -v%d" % (SC + t, SC + t, T1))
    for t in range(8): a("v_exp_f32 v%d, v%d" % (SC + t, SC + t))
    a("v_add_f32 v%d, v%d, v%d\nv_add_f32 v%d, v%d, v%d" % (T2, SC, SC + 1, T3, SC + 2, SC + 3))
    a("v_add_f32 v%d, v%d, v%d\nv_add_f32 v%d, v%d, v%d" % (T2, T2, SC + 4, T3, T3, SC + 5))
    a("v_add_f32 v%d, v%d, v%d\nv_add_f32 v%d, v%d, v%d" % (T2, T2, SC + 6, T3, T3, SC + 7))
    S4 = Q
    a("v_add_f32 v%d, v%d, v%d" % (S4 + 1, T2, T3))
    redhi("v_add_f32", [(S4 + 1, T0)])
    a("v_mov_b32 v%d, v%d\nv_mov_b32 v%d, 0\nv_mov_b32 v%d, 1\ns_lshl_b32 s50, s48, 3\nv_mov_b32 v%d, s50" % (S4, TM, T3, S4 + 2, S4 + 3))
    a("s_mov_b64 exec, 1\nds_write_b64 v%d, v[%d:%d] offset:%d\nds_add_u32 v%d, v%d offset:%d\ns_mov_b64 exec, -1" % (S4 + 3, S4, S4 + 1, L_WST, T3, S4 + 2, F_STC))
    stamp(3)
    while st["n"] < 48: kvload()
    a("""
    v_and_b32 v1, 7, v0
    v_lshlrev_b32 v1, 3, v1
    v_bfe_u32 v5, v0, 4, 1
    v_lshl_add_u32 v1, v5, 2, v1
    v_bfe_u32 v5, v0, 3, 1
    v_lshl_add_u32 v1, v5, 1, v1
    v_bfe_u32 v5, v0, 5, 1
    v_add_u32 v1, v5, v1
    s_lshl_b32 s49, s48, 8
    """)
    PA = [28, 29, 30]
    stamp(4)
    lwait(F_STRDY, "1", T3, T0, ["ds_read_b64 v[%d:%d], v%d offset:%d" % (T1, T2, T3, L_ST)])
    stamp(5)
    a("v_sub_f32 v%d, v%d, v%d\nv_mul_f32 v%d, %s, v%d\nv_exp_f32 v%d, v%d\nv_mul_f32 v%d, v%d, v%d" % (T0, TM, T1, T0, LOG2E, T0, T0, T0, TM, T0, T2))
    for t in range(8):
        a("v_mul_f32 v%d, v%d, v%d" % (T0, SC + t, TM))
        operand(OP, T0, H, T1)
        for ln in range(3):
            need(24 + 3 * t + ln)
            mfma(Q + 4 * ln, OP, KV + 12 * t + 4 * ln, t == 0)
        if t == 6:
            PA[:] = [SC + 3, SC + 4, SC + 5]
            for ln in range(3):
                a("v_add_u32 v%d, %d, v1\nv_mul_u32_u24 v5, 171, v%d\nv_lshrrev_b32 v5, 9, v5\nv_add3_u32 v%d, v%d, v5, s49\nv_lshlrev_b32 v%d, 2, v%d" % (PA[ln], 64 * ln, PA[ln], PA[ln], PA[ln], PA[ln], PA[ln]))
            a("v_lshlrev_b32 v6, 4, v0\nv_lshlrev_b32 v5, 7, v0\ns_lshl_b32 s50, s24, 13\ns_lshl_b32 s51, s25, 4\ns_add_u32 s50, s50, s51\ns_add_u32 s50, s50, %d\ns_add_u32 s51, s50, %d" % (WS_O, YD))
    stamp(6)
    for ln in range(3): fold1(Q + 4 * ln, SC + ln)
    for ln in range(3): a("ds_write_b32 v%d, v%d offset:%d" % (PA[ln], SC + ln, L_PART))
    a("v_mov_b32 v11, s26\ns_waitcnt lgkmcnt(0)")
    a("s_barrier")
    a("s_cmp_ge_u32 s48, %d\ns_cbranch_scc1 .Lbulk_opub" % (1 if noy else 2))
    for k in range(8): a("ds_read_b128 v[%d:%d], v6 offset:%d" % (32 + 4 * k, 35 + 4 * k, L_PART + 1024 * k))
    for st_, wv in ((4, 4), (8, 0), (16, 0)):
        for k in range(0, 32, 2 * st_):
            if st_ == 4: a("s_waitcnt lgkmcnt(%d)" % (6 - k // 4))
            d = 8 if st_ == 16 else 32 + k
            a("v_pk_add_f32 v[%d:%d], v[%d:%d], v[%d:%d]\nv_add_f32 v%d, v%d, v%d" % (d, d + 1, 32 + k, 33 + k, 32 + k + st_, 33 + k + st_, d + 2, 34 + k, 34 + k + st_))
    a("s_cmp_eq_u32 s48, 0\ns_cbranch_scc0 .Lbulk_opy\nbuffer_store_dwordx4 v[8:11], v5, s[12:15], s50 offen\ns_branch .Lbulk_opub")
    a(".Lbulk_opy:\nbuffer_store_dwordx4 v[8:11], v5, s[12:15], s51 offen sc1")
    a(".Lbulk_opub:")
    stamp(7)
    a("s_cmp_ge_u32 s2, %d\ns_cbranch_scc1 .Lbulk_end" % NRED)
    a("""
    v_and_b32 v31, 3, v0
    v_lshlrev_b32 v31, 4, v31
    s_lshr_b32 s49, s2, 3
    s_lshl_b32 s49, s49, 7
    s_and_b32 s50, s2, 1
    s_lshl_b32 s50, s50, 6
    s_add_u32 s49, s49, s50
    s_and_b32 s50, s2, 6
    s_lshl_b32 s50, s50, 1
    s_add_u32 s49, s49, s50
    buffer_load_dword v30, v31, s[16:19], s49 offen
    """)
    a("v_lshlrev_b32 v1, 3, v0\ns_lshl_b32 s50, s2, 12\ns_lshl_b32 s51, s48, 9\ns_add_u32 s50, s50, s51\ns_add_u32 s50, s50, %d" % WS_B)
    poll(["buffer_load_dwordx2 v[32:33], v1, s[12:15], s50 offen sc1"], [33], 2)
    redhi("v_add_f32", [(32, 10)])
    a("v_lshlrev_b32 v3, 2, v0\ns_lshl_b32 s51, s48, 5\nv_add_u32 v3, s51, v3")
    a("s_mov_b64 exec, 0xff\nds_write_b32 v3, v32 offset:%d\ns_mov_b64 exec, -1" % L_REDB)
    a("v_lshlrev_b32 v1, 4, v0\ns_lshl_b32 s50, s2, 14\ns_lshl_b32 s51, s48, 11\ns_add_u32 s50, s50, s51\ns_add_u32 s50, s50, %d" % WS_A)
    a("v_lshlrev_b32 v3, 3, v0\ns_lshl_b32 s51, s48, 5\nv_add_u32 v3, s51, v3")
    a("v_mov_b32 v8, 0\nv_mov_b32 v9, 0\ns_mov_b64 s[44:45], -1\ns_mov_b64 s[46:47], -1")
    a("s_barrier")
    stamp(8)
    def aissue(k):
        R = 32 + 8 * k
        if stamps: stamp(11); a("s_add_u32 s59, s59, %d" % (1 << 20))
        a("s_or_b64 exec, s[44:45], 1\nbuffer_load_dwordx4 v[%d:%d], v1, s[12:15], s50 offen sc1" % (R, R + 3))
        a("s_or_b64 exec, s[46:47], 1\nbuffer_load_dwordx4 v[%d:%d], v1, s[12:15], s50 offen offset:1024 sc1" % (R + 4, R + 7))
    def acheck(k, w):
        for j in range(2):
            R, M = 32 + 8 * k + 4 * j, 44 + 2 * j
            a("s_mov_b64 exec, s[%d:%d]\ns_waitcnt vmcnt(%d)" % (M, M + 1, w + 1 - j))
            a("v_cmp_eq_u32 vcc, s26, v%d\nv_cmp_eq_u32 s[42:43], s26, v%d\ns_and_b64 exec, vcc, s[42:43]" % (R + 1, R + 3))
            a("v_add_f32 v8, v8, v%d\nv_add_f32 v9, v9, v%d\ns_andn2_b64 s[%d:%d], s[%d:%d], exec" % (R, R + 2, M, M + 1, M, M + 1))
        a("s_or_b64 s[40:41], s[44:45], s[46:47]\ns_cbranch_scc0 .Lag_done")
    a("s_mov_b32 s27, %d\n.Lag_1:" % SPIN)
    aissue(0); acheck(0, 0)
    if NS > 1:
        a("s_bcnt1_i32_b64 s40, s[44:45]\ns_bcnt1_i32_b64 s41, s[46:47]\ns_add_u32 s40, s40, s41\ns_cmp_le_u32 s40, %d\ns_cbranch_scc1 .Lag_2" % TH)
    a("s_sub_u32 s27, s27, 1\ns_cbranch_scc0 .Lag_1")
    if NS > 1:
        a("s_branch .Lag_fail\n.Lag_2:")
        for k in range(NS - 1): aissue(k)
        a(".Lag_3:")
        for k in range(NS):
            aissue((k + NS - 1) % NS)
            acheck(k, 2 * (NS - 1))
        a("s_sub_u32 s27, s27, 1\ns_cbranch_scc0 .Lag_3\n.Lag_fail:")
    if stamps: a("s_or_b32 s58, s58, 16")
    a(".Lag_done:\ns_mov_b64 exec, -1")
    stamp(9)
    for r in (8, 9): dpp("v_add_f32", r, r, r, "row_ror:4")
    redhi("v_add_f32", [(8, 10), (9, 11)])
    a("s_mov_b64 exec, 15\nds_write_b64 v3, v[8:9] offset:%d\ns_mov_b64 exec, -1\ns_waitcnt lgkmcnt(0)" % L_RED)
    a("s_barrier")
    a("s_cmp_lg_u32 s48, 0\ns_cbranch_scc1 .Lbulk_end")
    a("v_lshlrev_b32 v3, 3, v0\nds_read_b64 v[8:9], v3 offset:%d" % L_RED)
    a("v_lshlrev_b32 v14, 16, v30\nv_and_b32 v15, 0xffff0000, v30\ns_waitcnt lgkmcnt(0)")
    for ctl in ("row_ror:4", "row_ror:8"):
        for r in (8, 9): dpp("v_add_f32", r, r, r, ctl)
    a("v_mov_b32 v10, v8\nv_mov_b32 v11, v9\nv_permlane16_swap_b32 v8, v10\nv_permlane16_swap_b32 v9, v11\nv_add_f32 v8, v8, v10\nv_add_f32 v9, v9, v11")
    a("v_cvt_pk_bf16_f32 v8, v8, v9\nv_mov_b32 v12, v8\nv_permlane32_swap_b32 v8, v12")
    a("v_and_b32 v9, 0xffff0000, v8\nv_lshlrev_b32 v8, 16, v8\nv_add_f32 v8, v8, v14\nv_add_f32 v9, v9, v15")
    a("v_and_b32 v13, 0xffff0000, v12\nv_lshlrev_b32 v12, 16, v12")
    a("v_cvt_pk_bf16_f32 v8, v8, v9\nv_and_b32 v9, 0xffff0000, v8\nv_lshlrev_b32 v8, 16, v8\nv_add_f32 v8, v8, v12\nv_add_f32 v9, v9, v13")
    a("v_cvt_pk_bf16_f32 v8, v8, v9")
    a("s_mov_b64 exec, 15\nbuffer_store_dword v8, v31, s[20:23], s49 offen")
    a("s_cmp_lg_u32 s2, 0\ns_cbranch_scc1 .Lbulk_end")
    a("s_mov_b64 exec, 1\nv_mov_b32 v9, s26\nv_mov_b32 v1, 0\nbuffer_store_dword v9, v1, s[12:15], 0 offen sc1")
    a(".Lbulk_end:")
    stamp(10)
    flush_stamps(range(1, 12))
    a("s_endpgm")

    a(".Laux:\ns_setprio %d" % (0 if abl & 4 else 3))
    W1 = 32
    W2 = 76
    XF = 8
    C = 13
    G = 100
    AOP = 24
    ACC = 116
    Z = 124
    ONE = 127
    SH = 2
    a("v_mov_b32 v%d, 0\nv_mov_b32 v%d, 0\nv_mov_b32 v%d, 0\nv_mov_b32 v%d, 1\nv_lshlrev_b32 v1, 2, v0\nv_and_b32 v3, 60, v1" % (Z, Z + 1, Z + 2, ONE))
    a("ds_write_b32 v3, v%d offset:%d\nds_write_b32 v3, v%d offset:%d" % (Z, L_FLAG, Z, L_XN + 1280))
    a("""
    s_cmp_lt_u32 s3, 3
    s_cbranch_scc1 .Laux_q
    s_and_b32 s52, s24, 3
    s_lshl_b32 s52, s52, 1
    s_sub_u32 s53, s3, 3
    s_add_u32 s52, s52, s53
    s_mul_i32 s48, s52, 80
    s_lshr_b32 s53, s24, 2
    s_mul_i32 s53, s53, 3
    s_add_u32 s53, s53, s25
    s_sub_u32 s54, s53, 3
    s_cmp_ge_u32 s25, 3
    s_cselect_b32 s53, s54, s53
    s_cselect_b32 s54, 98304, 0
    s_lshl_b32 s49, s53, 7
    s_movk_i32 s50, 3072
    s_mul_i32 s51, s52, 12288
    s_lshl_b32 s53, s53, 9
    s_add_u32 s51, s51, s53
    s_mov_b32 s53, s54
    s_add_u32 s51, s51, s54
    s_add_u32 s51, s51, %d
    s_add_u32 s6, s48, 80
    s_waitcnt lgkmcnt(0)
    s_cmp_eq_u32 s53, 0
    s_cselect_b32 s4, s76, s78
    s_cselect_b32 s5, s77, s79
    s_branch .Laux_p
    .Laux_q:
    s_mul_i32 s48, s25, %d
    s_add_u32 s6, s48, %d
    s_mul_i32 s52, s25, %d
    s_add_u32 s52, s52, %d
    s_add_u32 s53, s52, %d
    s_cmp_ge_u32 s25, 6
    s_cselect_b32 s48, s52, s48
    s_cselect_b32 s6, s53, s6
    s_mul_i32 s49, s24, 384
    s_lshl_b32 s53, s3, 7
    s_add_u32 s49, s49, s53
    s_movk_i32 s50, 12288
    s_mul_i32 s51, s24, 12288
    s_mul_i32 s52, s25, 1536
    s_add_u32 s51, s51, s52
    s_lshl_b32 s53, s3, 9
    s_add_u32 s51, s51, s53
    s_add_u32 s51, s51, %d
    s_waitcnt lgkmcnt(0)
    s_mov_b32 s4, s70
    s_mov_b32 s5, s71
    .Laux_p:
    s_mul_i32 s6, s6, s50
    s_mov_b32 s7, 0x00020000
    """ % (WS_GU, QA, QA, QB, 6 * QA - 6 * QB, QB, WS_Q))
    srd(16, 64, 1280)
    a("s_cmp_lt_u32 s3, 3\ns_cbranch_scc1 .Laux_s1\ns_cmp_ge_u32 s25, 6\ns_cbranch_scc1 .Laux_s1skip")
    a(".Laux_s1:")
    for j in range(5): a("buffer_load_dword v%d, v1, s[16:19], 0 offen offset:%d" % (XF + j, 256 * j))
    a("v_mul_lo_u32 v6, v4, s50\nv_lshl_add_u32 v6, v5, 4, v6\ns_mul_i32 s52, s48, s50\ns_add_u32 s52, s52, s49\ns_lshl_b32 s50, s50, 3")
    if abl & 2: a("s_mov_b32 s6, 0")
    for t in range(NT1):
        a("buffer_load_dwordx4 v[%d:%d], v6, s[4:7], s52 offen%s" % (W1 + 4 * t, W1 + 4 * t + 3, NT))
        if t < NT1 - 1: a("s_add_u32 s52, s52, s50")
    a(".Laux_s1skip:")
    a("s_barrier")
    a("s_load_dword s26, s[86:87], 0")
    if abl & 32: a("s_endpgm")
    srd(8, 72, 0 if abl & 16 else 7864320); srd(12, 86, 268435456); srd(20, 80, 0 if abl & 8 else 1966080)
    zero_stamps()
    masks()
    a("s_lshl_b32 s55, s24, 1\ns_add_u32 s55, s55, s25\ns_sub_u32 s55, s55, 6")
    a("s_cmp_lt_u32 s3, 3\ns_cbranch_scc1 .Laux_ln\ns_cmp_ge_u32 s25, 6\ns_cbranch_scc1 .Laux_pub_skip")
    a(".Laux_ln:\ns_waitcnt vmcnt(%d)" % NT1)
    stamp(1)
    U = G
    for j in range(5): a("v_lshlrev_b32 v%d, 16, v%d\nv_and_b32 v%d, 0xffff0000, v%d" % (U + 2 * j, XF + j, U + 2 * j + 1, XF + j))
    a("v_add_f32 v13, v%d, v%d" % (U, U + 1))
    for j in range(2, 10): a("v_add_f32 v13, v13, v%d" % (U + j))
    redall("v_add_f32", [(13, 14)])
    a("v_mul_f32 v13, 0x3acccccd, v13")
    a("v_sub_f32 v15, v%d, v13\nv_mul_f32 v14, v15, v15" % U)
    for j in range(1, 10): a("v_sub_f32 v15, v%d, v13\nv_fma_f32 v14, v15, v15, v14" % (U + j))
    redall("v_add_f32", [(14, 15)])
    a("v_mul_f32 v14, 0x3acccccd, v14")
    rbf(14, 14); a("v_add_f32 v14, 0x3727c5ac, v14"); rbf(14, 14)
    a("v_sqrt_f32 v14, v14"); rbf(14, 14); a("v_rcp_f32 v14, v14")
    rbf(13, 13)
    for j in range(10): a("v_sub_f32 v%d, v%d, v13" % (U + j, U + j))
    for j in range(5):
        a("v_cvt_pk_bf16_f32 v%d, v%d, v%d" % (XF + j, U + 2 * j, U + 2 * j + 1))
        a("v_lshlrev_b32 v%d, 16, v%d\nv_and_b32 v%d, 0xffff0000, v%d" % (U + 2 * j, XF + j, U + 2 * j + 1, XF + j))
        a("v_mul_f32 v%d, v%d, v14\nv_mul_f32 v%d, v%d, v14" % (U + 2 * j, U + 2 * j, U + 2 * j + 1, U + 2 * j + 1))
        a("v_cvt_pk_bf16_f32 v%d, v%d, v%d" % (XF + j, U + 2 * j, U + 2 * j + 1))
        a("ds_write_b32 v1, v%d offset:%d" % (XF + j, L_XN + 256 * j))
    a("v_add_lshl_u32 v3, v4, s48, 1")
    for t in range(NT1): a("ds_read_u16 v%d, v3 offset:%d" % (C + t, L_XN + 16 * t))
    nonce()
    stamp(2)
    for t in range(NT1):
        op = AOP + 4 * (t & 1)
        operand16(op, C + t, SH)
        a("s_waitcnt vmcnt(%d)" % (NT1 - 1 - t))
        mfma(ACC, op, W1 + 4 * t, t == 0)
    a("v_lshlrev_b32 v1, 4, v0\nv_mov_b32 v9, s26\nv_mov_b32 v11, s26")
    fold1(ACC, 8)
    a("v_permlane32_swap_b32 v8, v10")
    a("s_mov_b32 exec_hi, 0\nbuffer_store_dwordx4 v[8:11], v1, s[12:15], s51 offen")
    if not noy: a("s_add_u32 s51, s51, %d\nbuffer_store_dwordx4 v[8:11], v1, s[12:15], s51 offen sc1" % YD)
    a("s_mov_b64 exec, -1")
    stamp(3)
    a("s_branch .Laux_pub_done\n.Laux_pub_skip:")
    nonce()
    a(".Laux_pub_done:")
    def stage2_loads(srdb, voffs, step):
        for t in range(3):
            for ln in range(2):
                r = W2 + 8 * t + 4 * ln
                a("buffer_load_dwordx4 v[%d:%d], v%d, s[%d:%d], s52 offen offset:%d%s" % (r, r + 3, voffs[t], srdb, srdb + 3, 128 * ln, NT))
            if t < 2 and step: a("s_add_u32 s52, s52, %d" % step)
    a("s_cmp_lt_u32 s25, 6\ns_cbranch_scc1 .Laux_nowdl")
    a("s_mul_i32 s56, s55, 24")
    for t in range(3):
        r = 16 + t
        a("v_add_u32 v3, s56, v4\nv_and_b32 v%d, 0xffffffc1, v3\nv_bfe_u32 v6, v3, 1, 3\nv_lshl_or_b32 v%d, v6, 3, v%d\nv_bfe_u32 v6, v3, 4, 2\nv_lshl_or_b32 v%d, v6, 1, v%d" % (r, r, r, r, r))
        a("v_mul_u32_u24 v%d, 1280, v%d\nv_lshl_add_u32 v%d, v5, 4, v%d" % (r, r, r, r))
        if t < 2: a("s_add_u32 s56, s56, 8")
    a("s_lshl_b32 s52, s3, 8")
    stage2_loads(20, [16, 17, 18], 0)
    a(".Laux_nowdl:")
    a("v_lshrrev_b32 v3, 2, v0\nv_and_b32 v6, 3, v0\nv_lshlrev_b32 v6, 4, v6\nv_lshl_add_u32 v19, v3, 12, v6\nv_lshl_add_u32 v20, v3, 14, v6\nv_lshlrev_b32 v12, 1, v4")
    a("v_and_b32 v13, 15, v0\nv_lshrrev_b32 v14, 4, v0")
    a("s_cmp_ge_u32 s3, 3\ns_cbranch_scc1 .Laux_qdone")
    a("v_and_b32 v1, 31, v0\nv_lshlrev_b32 v1, 4, v1\nv_lshrrev_b32 v3, 5, v0\nv_mul_u32_u24 v3, 1536, v3\nv_add_u32 v1, v1, v3")
    a("s_mul_i32 s52, s24, 12288\ns_lshl_b32 s53, s3, 9\ns_add_u32 s52, s52, s53\ns_add_u32 s52, s52, %d\ns_add_u32 s53, s52, 6144" % WS_Q)
    a("v_lshlrev_b32 v6, 4, v5\nv_bfe_u32 v3, v0, 4, 1\nv_lshl_add_u32 v6, v3, 3, v6\nv_bfe_u32 v3, v0, 3, 1\nv_lshl_add_u32 v6, v3, 2, v6\ns_lshl_b32 s54, s3, 7\nv_add_u32 v6, s54, v6")
    lwait(F_PROG, str(G1), Z, 3)
    poll(["buffer_load_dwordx4 v[%d:%d], v1, s[12:15], s%d offen offset:%d sc1" % (G + 4 * i, G + 4 * i + 3, 52 + i // 2, 3072 * (i & 1)) for i in range(4)], [G + 2 * i + 1 for i in range(8)], 0, 1, NXQ)
    a("v_and_b32 v3, %d, v1\nds_or_b32 v%d, v3 offset:%d" % (YD, Z, F_MODE))
    for e in (0, 2): a("v_add_f32 v%d, v%d, v%d\nv_add_f32 v%d, v%d, v%d" % (G + e, G + e, G + 4 + e, G + 8 + e, G + 8 + e, G + 12 + e))
    for e in (0, 2): a("v_add_f32 v%d, v%d, v%d" % (G + e, G + e, G + 8 + e))
    redsw("v_add_f32", [(G, G + 1), (G + 2, G + 3)], ("v_permlane32_swap_b32",))
    a("v_cvt_pk_bf16_f32 v%d, v%d, v%d\nds_write_b32 v6, v%d offset:%d" % (G, G, G + 2, G, L_Q))
    a("s_waitcnt lgkmcnt(0)\ns_mov_b64 exec, 1\nds_add_u32 v%d, v%d offset:%d\ns_mov_b64 exec, -1" % (Z, ONE, F_QRDY))
    stamp(4)
    a(".Laux_qdone:")
    a("s_cmp_lt_u32 s25, 6\ns_cbranch_scc1 .Laux_wddone")
    a("s_cmp_lg_u32 s3, 3\ns_cbranch_scc1 .Laux_hwait")
    a("v_mul_u32_u24 v1, 12288, v14\nv_lshl_add_u32 v1, v13, 4, v1\ns_mul_i32 s52, s55, 192\ns_add_u32 s52, s52, %d\ns_add_u32 s53, s52, 49152\ns_add_u32 s54, s52, 98304\ns_add_u32 s57, s52, 147456\nv_lshlrev_b32 v6, 2, v13" % WS_GU)
    lwait(F_PROG, str(G3), Z, 3, ["ds_read_b32 v21, v%d offset:%d" % (Z, F_MODE)])
    a("s_mov_b32 exec_lo, %s\ns_mov_b32 exec_hi, %s" % (M12, M12))
    poll(["buffer_load_dwordx4 v[%d:%d], v1, s[12:15], s%d offen sc1" % (G + 4 * i, G + 4 * i + 3, [52, 53, 54, 57][i]) for i in range(4)], [G + 2 * i + 1 for i in range(8)], 1, 1, NXQ, 21)
    for e in (0, 2): a("v_add_f32 v%d, v%d, v%d\nv_add_f32 v%d, v%d, v%d" % (G + e, G + e, G + 4 + e, G + 8 + e, G + 8 + e, G + 12 + e))
    redrows("v_add_f32", [(G, G + 1), (G + 2, G + 3), (G + 8, G + 9), (G + 10, G + 11)])
    for r in (G, G + 2, G + 8, G + 10): rbf(r, r)
    for e in (0, 2):
        g, u = G + e, G + 8 + e
        a("v_mul_f32 v%d, 0xbfb8aa3b, v%d\nv_exp_f32 v%d, v%d\nv_add_f32 v%d, 1.0, v%d\nv_rcp_f32 v%d, v%d" % (g, g, g, g, g, g, g, g))
        rbf(g, g)
        a("v_mul_f32 v%d, v%d, v%d" % (g, g, u))
    a("v_cvt_pk_bf16_f32 v%d, v%d, v%d\nds_write_b32 v6, v%d offset:%d" % (G, G, G + 2, G, L_H))
    a("s_waitcnt lgkmcnt(0)\ns_mov_b64 exec, 1\nds_write_b32 v%d, v%d offset:%d\ns_mov_b64 exec, -1" % (Z, ONE, F_HRDY))
    a(".Laux_hwait:")
    def stage2(vaddr, f32=False):
        for t in range(3):
            op = AOP + 4 * t
            if f32: operand(op, G + t, 22, G + t)
            else: operand16(op, G + t, SH)
            mfma(ACC, op, W2 + 8 * t, t == 0)
            mfma(ACC + 4, op, W2 + 8 * t + 4, t == 0)
        for r in range(4): a("v_permlane32_swap_b32 v%d, v%d" % (ACC + r, ACC + 4 + r))
        X, Y = ACC, ACC + 4
        dpp("v_add_f32", 8, Y + 0, X + 0, "row_ror:8", "0x3")
        dpp("v_add_f32", 10, Y + 1, X + 1, "row_ror:8", "0x3")
        dpp("v_add_f32", 8, X + 2, Y + 2, "row_ror:8", "0xc")
        dpp("v_add_f32", 10, X + 3, Y + 3, "row_ror:8", "0xc")
        a("buffer_store_dwordx4 v[8:11], v%d, s[12:15], s60 offen sc1" % vaddr)
    a("s_lshl_b32 s60, s3, 16\ns_lshl_b32 s53, s55, 6\ns_add_u32 s60, s60, s53\ns_add_u32 s60, s60, %d\nv_mov_b32 v9, s26\nv_mov_b32 v11, s26" % WS_B)
    lwait(F_HRDY, "1", Z, 3, ["ds_read_u16 v%d, v12 offset:%d" % (G + t, L_H + 16 * t) for t in range(3)])
    a("s_waitcnt vmcnt(0)")
    stage2(19)
    stamp(5)
    a(".Laux_wddone:")
    a("s_cmp_lg_u32 s3, 4\ns_cbranch_scc1 .Laux_s2")
    a("v_lshlrev_b32 v1, 4, v0\nv_lshlrev_b32 v6, 3, v0\ns_lshl_b32 s52, s24, 10\ns_add_u32 s52, s52, %d\ns_lshl_b32 s53, s25, 7\ns_add_u32 s53, s53, s52\nv_mov_b32 v%d, s26\nv_mov_b32 v%d, s26" % (WS_ST, G + 6, G + 7))
    lwait(F_STC, "8", Z, 3, ["ds_read_b64 v[%d:%d], v6 offset:%d" % (G + 4, G + 5, L_WST)])
    a("s_mov_b64 exec, 0xff\nbuffer_store_dwordx4 v[%d:%d], v1, s[12:15], s53 offen" % (G + 4, G + 7))
    if not noy: a("s_add_u32 s53, s53, %d\nbuffer_store_dwordx4 v[%d:%d], v1, s[12:15], s53 offen sc1" % (YD, G + 4, G + 7))
    a("s_mov_b64 exec, -1")
    stamp(4)
    lwait(F_PROG, str(G2), Z, 3, ["ds_read_b32 v21, v%d offset:%d" % (Z, F_MODE)])
    stamp(6)
    poll(["buffer_load_dwordx4 v[%d:%d], v1, s[12:15], s52 offen sc1" % (G, G + 3)], [G + 2, G + 3], 3, 1, NXQ, 21)
    a("v_mov_b32 v16, v%d" % G)
    redall("v_max_f32", [(16, 18)])
    a("v_sub_f32 v17, v%d, v16\nv_mul_f32 v17, %s, v17\nv_exp_f32 v17, v17\nv_mul_f32 v17, v17, v%d" % (G, LOG2E, G + 1))
    redall("v_add_f32", [(17, 18)])
    a("v_rcp_f32 v17, v17\ns_mov_b64 exec, 1\nds_write_b64 v%d, v[16:17] offset:%d\ns_waitcnt lgkmcnt(0)\nds_write_b32 v%d, v%d offset:%d\ns_mov_b64 exec, -1" % (Z, L_ST, Z, ONE, F_STRDY))
    a(".Laux_s2:")
    stamp(7)
    a("v_mul_u32_u24 v7, 3840, v4\nv_lshl_add_u32 v7, v5, 4, v7")
    a("s_mul_i32 s52, s24, 192\ns_mul_i32 s53, s25, 24\ns_add_u32 s52, s52, s53\ns_mul_i32 s52, s52, 1280\ns_lshl_b32 s53, s3, 8\ns_add_u32 s52, s52, s53")
    a("v_lshlrev_b32 v17, 4, v0\ns_lshl_b32 s54, s24, 13\ns_lshl_b32 s53, s25, 10\ns_add_u32 s54, s54, s53\ns_add_u32 s54, s54, %d" % WS_O)
    a("v_mov_b32 v9, s26\nv_mov_b32 v11, s26\nv_mov_b32 v22, 0xffff\nv_lshlrev_b32 v22, v%d, v22" % SH)
    if aslot == 0: a("s_lshl_b32 s60, s3, 18\ns_lshl_b32 s53, s24, 9\ns_add_u32 s60, s60, s53\ns_lshl_b32 s53, s25, 6\ns_add_u32 s60, s60, s53\ns_add_u32 s60, s60, %d" % WS_A)
    if aslot == 1: a("s_lshl_b32 s60, s3, 18\ns_and_b32 s53, s24, 15\ns_lshl_b32 s53, s53, 10\ns_add_u32 s60, s60, s53\ns_lshl_b32 s53, s25, 7\ns_add_u32 s60, s60, s53\ns_lshr_b32 s53, s24, 4\ns_lshl_b32 s53, s53, 6\ns_add_u32 s60, s60, s53\ns_add_u32 s60, s60, %d" % WS_A)
    if aslot == 2: a("s_lshl_b32 s60, s3, 18\ns_lshl_b32 s53, s2, 6\ns_add_u32 s60, s60, s53\ns_add_u32 s60, s60, %d" % WS_A)
    cw = [int(c) for c in "%05d" % CW]
    a("s_lshl_b32 s53, s3, 2\ns_lshr_b32 s61, 0x%x, s53\ns_and_b32 s61, s61, 15" % sum(c << (4 * i) for i, c in enumerate(cw)))
    lwait(F_WOGO, "s61", Z, 3, ["ds_read_b32 v21, v%d offset:%d" % (Z, F_MODE)])
    stage2_loads(8, [7, 7, 7], 1280)
    stamp(8)
    a("s_barrier")
    stamp(9)
    poll(["buffer_load_dwordx4 v[%d:%d], v17, s[12:15], s54 offen sc1" % (G, G + 3)], [G + 3], 5, 17, NXO, 21)
    stamp(10)
    red8("v_add_f32", [G, G + 1, G + 2])
    stage2(20, True)
    stamp(11)
    if ack: a("s_waitcnt vmcnt(0)"); stamp(12)
    a("s_cmp_ge_u32 s2, %d\ns_cbranch_scc1 .Laux_end\ns_barrier" % NRED)
    a(".Laux_end:")
    flush_stamps(range(1, 13))
    a(".Lend:\ns_endpgm")
    a.l, n = hazard.fix(a.l)
    return a.text(256, 832, LDS_BYTES, 128)

if __name__ == "__main__":
    out = sys.argv[1]
    kw = dict(x.split("=") for x in sys.argv[2:])
    kw = {k: int(v) for k, v in kw.items()}
    open(out, "w").write(gen(**kw))
```

```python
import sys
from asmlib import *
import hazard, pads

WS_Q, WS_GU, WS_ST, WS_O, WS_B, WS_A = 0x10000, 0x80000, 0xC0000, 0x100000, 0x180000, 0x200000
L_Q, L_ST, L_FLAG, L_PART, L_RED, L_REDB = 0, 384, 448, 512, 8704, 8960
L_XN, L_H, L_WST = 9216, 10560, 10624
F_PROG, F_QRDY, F_STRDY, F_WOGO, F_HRDY, F_STC, F_MODE = [L_FLAG + 4 * i for i in range(7)]
LDS_BYTES = 11136
SPIN = 40000
LOG2E = "0x3fb8aa3b"
SCALE = "0x3d93cd3a"
M12 = "0x0fff0fff"

def gen(T=4, P1=20, PW=8, CW=88888, G1=12, G3=16, G2=36, stamps=0, NRED=80, SLP=0, dbgst=0, pol=0, QA=88, QB=56, TT=48, TTT=24, nodep=0, ack=0, pre=0, abl=0, NS=4, TH=32, NXQ=24, NXR=3, gue=1, early=0, bdef=1, aslot=0, warm=1, WIN=1280):
    a = Asm()
    NT = [" nt", "", " sc1 nt", " sc0 sc1 nt", " sc1", " sc0 sc1", " sc0 nt"][pol]
    assert 6 * QA + 2 * QB == 640 and QA % 8 == 0 and QB % 8 == 0
    NT1 = max(QA, QB, 80) // 8
    def stamp(k):
        if stamps: a("s_memrealtime s[%d:%d]" % (64 + 2 * k - 2, 64 + 2 * k - 1))
    def flush_stamps(ks):
        if not stamps: return
        a("s_waitcnt lgkmcnt(0)\ns_mov_b64 exec, 1\nv_mov_b32 v2, 0\ns_lshl_b32 s40, s2, 10\ns_lshl_b32 s41, s3, 6\ns_add_u32 s40, s40, s41\ns_add_u32 s40, s40, %d" % STAMP_OFF)
        for k in [0] + list(ks):
            r = 88 if k == 0 else 64 + 2 * k - 2
            a("v_mov_b32 v3, s%d\nbuffer_store_dword v3, v2, s[12:15], s40 offen offset:%d" % (r, 4 * k))
        a("v_mov_b32 v3, s58\nbuffer_store_dword v3, v2, s[12:15], s40 offen offset:60")
        a("v_mov_b32 v3, s59\nbuffer_store_dword v3, v2, s[12:15], s40 offen offset:56")
    def zero_stamps():
        if stamps:
            a("s_mov_b32 s58, 0\ns_mov_b32 s59, 0")
            for k in range(1, 12): a("s_mov_b32 s%d, 0" % (64 + 2 * k - 2))
    def dpp(op, d, s0, s1, ctl, bank="0xf"):
        a("%s_dpp v%d, v%d, v%d %s row_mask:0xf bank_mask:%s" % (op, d, s0, s1, ctl, bank))
    def red8(op, regs_):
        for ctl in ("quad_perm:[1,0,3,2]", "quad_perm:[2,3,0,1]", "row_half_mirror"):
            for r in regs_: dpp(op, r, r, r, ctl)
    def redsw(op, pairs, sws):
        for sw in sws:
            for r, t in pairs: a("v_mov_b32 v%d, v%d" % (t, r))
            for r, t in pairs: a("%s v%d, v%d" % (sw, r, t))
            for r, t in pairs: a("%s v%d, v%d, v%d" % (op, r, r, t))
    def redrows(op, pairs):
        redsw(op, pairs, ("v_permlane16_swap_b32", "v_permlane32_swap_b32"))
    def redhi(op, pairs):
        for r, t in pairs: dpp(op, r, r, r, "row_ror:8")
        redrows(op, pairs)
    def redall(op, pairs):
        red8(op, [r for r, t in pairs]); redhi(op, pairs)
    def rbf(d, s):
        a("v_cvt_pk_bf16_f32 v%d, v%d, v%d\nv_lshlrev_b32 v%d, 16, v%d" % (d, s, s, d, d))
    def onehot(dst, tmp):
        for j in range(4): a("v_cndmask_b32 v%d, 0, v%d, s[%d:%d]" % (dst + j, tmp, 32 + 2 * j, 33 + 2 * j))
    def operand(dst, c, H, tmp):
        a("v_cvt_pk_bf16_f32 v%d, v%d, v%d\nv_and_b32 v%d, v%d, v%d" % (tmp, c, c, tmp, tmp, H))
        onehot(dst, tmp)
    def operand16(dst, c, SH):
        a("v_lshlrev_b32 v%d, v%d, v%d" % (c, SH, c))
        onehot(dst, c)
    def mfma(d, A, B, first):
        a("v_mfma_f32_16x16x32_bf16 v[%d:%d], v[%d:%d], v[%d:%d], %s" % (d, d + 3, A, A + 3, B, B + 3, "0" if first else "v[%d:%d]" % (d, d + 3)))
    def fold1(D, out):
        a("v_permlane32_swap_b32 v%d, v%d\nv_permlane32_swap_b32 v%d, v%d" % (D, D + 1, D + 2, D + 3))
        dpp("v_add_f32", out, D + 1, D, "row_ror:8", "0x3")
        dpp("v_add_f32", out, D + 2, D + 3, "row_ror:8", "0xc")
    def poll(loads, tags, errslot, nx=0):
        L, D = a.label("poll"), a.label("polld")
        a("s_mov_b32 s27, %d" % (SPIN // 4 if nx else SPIN))
        if nx: a("s_mov_b32 s62, %d" % (nx - 1))
        a(L + ":")
        if stamps and errslot == 5 and not ack: stamp(12)
        for l in loads: a(l)
        if stamps: a("s_add_u32 s59, s59, %d" % (1 << (5 * errslot)))
        a("s_waitcnt vmcnt(0)")
        a("v_cmp_ne_u32 s[40:41], s26, v%d" % tags[0])
        for t in tags[1:]:
            a("v_cmp_ne_u32 s[42:43], s26, v%d\ns_or_b64 s[40:41], s[40:41], s[42:43]" % t)
        if not (nodep >> errslot) & 1:
            a("s_cmp_eq_u64 s[40:41], 0\ns_cbranch_scc1 %s" % D)
            if nx:
                a("s_sub_u32 s62, s62, 1\ns_cbranch_scc0 %s\ns_mov_b32 s62, %d\nbuffer_wbl2 sc1\ns_waitcnt vmcnt(0)" % (L, NXR - 1))
                if stamps: a("s_or_b32 s58, s58, 512")
            a("s_sub_u32 s27, s27, 1\ns_cbranch_scc0 %s" % L)
        if stamps: a("s_or_b32 s58, s58, %d" % (1 << errslot))
        a(D + ":")
    def lwait(flag, thr, vaddr, vtmp, extra=()):
        L, D = a.label("lw"), a.label("lwd")
        if nodep & 64 and flag in (F_QRDY, F_STRDY, F_HRDY): thr = "0"
        a("s_mov_b32 s27, %d" % (SPIN * 8))
        a(L + ":")
        a("ds_read_b32 v%d, v%d offset:%d" % (vtmp, vaddr, flag))
        for l in extra: a(l)
        a("s_waitcnt lgkmcnt(0)\nv_readfirstlane_b32 s40, v%d\ns_cmp_ge_u32 s40, %s\ns_cbranch_scc1 %s" % (vtmp, thr, D))
        if SLP: a("s_sleep %d" % SLP)
        a("s_sub_u32 s27, s27, 1\ns_cbranch_scc0 %s" % L)
        if stamps: a("s_or_b32 s58, s58, 256")
        a(D + ":")
    def srd(base, ptr, size):
        a("s_mov_b32 s%d, s%d\ns_mov_b32 s%d, s%d\ns_mov_b32 s%d, %d\ns_mov_b32 s%d, 0x00020000" % (base, ptr, base + 1, ptr + 1, base + 2, size, base + 3))
    def nonce():
        a("s_waitcnt lgkmcnt(0)\ns_mul_i32 s26, s26, 0x19660d\ns_add_u32 s26, s26, 0x3c6ef35f")
    def masks():
        for j, m in enumerate(("0x03030303", "0x0c0c0c0c", "0x30303030", "0xc0c0c0c0")):
            a("s_mov_b32 s%d, %s\ns_mov_b32 s%d, %s" % (32 + 2 * j, m, 33 + 2 * j, m))
        a("v_and_b32 v2, 1, v0\nv_lshlrev_b32 v2, 4, v2")
    a("s_cmp_ge_u32 s2, 256\ns_cbranch_scc1 .Lend")
    a("s_load_dwordx16 s[64:79], s[0:1], 0\ns_load_dwordx8 s[80:87], s[0:1], 64")
    if stamps: a("s_memrealtime s[88:89]")
    a("""
    v_lshrrev_b32 v1, 6, v0
    v_and_b32 v0, 63, v0
    v_readfirstlane_b32 s3, v1
    s_and_b32 s24, s2, 7
    s_lshl_b32 s24, s24, 2
    s_bfe_u32 s25, s2, 0x20003
    s_or_b32 s24, s24, s25
    s_lshr_b32 s25, s2, 5
    v_lshrrev_b32 v4, 3, v0
    v_and_b32 v5, 7, v0
    s_cmp_lt_u32 s3, 5
    s_cbranch_scc1 .Laux
    """)
    KV = 32
    Q = 8
    SC = 20
    VOFF, H = 1, 2
    OP = 28
    T0, T1, T2, T3 = 3, 4, 5, 6
    TM = 7
    a("""
    v_mul_u32_u24 v1, 384, v4
    v_lshl_add_u32 v1, v5, 4, v1
    s_sub_u32 s48, s3, 5
    s_mul_i32 s28, s24, 1572864
    s_mul_i32 s29, s25, 196608
    s_add_u32 s28, s28, s29
    s_mul_i32 s29, s48, 24576
    s_add_u32 s28, s28, s29
    s_add_u32 s29, s28, 6144
    s_add_u32 s30, s28, 12288
    s_add_u32 s31, s28, 18432
    s_waitcnt lgkmcnt(0)
    """)
    srd(4, 66, 50331648)
    st = dict(n=0, landed=0)
    def need(idx):
        if idx >= st["landed"]:
            a("s_waitcnt vmcnt(%d)" % (st["n"] - 1 - idx)); st["landed"] = idx + 1
    def kvload(throttle=True):
        n = st["n"]; i = n % 24; t, ln = i // 3, i % 3
        Tn = T if n < TT else TTT
        if throttle and n >= Tn: need(n - Tn)
        r = KV + 4 * i
        a("buffer_load_dwordx4 v[%d:%d], v%d, s[%d:%d], s%d offen offset:%d%s" % (r, r + 3, VOFF, 4 if n < 24 else 8, 7 if n < 24 else 11, 28 + t // 2, 3072 * (t & 1) + 128 * ln, NT))
        st["n"] += 1
        n = st["n"]
        if n in (G1, G2, G3):
            a("s_mov_b64 exec, 1\nv_mov_b32 v%d, 0\nv_mov_b32 v%d, %d\nds_max_u32 v%d, v%d offset:%d\ns_mov_b64 exec, -1" % (OP, OP + 1, n, OP, OP + 1, F_PROG))
        if n == 24 + PW:
            a("s_mov_b64 exec, 1\nv_mov_b32 v%d, 0\nv_mov_b32 v%d, 1\nds_add_u32 v%d, v%d offset:%d\ns_mov_b64 exec, -1" % (OP, OP + 1, OP, OP + 1, F_WOGO))
    for _ in range(T): kvload()
    a("s_load_dword s26, s[86:87], 0")
    srd(8, 68, 50331648); srd(12, 86, 268435456); srd(16, 64, 1280); srd(20, 82, 1280)
    zero_stamps()
    masks()
    a("v_mov_b32 v3, 0xffff\nv_lshlrev_b32 v2, v2, v3")
    a("v_lshlrev_b32 v6, 4, v5")
    a(".Ltouch_b:\ns_branch .Lbulk2\n.Lbulk2:")
    a("s_barrier")
    while st["n"] < P1: kvload()
    nonce()
    stamp(1)
    lwait(F_QRDY, "3", 6, T0, ["ds_read_b128 v[%d:%d], v6 offset:%d" % (Q + 4 * ln, Q + 4 * ln + 3, L_Q + 128 * ln) for ln in range(3)])
    stamp(2)
    def qk(t):
        if abl & 1: return
        acc = [T0, T1, T2]
        for j in range(4):
            for ln in range(3):
                a("v_dot2_f32_bf16 v%d, v%d, v%d, %s" % (acc[ln], KV + 12 * t + 4 * ln + j, Q + 4 * ln + j, "0" if j == 0 else "v%d" % acc[ln]))
        a("v_add_f32 v%d, v%d, v%d\nv_add_f32 v%d, v%d, v%d" % (T0, T0, T1, T0, T0, T2))
        red8("v_add_f32", [T0])
        rbf(T0, T0)
        a("v_mul_f32 v%d, %s, v%d" % (T0, SCALE, T0))
        rbf(SC + t, T0)
    tq = 0
    while tq < 8:
        did = 0
        while tq < 8 and did < 2 and 3 * tq + 2 < st["landed"]:
            qk(tq); tq += 1; did += 1
        if tq < 8:
            if st["n"] >= 24 and (st["n"] - 24) // 3 >= tq:
                need(3 * tq + 2)
            else:
                kvload()
    a("v_max3_f32 v%d, v%d, v%d, v%d" % (TM, SC, SC + 1, SC + 2))
    a("v_max3_f32 v%d, v%d, v%d, v%d" % (T0, SC + 3, SC + 4, SC + 5))
    a("v_max3_f32 v%d, v%d, v%d, v%d" % (TM, TM, SC + 6, SC + 7))
    a("v_max_f32 v%d, v%d, v%d" % (TM, TM, T0))
    redhi("v_max_f32", [(TM, T0)])
    a("v_mul_f32 v%d, %s, v%d" % (T1, LOG2E, TM))
    a("s_mov_b32 s49, %s" % LOG2E)
    for t in range(8): a("v_fma_f32 v%d, v%d, s49, -v%d" % (SC + t, SC + t, T1))
    for t in range(8): a("v_exp_f32 v%d, v%d" % (SC + t, SC + t))
    a("v_add_f32 v%d, v%d, v%d\nv_add_f32 v%d, v%d, v%d" % (T2, SC, SC + 1, T3, SC + 2, SC + 3))
    a("v_add_f32 v%d, v%d, v%d\nv_add_f32 v%d, v%d, v%d" % (T2, T2, SC + 4, T3, T3, SC + 5))
    a("v_add_f32 v%d, v%d, v%d\nv_add_f32 v%d, v%d, v%d" % (T2, T2, SC + 6, T3, T3, SC + 7))
    S4 = Q
    a("v_add_f32 v%d, v%d, v%d" % (S4 + 1, T2, T3))
    redhi("v_add_f32", [(S4 + 1, T0)])
    a("v_mov_b32 v%d, v%d\nv_mov_b32 v%d, 0\nv_mov_b32 v%d, 1\ns_lshl_b32 s50, s48, 3\nv_mov_b32 v%d, s50" % (S4, TM, T3, S4 + 2, S4 + 3))
    a("s_mov_b64 exec, 1\nds_write_b64 v%d, v[%d:%d] offset:%d\nds_add_u32 v%d, v%d offset:%d\ns_mov_b64 exec, -1" % (S4 + 3, S4, S4 + 1, L_WST, T3, S4 + 2, F_STC))
    stamp(3)
    while st["n"] < 48: kvload()
    a("""
    v_and_b32 v1, 7, v0
    v_lshlrev_b32 v1, 3, v1
    v_bfe_u32 v5, v0, 4, 1
    v_lshl_add_u32 v1, v5, 2, v1
    v_bfe_u32 v5, v0, 3, 1
    v_lshl_add_u32 v1, v5, 1, v1
    v_bfe_u32 v5, v0, 5, 1
    v_add_u32 v1, v5, v1
    s_lshl_b32 s49, s48, 8
    """)
    PA = [28, 29, 30]
    stamp(4)
    lwait(F_STRDY, "1", T3, T0, ["ds_read_b64 v[%d:%d], v%d offset:%d" % (T1, T2, T3, L_ST)])
    a("s_mov_b32 s52, s40")
    stamp(5)
    a("v_sub_f32 v%d, v%d, v%d\nv_mul_f32 v%d, %s, v%d\nv_exp_f32 v%d, v%d\nv_mul_f32 v%d, v%d, v%d" % (T0, TM, T1, T0, LOG2E, T0, T0, T0, TM, T0, T2))
    for t in range(8):
        a("v_mul_f32 v%d, v%d, v%d" % (T0, SC + t, TM))
        operand(OP, T0, H, T1)
        for ln in range(3):
            need(24 + 3 * t + ln)
            mfma(Q + 4 * ln, OP, KV + 12 * t + 4 * ln, t == 0)
        if t == 6:
            PA[:] = [SC + 3, SC + 4, SC + 5]
            for ln in range(3):
                a("v_add_u32 v%d, %d, v1\nv_mul_u32_u24 v5, 171, v%d\nv_lshrrev_b32 v5, 9, v5\nv_add3_u32 v%d, v%d, v5, s49\nv_lshlrev_b32 v%d, 2, v%d" % (PA[ln], 64 * ln, PA[ln], PA[ln], PA[ln], PA[ln], PA[ln]))
            a("v_lshlrev_b32 v6, 4, v0\nv_lshlrev_b32 v5, 7, v0\ns_lshl_b32 s50, s24, 13\ns_lshl_b32 s51, s25, 4\ns_add_u32 s50, s50, s51\ns_add_u32 s50, s50, %d" % WS_O)
    stamp(6)
    for ln in range(3): fold1(Q + 4 * ln, SC + ln)
    for ln in range(3): a("ds_write_b32 v%d, v%d offset:%d" % (PA[ln], SC + ln, L_PART))
    a("v_mov_b32 v11, s26\ns_waitcnt lgkmcnt(0)")
    a("s_barrier")
    a("s_cmp_ge_u32 s48, 1\ns_cbranch_scc1 .Lbulk_opub")
    for k in range(8): a("ds_read_b128 v[%d:%d], v6 offset:%d" % (32 + 4 * k, 35 + 4 * k, L_PART + 1024 * k))
    for st_, wv in ((4, 4), (8, 0), (16, 0)):
        for k in range(0, 32, 2 * st_):
            if st_ == 4: a("s_waitcnt lgkmcnt(%d)" % (6 - k // 4))
            d = 8 if st_ == 16 else 32 + k
            a("v_pk_add_f32 v[%d:%d], v[%d:%d], v[%d:%d]\nv_add_f32 v%d, v%d, v%d" % (d, d + 1, 32 + k, 33 + k, 32 + k + st_, 33 + k + st_, d + 2, 34 + k, 34 + k + st_))
    a("s_cmp_eq_u32 s52, 1\ns_cbranch_scc0 .Lbulk_opy\nbuffer_store_dwordx4 v[8:11], v5, s[12:15], s50 offen\ns_branch .Lbulk_opub")
    a(".Lbulk_opy:\nbuffer_store_dwordx4 v[8:11], v5, s[12:15], s50 offen sc1")
    a(".Lbulk_opub:")
    stamp(7)
    a("s_cmp_ge_u32 s2, %d\ns_cbranch_scc1 .Lbulk_end" % NRED)
    a("""
    v_and_b32 v31, 3, v0
    v_lshlrev_b32 v31, 4, v31
    s_lshr_b32 s49, s2, 3
    s_lshl_b32 s49, s49, 7
    s_and_b32 s50, s2, 1
    s_lshl_b32 s50, s50, 6
    s_add_u32 s49, s49, s50
    s_and_b32 s50, s2, 6
    s_lshl_b32 s50, s50, 1
    s_add_u32 s49, s49, s50
    buffer_load_dword v30, v31, s[16:19], s49 offen
    """)
    a("v_lshlrev_b32 v1, 4, v0\ns_lshl_b32 s50, s2, 14\ns_lshl_b32 s51, s48, 11\ns_add_u32 s50, s50, s51\ns_add_u32 s50, s50, %d" % WS_A)
    a("v_lshlrev_b32 v3, 3, v0\ns_lshl_b32 s51, s48, 5\nv_add_u32 v3, s51, v3")
    a("s_lshl_b32 s51, s2, 12\ns_lshl_b32 s52, s48, 9\ns_add_u32 s51, s51, s52\ns_add_u32 s51, s51, %d" % WS_B)
    a("v_mov_b32 v8, 0\nv_mov_b32 v9, 0\nv_mov_b32 v12, 0\nv_mov_b32 v13, 0\ns_mov_b64 s[44:45], -1\ns_mov_b64 s[46:47], -1\ns_mov_b32 s52, -1\ns_mov_b32 s53, 0")
    MS = (52, 44, 46)
    def aissue(k):
        R = 32 + 12 * k
        if stamps: stamp(11); a("s_add_u32 s59, s59, %d" % (1 << 20))
        a("s_or_b64 exec, s[52:53], 1\nbuffer_load_dwordx4 v[%d:%d], v1, s[12:15], s51 offen sc1" % (R, R + 3))
        a("s_or_b64 exec, s[44:45], 1\nbuffer_load_dwordx4 v[%d:%d], v1, s[12:15], s50 offen sc1" % (R + 4, R + 7))
        a("s_or_b64 exec, s[46:47], 1\nbuffer_load_dwordx4 v[%d:%d], v1, s[12:15], s50 offen offset:1024 sc1" % (R + 8, R + 11))
    def acheck(k, w, br=True):
        for j in range(3):
            R, M, AC = 32 + 12 * k + 4 * j, MS[j], 12 if j == 0 else 8
            a("s_mov_b64 exec, s[%d:%d]\ns_waitcnt vmcnt(%d)" % (M, M + 1, w + 2 - j))
            a("v_cmp_eq_u32 vcc, s26, v%d\nv_cmp_eq_u32 s[42:43], s26, v%d\ns_and_b64 exec, vcc, s[42:43]" % (R + 1, R + 3))
            a("v_add_f32 v%d, v%d, v%d\nv_add_f32 v%d, v%d, v%d\ns_andn2_b64 s[%d:%d], s[%d:%d], exec" % (AC, AC, R, AC + 1, AC + 1, R + 2, M, M + 1, M, M + 1))
        if br: a("s_or_b64 s[40:41], s[44:45], s[46:47]\ns_or_b64 s[40:41], s[40:41], s[52:53]\ns_cbranch_scc0 .Lag_done")
    if early:
        aissue(0); acheck(0, 0, False)
    a("s_barrier")
    stamp(8)
    a("s_mov_b32 s27, %d" % SPIN)
    if early: a("s_branch .Lag_0")
    a(".Lag_1:")
    aissue(0); acheck(0, 0)
    a(".Lag_0:")
    if NS > 1:
        a("s_bcnt1_i32_b64 s40, s[44:45]\ns_bcnt1_i32_b64 s41, s[46:47]\ns_add_u32 s40, s40, s41\ns_cmp_le_u32 s40, %d\ns_cbranch_scc1 .Lag_2" % TH)
    a("s_sub_u32 s27, s27, 1\ns_cbranch_scc0 .Lag_1")
    if NS > 1:
        a("s_branch .Lag_fail\n.Lag_2:")
        for k in range(NS - 1): aissue(k)
        a(".Lag_3:")
        for k in range(NS):
            aissue((k + NS - 1) % NS)
            acheck(k, 3 * (NS - 1))
        a("s_sub_u32 s27, s27, 1\ns_cbranch_scc0 .Lag_3\n.Lag_fail:")
    if stamps: a("s_or_b32 s58, s58, 16")
    a(".Lag_done:\ns_mov_b64 exec, -1")
    stamp(9)
    for r in (8, 9, 12, 13): dpp("v_add_f32", r, r, r, "row_ror:4")
    redhi("v_add_f32", [(8, 10), (9, 11), (12, 14), (13, 15)])
    a("s_mov_b64 exec, 15\nds_write_b64 v3, v[8:9] offset:%d\nds_write_b64 v3, v[12:13] offset:%d\ns_mov_b64 exec, -1\ns_waitcnt lgkmcnt(0)" % (L_RED, L_REDB))
    a("s_barrier")
    a("s_cmp_lg_u32 s48, 0\ns_cbranch_scc1 .Lbulk_end")
    a("v_lshlrev_b32 v3, 3, v0\nds_read_b64 v[8:9], v3 offset:%d" % L_RED)
    a("v_lshlrev_b32 v14, 16, v30\nv_and_b32 v15, 0xffff0000, v30\ns_waitcnt lgkmcnt(0)")
    for ctl in ("row_ror:4", "row_ror:8"):
        for r in (8, 9): dpp("v_add_f32", r, r, r, ctl)
    a("v_mov_b32 v10, v8\nv_mov_b32 v11, v9\nv_permlane16_swap_b32 v8, v10\nv_permlane16_swap_b32 v9, v11\nv_add_f32 v8, v8, v10\nv_add_f32 v9, v9, v11")
    a("v_cvt_pk_bf16_f32 v8, v8, v9\nv_mov_b32 v12, v8\nv_permlane32_swap_b32 v8, v12")
    a("v_and_b32 v9, 0xffff0000, v8\nv_lshlrev_b32 v8, 16, v8\nv_add_f32 v8, v8, v14\nv_add_f32 v9, v9, v15")
    a("v_and_b32 v13, 0xffff0000, v12\nv_lshlrev_b32 v12, 16, v12")
    a("v_cvt_pk_bf16_f32 v8, v8, v9\nv_and_b32 v9, 0xffff0000, v8\nv_lshlrev_b32 v8, 16, v8\nv_add_f32 v8, v8, v12\nv_add_f32 v9, v9, v13")
    a("v_cvt_pk_bf16_f32 v8, v8, v9")
    a("s_mov_b64 exec, 15\nbuffer_store_dword v8, v31, s[20:23], s49 offen")
    a("s_cmp_lg_u32 s2, 0\ns_cbranch_scc1 .Lbulk_end")
    a("s_mov_b64 exec, 1\nv_mov_b32 v9, s26\nv_mov_b32 v1, 0\nbuffer_store_dword v9, v1, s[12:15], 0 offen sc1")
    a(".Lbulk_end:")
    stamp(10)
    flush_stamps(range(1, 12))
    a("s_endpgm")

    a(".Laux:\ns_setprio %d" % (0 if abl & 4 else 3))
    W1 = 32
    W2 = 76
    XF = 8
    C = 13
    G = 100
    AOP = 24
    ACC = 116
    Z = 124
    ONE = 127
    SH = 2
    a("v_mov_b32 v%d, 0\nv_mov_b32 v%d, 0\nv_mov_b32 v%d, 0\nv_mov_b32 v%d, 1\nv_lshlrev_b32 v1, 2, v0\nv_and_b32 v3, 60, v1" % (Z, Z + 1, Z + 2, ONE))
    a("ds_write_b32 v3, v%d offset:%d\nds_write_b32 v3, v%d offset:%d" % (Z, L_FLAG, Z, L_XN + 1280))
    a("""
    s_cmp_lt_u32 s3, 3
    s_cbranch_scc1 .Laux_q
    s_and_b32 s52, s24, 3
    s_lshl_b32 s52, s52, 1
    s_sub_u32 s53, s3, 3
    s_add_u32 s52, s52, s53
    s_mul_i32 s48, s52, 80
    s_lshr_b32 s53, s24, 2
    s_mul_i32 s53, s53, 3
    s_add_u32 s53, s53, s25
    s_sub_u32 s54, s53, 3
    s_cmp_ge_u32 s25, 3
    s_cselect_b32 s53, s54, s53
    s_cselect_b32 s54, 98304, 0
    s_lshl_b32 s49, s53, 7
    s_movk_i32 s50, 3072
    s_mul_i32 s51, s52, 12288
    s_lshl_b32 s53, s53, 9
    s_add_u32 s51, s51, s53
    s_mov_b32 s53, s54
    s_add_u32 s51, s51, s54
    s_add_u32 s51, s51, %d
    s_add_u32 s6, s48, 80
    s_waitcnt lgkmcnt(0)
    s_cmp_eq_u32 s53, 0
    s_cselect_b32 s4, s76, s78
    s_cselect_b32 s5, s77, s79
    s_branch .Laux_p
    .Laux_q:
    s_mul_i32 s48, s25, %d
    s_add_u32 s6, s48, %d
    s_mul_i32 s52, s25, %d
    s_add_u32 s52, s52, %d
    s_add_u32 s53, s52, %d
    s_cmp_ge_u32 s25, 6
    s_cselect_b32 s48, s52, s48
    s_cselect_b32 s6, s53, s6
    s_mul_i32 s49, s24, 384
    s_lshl_b32 s53, s3, 7
    s_add_u32 s49, s49, s53
    s_movk_i32 s50, 12288
    s_mul_i32 s51, s24, 12288
    s_mul_i32 s52, s25, 1536
    s_add_u32 s51, s51, s52
    s_lshl_b32 s53, s3, 9
    s_add_u32 s51, s51, s53
    s_add_u32 s51, s51, %d
    s_waitcnt lgkmcnt(0)
    s_mov_b32 s4, s70
    s_mov_b32 s5, s71
    .Laux_p:
    s_mul_i32 s6, s6, s50
    s_mov_b32 s7, 0x00020000
    """ % (WS_GU, QA, QA, QB, 6 * QA - 6 * QB, QB, WS_Q))
    srd(16, 64, 1280)
    a("s_cmp_lt_u32 s3, 3\ns_cbranch_scc1 .Laux_s1\ns_cmp_ge_u32 s25, 6\ns_cbranch_scc1 .Laux_s1skip")
    a(".Laux_s1:")
    for j in range(5): a("buffer_load_dword v%d, v1, s[16:19], 0 offen offset:%d" % (XF + j, 256 * j))
    a("v_mul_lo_u32 v6, v4, s50\nv_lshl_add_u32 v6, v5, 4, v6\ns_mul_i32 s52, s48, s50\ns_add_u32 s52, s52, s49\ns_lshl_b32 s50, s50, 3")
    if abl & 2: a("s_mov_b32 s6, 0")
    for t in range(NT1):
        a("buffer_load_dwordx4 v[%d:%d], v6, s[4:7], s52 offen%s" % (W1 + 4 * t, W1 + 4 * t + 3, NT))
        if t < NT1 - 1: a("s_add_u32 s52, s52, s50")
    a(".Laux_s1skip:\n.Ltouch_a:\n.Laux2:")
    a("s_barrier")
    a("s_load_dword s26, s[86:87], 0")
    if abl & 32: a("s_endpgm")
    srd(8, 72, 0 if abl & 16 else 7864320); srd(12, 86, 268435456); srd(20, 80, 0 if abl & 8 else 1966080)
    zero_stamps()
    masks()
    a("s_lshl_b32 s55, s24, 1\ns_add_u32 s55, s55, s25\ns_sub_u32 s55, s55, 6")
    a("s_cmp_lt_u32 s3, 3\ns_cbranch_scc1 .Laux_ln\ns_cmp_ge_u32 s25, 6\ns_cbranch_scc1 .Laux_pub_skip")
    a(".Laux_ln:\ns_waitcnt vmcnt(%d)" % NT1)
    stamp(1)
    U = G
    for j in range(5): a("v_lshlrev_b32 v%d, 16, v%d\nv_and_b32 v%d, 0xffff0000, v%d" % (U + 2 * j, XF + j, U + 2 * j + 1, XF + j))
    a("v_add_f32 v13, v%d, v%d" % (U, U + 1))
    for j in range(2, 10): a("v_add_f32 v13, v13, v%d" % (U + j))
    redall("v_add_f32", [(13, 14)])
    a("v_mul_f32 v13, 0x3acccccd, v13")
    a("v_sub_f32 v15, v%d, v13\nv_mul_f32 v14, v15, v15" % U)
    for j in range(1, 10): a("v_sub_f32 v15, v%d, v13\nv_fma_f32 v14, v15, v15, v14" % (U + j))
    redall("v_add_f32", [(14, 15)])
    a("v_mul_f32 v14, 0x3acccccd, v14")
    rbf(14, 14); a("v_add_f32 v14, 0x3727c5ac, v14"); rbf(14, 14)
    a("v_sqrt_f32 v14, v14"); rbf(14, 14); a("v_rcp_f32 v14, v14")
    rbf(13, 13)
    for j in range(10): a("v_sub_f32 v%d, v%d, v13" % (U + j, U + j))
    for j in range(5):
        a("v_cvt_pk_bf16_f32 v%d, v%d, v%d" % (XF + j, U + 2 * j, U + 2 * j + 1))
        a("v_lshlrev_b32 v%d, 16, v%d\nv_and_b32 v%d, 0xffff0000, v%d" % (U + 2 * j, XF + j, U + 2 * j + 1, XF + j))
        a("v_mul_f32 v%d, v%d, v14\nv_mul_f32 v%d, v%d, v14" % (U + 2 * j, U + 2 * j, U + 2 * j + 1, U + 2 * j + 1))
        a("v_cvt_pk_bf16_f32 v%d, v%d, v%d" % (XF + j, U + 2 * j, U + 2 * j + 1))
        a("ds_write_b32 v1, v%d offset:%d" % (XF + j, L_XN + 256 * j))
    a("v_add_lshl_u32 v3, v4, s48, 1")
    for t in range(NT1): a("ds_read_u16 v%d, v3 offset:%d" % (C + t, L_XN + 16 * t))
    nonce()
    stamp(2)
    for t in range(NT1):
        op = AOP + 4 * (t & 1)
        operand16(op, C + t, SH)
        a("s_waitcnt vmcnt(%d)" % (NT1 - 1 - t))
        mfma(ACC, op, W1 + 4 * t, t == 0)
    a("v_lshlrev_b32 v1, 4, v0")
    fold1(ACC, 36)
    a("v_mov_b32 v37, s26\nv_mov_b32 v39, s26\nv_permlane32_swap_b32 v36, v38")
    a("s_mov_b32 exec_hi, 0\nbuffer_store_dwordx4 v[36:39], v1, s[12:15], s51 offen")
    a("s_mov_b64 exec, -1")
    stamp(3)
    a("s_branch .Laux_pub_done\n.Laux_pub_skip:")
    nonce()
    a(".Laux_pub_done:")
    def stage2_loads(srdb, voffs, step):
        for t in range(3):
            for ln in range(2):
                r = W2 + 8 * t + 4 * ln
                a("buffer_load_dwordx4 v[%d:%d], v%d, s[%d:%d], s52 offen offset:%d%s" % (r, r + 3, voffs[t], srdb, srdb + 3, 128 * ln, NT))
            if t < 2 and step: a("s_add_u32 s52, s52, %d" % step)
    a("s_cmp_lt_u32 s25, 6\ns_cbranch_scc1 .Laux_nowdl")
    a("s_mul_i32 s56, s55, 24")
    for t in range(3):
        r = 16 + t
        a("v_add_u32 v3, s56, v4\nv_and_b32 v%d, 0xffffffc1, v3\nv_bfe_u32 v6, v3, 1, 3\nv_lshl_or_b32 v%d, v6, 3, v%d\nv_bfe_u32 v6, v3, 4, 2\nv_lshl_or_b32 v%d, v6, 1, v%d" % (r, r, r, r, r))
        a("v_mul_u32_u24 v%d, 1280, v%d\nv_lshl_add_u32 v%d, v5, 4, v%d" % (r, r, r, r))
        if t < 2: a("s_add_u32 s56, s56, 8")
    a("s_lshl_b32 s52, s3, 8")
    stage2_loads(20, [16, 17, 18], 0)
    a(".Laux_nowdl:")
    a("v_lshrrev_b32 v3, 2, v0\nv_and_b32 v6, 3, v0\nv_lshlrev_b32 v6, 4, v6\nv_lshl_add_u32 v19, v3, 12, v6\nv_lshl_add_u32 v20, v3, 14, v6\nv_lshlrev_b32 v12, 1, v4")
    a("v_and_b32 v13, 15, v0\nv_lshrrev_b32 v14, 4, v0")
    a("s_cmp_ge_u32 s3, 3\ns_cbranch_scc1 .Laux_qdone")
    a("v_and_b32 v1, 31, v0\nv_lshlrev_b32 v1, 4, v1\nv_lshrrev_b32 v3, 5, v0\nv_mul_u32_u24 v3, 1536, v3\nv_add_u32 v1, v1, v3")
    a("s_mul_i32 s52, s24, 12288\ns_lshl_b32 s53, s3, 9\ns_add_u32 s52, s52, s53\ns_add_u32 s52, s52, %d\ns_add_u32 s53, s52, 6144" % WS_Q)
    a("v_lshlrev_b32 v6, 4, v5\nv_bfe_u32 v3, v0, 4, 1\nv_lshl_add_u32 v6, v3, 3, v6\nv_bfe_u32 v3, v0, 3, 1\nv_lshl_add_u32 v6, v3, 2, v6\ns_lshl_b32 s54, s3, 7\nv_add_u32 v6, s54, v6")
    lwait(F_PROG, str(G1), Z, 3)
    poll(["buffer_load_dwordx4 v[%d:%d], v1, s[12:15], s%d offen offset:%d sc1" % (G + 4 * i, G + 4 * i + 3, 52 + i // 2, 3072 * (i & 1)) for i in range(4)], [G + 2 * i + 1 for i in range(8)], 0, NXQ)
    for e in (0, 2): a("v_add_f32 v%d, v%d, v%d\nv_add_f32 v%d, v%d, v%d" % (G + e, G + e, G + 4 + e, G + 8 + e, G + 8 + e, G + 12 + e))
    for e in (0, 2): a("v_add_f32 v%d, v%d, v%d" % (G + e, G + e, G + 8 + e))
    redsw("v_add_f32", [(G, G + 1), (G + 2, G + 3)], ("v_permlane32_swap_b32",))
    a("v_cvt_pk_bf16_f32 v%d, v%d, v%d\nds_write_b32 v6, v%d offset:%d" % (G, G, G + 2, G, L_Q))
    a("s_waitcnt lgkmcnt(0)\ns_mov_b64 exec, 1\nds_add_u32 v%d, v%d offset:%d\ns_mov_b64 exec, -1" % (Z, ONE, F_QRDY))
    stamp(4)
    a(".Laux_qdone:")
    a("s_cmp_lt_u32 s25, 6\ns_cbranch_scc1 .Laux_wddone")
    a("s_cmp_lg_u32 s3, 3\ns_cbranch_scc1 .Laux_hwait")
    a("v_mul_u32_u24 v1, 12288, v14\nv_lshl_add_u32 v1, v13, 4, v1\ns_mul_i32 s52, s55, 192\ns_add_u32 s52, s52, %d\ns_add_u32 s53, s52, 49152\ns_add_u32 s54, s52, 98304\ns_add_u32 s57, s52, 147456\nv_lshlrev_b32 v6, 2, v13" % WS_GU)
    lwait(F_PROG, str(G3), Z, 3)
    a("s_mov_b32 exec_lo, %s\ns_mov_b32 exec_hi, %s" % (M12, M12))
    poll(["buffer_load_dwordx4 v[%d:%d], v1, s[12:15], s%d offen sc1" % (G + 4 * i, G + 4 * i + 3, [52, 53, 54, 57][i]) for i in range(4)], [G + 2 * i + 1 for i in range(8)], 1)
    for e in (0, 2): a("v_add_f32 v%d, v%d, v%d\nv_add_f32 v%d, v%d, v%d" % (G + e, G + e, G + 4 + e, G + 8 + e, G + 8 + e, G + 12 + e))
    redrows("v_add_f32", [(G, G + 1), (G + 2, G + 3), (G + 8, G + 9), (G + 10, G + 11)])
    for r in (G, G + 2, G + 8, G + 10): rbf(r, r)
    for e in (0, 2):
        g, u = G + e, G + 8 + e
        a("v_mul_f32 v%d, 0xbfb8aa3b, v%d\nv_exp_f32 v%d, v%d\nv_add_f32 v%d, 1.0, v%d\nv_rcp_f32 v%d, v%d" % (g, g, g, g, g, g, g, g))
        rbf(g, g)
        a("v_mul_f32 v%d, v%d, v%d" % (g, g, u))
    a("v_cvt_pk_bf16_f32 v%d, v%d, v%d\nds_write_b32 v6, v%d offset:%d" % (G, G, G + 2, G, L_H))
    a("s_waitcnt lgkmcnt(0)\ns_mov_b64 exec, 1\nds_write_b32 v%d, v%d offset:%d\ns_mov_b64 exec, -1" % (Z, ONE, F_HRDY))
    a(".Laux_hwait:")
    def stage2(R, f32=False):
        for t in range(3):
            op = AOP + 4 * t
            if f32: operand(op, G + t, 22, G + t)
            else: operand16(op, G + t, SH)
            mfma(ACC, op, W2 + 8 * t, t == 0)
            mfma(ACC + 4, op, W2 + 8 * t + 4, t == 0)
        for r in range(4): a("v_permlane32_swap_b32 v%d, v%d" % (ACC + r, ACC + 4 + r))
        X, Y = ACC, ACC + 4
        dpp("v_add_f32", R, Y + 0, X + 0, "row_ror:8", "0x3")
        dpp("v_add_f32", R + 2, Y + 1, X + 1, "row_ror:8", "0x3")
        dpp("v_add_f32", R, X + 2, Y + 2, "row_ror:8", "0xc")
        dpp("v_add_f32", R + 2, X + 3, Y + 3, "row_ror:8", "0xc")
    BST = "buffer_store_dwordx4 v[40:43], v19, s[12:15], s56 offen sc1"
    a("s_lshl_b32 s56, s3, 16\ns_lshl_b32 s53, s55, 6\ns_add_u32 s56, s56, s53\ns_add_u32 s56, s56, %d\nv_mov_b32 v41, s26\nv_mov_b32 v43, s26" % WS_B)
    lwait(F_HRDY, "1", Z, 3, ["ds_read_u16 v%d, v12 offset:%d" % (G + t, L_H + 16 * t) for t in range(3)])
    a("s_waitcnt vmcnt(0)")
    stage2(40)
    if not bdef: a(BST)
    stamp(5)
    a(".Laux_wddone:")
    a("s_cmp_lg_u32 s3, 4\ns_cbranch_scc1 .Laux_s2")
    a("v_lshlrev_b32 v1, 4, v0\nv_lshlrev_b32 v6, 3, v0\ns_lshl_b32 s52, s24, 10\ns_add_u32 s52, s52, %d\ns_lshl_b32 s53, s25, 7\ns_add_u32 s53, s53, s52\ns_getreg_b32 s57, hwreg(HW_REG_XCC_ID, 0, 4)\nv_mov_b32 v%d, s57\nv_mov_b32 v%d, s26" % (WS_ST, G + 6, G + 7))
    lwait(F_STC, "8", Z, 3, ["ds_read_b64 v[%d:%d], v6 offset:%d" % (G + 4, G + 5, L_WST)])
    a("s_mov_b64 exec, 0xff\nbuffer_store_dwordx4 v[%d:%d], v1, s[12:15], s53 offen" % (G + 4, G + 7))
    a("s_mov_b64 exec, -1")
    stamp(4)
    lwait(F_PROG, str(G2), Z, 3)
    stamp(6)
    poll(["buffer_load_dwordx4 v[%d:%d], v1, s[12:15], s52 offen sc1" % (G, G + 3)], [G + 3], 3, NXQ)
    a("v_cmp_ne_u32 s[40:41], s57, v%d\nv_mov_b32 v21, 1\ns_cmp_eq_u64 s[40:41], 0\ns_cbranch_scc1 .Laux_same\nbuffer_wbl2 sc1\nv_mov_b32 v21, 2\ns_waitcnt vmcnt(0)\n.Laux_same:" % (G + 2))
    a("v_mov_b32 v16, v%d" % G)
    redall("v_max_f32", [(16, 18)])
    a("v_sub_f32 v17, v%d, v16\nv_mul_f32 v17, %s, v17\nv_exp_f32 v17, v17\nv_mul_f32 v17, v17, v%d" % (G, LOG2E, G + 1))
    redall("v_add_f32", [(17, 18)])
    a("v_rcp_f32 v17, v17\ns_mov_b64 exec, 1\nds_write_b64 v%d, v[16:17] offset:%d\ns_waitcnt lgkmcnt(0)\nds_write_b32 v%d, v21 offset:%d\ns_mov_b64 exec, -1" % (Z, L_ST, Z, F_STRDY))
    a(".Laux_s2:")
    stamp(7)
    a("v_mul_u32_u24 v7, 3840, v4\nv_lshl_add_u32 v7, v5, 4, v7")
    a("s_mul_i32 s52, s24, 192\ns_mul_i32 s53, s25, 24\ns_add_u32 s52, s52, s53\ns_mul_i32 s52, s52, 1280\ns_lshl_b32 s53, s3, 8\ns_add_u32 s52, s52, s53")
    a("v_lshlrev_b32 v17, 4, v0\ns_lshl_b32 s54, s24, 13\ns_lshl_b32 s53, s25, 10\ns_add_u32 s54, s54, s53\ns_add_u32 s54, s54, %d" % WS_O)
    a("v_mov_b32 v9, s26\nv_mov_b32 v11, s26\nv_mov_b32 v22, 0xffff\nv_lshlrev_b32 v22, v%d, v22" % SH)
    if aslot == 0: a("s_lshl_b32 s60, s3, 18\ns_lshl_b32 s53, s24, 9\ns_add_u32 s60, s60, s53\ns_lshl_b32 s53, s25, 6\ns_add_u32 s60, s60, s53\ns_add_u32 s60, s60, %d" % WS_A)
    if aslot == 1: a("s_lshl_b32 s60, s3, 18\ns_and_b32 s53, s24, 15\ns_lshl_b32 s53, s53, 10\ns_add_u32 s60, s60, s53\ns_lshl_b32 s53, s25, 7\ns_add_u32 s60, s60, s53\ns_lshr_b32 s53, s24, 4\ns_lshl_b32 s53, s53, 6\ns_add_u32 s60, s60, s53\ns_add_u32 s60, s60, %d" % WS_A)
    if aslot == 2: a("s_lshl_b32 s60, s3, 18\ns_lshl_b32 s53, s2, 6\ns_add_u32 s60, s60, s53\ns_add_u32 s60, s60, %d" % WS_A)
    cw = [int(c) for c in "%05d" % CW]
    a("s_lshl_b32 s53, s3, 2\ns_lshr_b32 s61, 0x%x, s53\ns_and_b32 s61, s61, 15" % sum(c << (4 * i) for i, c in enumerate(cw)))
    lwait(F_WOGO, "s61", Z, 3)
    stage2_loads(8, [7, 7, 7], 1280)
    stamp(8)
    a("s_barrier")
    stamp(9)
    poll(["buffer_load_dwordx4 v[%d:%d], v17, s[12:15], s54 offen sc1" % (G, G + 3)], [G + 3], 5)
    stamp(10)
    if bdef: a("s_cmp_lt_u32 s25, 6\ns_cbranch_scc1 .Laux_nob\n%s\n.Laux_nob:" % BST)
    red8("v_add_f32", [G, G + 1, G + 2])
    stage2(8, True)
    a("buffer_store_dwordx4 v[8:11], v20, s[12:15], s60 offen sc1")
    stamp(11)
    if gue: a("s_cmp_lt_u32 s3, 3\ns_cbranch_scc1 .Laux_nogu\ns_cmp_ge_u32 s25, 6\ns_cbranch_scc1 .Laux_nogu\ns_mov_b32 exec_hi, 0\nbuffer_store_dwordx4 v[36:39], v17, s[12:15], s51 offen sc1\n.Laux_nogu:")
    if ack: a("s_waitcnt vmcnt(0)"); stamp(12)
    a("s_cmp_ge_u32 s2, %d\ns_cbranch_scc1 .Laux_end\ns_barrier" % NRED)
    a(".Laux_end:")
    flush_stamps(range(1, 13))
    a(".Lend:\ns_endpgm")
    i0, i1 = a.l.index(".Lbulk2:"), a.l.index(".Laux:")
    a.l = a.l[:i0] + a.l[i1:] + a.l[i0:i1]
    base = a.l
    def build(np_):
        l = list(base)
        tb, ta = [], []
        for k in range(np_):
            wv = 5 + k if k < 8 else 12 - k
            (tb if k < 8 else ta).extend(["    s_cmp_eq_u32 s3, %d" % wv, "    s_cbranch_scc1 .Lpad_%d" % k])
        i = l.index(".Ltouch_b:"); l[i:i + 1] = tb
        i = l.index(".Ltouch_a:"); l[i:i + 1] = ta
        l += [".Lpad_%d:" % k for k in range(np_)]
        l, n = hazard.fix(l)
        return l[:len(l) - np_]
    np_ = 0
    while True:
        l = build(np_)
        if not warm: break
        l, k = pads.add(l, [".Lbulk2"] * 8 + [".Laux2"] * 5, WIN)
        if k == np_: break
        assert k > np_
        np_ = k
    a.l, n = hazard.fix(l)
    assert n == 0
    return a.text(256, 832, LDS_BYTES, 128)

if __name__ == "__main__":
    out = sys.argv[1]
    kw = dict(x.split("=") for x in sys.argv[2:])
    kw = {k: int(v) for k, v in kw.items()}
    open(out, "w").write(gen(**kw))
```

```python
import sys
from asmlib import *
import hazard, pads

WS_Q, WS_GU, WS_ST, WS_O, WS_B, WS_A = 0x10000, 0x80000, 0xC0000, 0x100000, 0x180000, 0x200000
L_Q, L_ST, L_FLAG, L_PART, L_RED, L_REDB = 0, 384, 448, 512, 8704, 8960
L_XN, L_H, L_WST = 9216, 10560, 10624
F_PROG, F_QRDY, F_STRDY, F_WOGO, F_HRDY, F_STC, F_MODE = [L_FLAG + 4 * i for i in range(7)]
LDS_BYTES = 11136
SPIN = 40000
LOG2E = "0x3fb8aa3b"
SCALE = "0x3d93cd3a"
M12 = "0x0fff0fff"

def gen(T=4, P1=20, PW=8, CW=88888, G1=12, G3=16, G2=36, stamps=0, NRED=80, SLP=0, dbgst=0, pol=0, QA=88, QB=56, TT=48, TTT=24, nodep=0, ack=0, pre=0, abl=0, NS=4, TH=32, NXQ=24, NXR=3, gue=1, early=0, bdef=1, aslot=0, warm=1, WIN=1280):
    a = Asm()
    NT = [" nt", "", " sc1 nt", " sc0 sc1 nt", " sc1", " sc0 sc1", " sc0 nt"][pol]
    assert 6 * QA + 2 * QB == 640 and QA % 8 == 0 and QB % 8 == 0
    NT1 = max(QA, QB, 80) // 8
    def stamp(k):
        if stamps: a("s_memrealtime s[%d:%d]" % (64 + 2 * k - 2, 64 + 2 * k - 1))
    def flush_stamps(ks):
        if dbgst >= 2 and len(ks) == 11:
            a("s_cmp_lg_u32 s3, 5\ns_cbranch_scc1 .Lend\ns_add_u32 s88, s88, %d\ns_mov_b32 s9, 100000" % dbgst)
            if pre == 1: a("s_waitcnt vmcnt(0)\nbuffer_wbl2 sc1\ns_waitcnt vmcnt(0)")
            if pre == 2: a("s_cmp_lg_u32 s2, 0\ns_cbranch_scc1 .Lend")
            a(".Lsp:\ns_memrealtime s[6:7]\ns_waitcnt lgkmcnt(0)\ns_sub_u32 s9, s9, 1\ns_cbranch_scc1 .Lend\ns_sub_u32 s7, s6, s88\ns_cmp_lt_i32 s7, 0\ns_cbranch_scc1 .Lsp")
        if dbgst == 1 and len(ks) == 11:
            a("s_cmp_lg_u32 s3, 5\ns_cbranch_scc1 .Lend")
            a("s_memrealtime s[90:91]\ns_memtime s[92:93]\ns_mov_b32 s40, s84\ns_mov_b32 s41, s85\ns_mov_b32 s42, 256\ns_mov_b32 s43, 0x00020000\ns_waitcnt lgkmcnt(0)\ns_mov_b64 exec, 1\nv_mov_b32 v2, 0\ns_sub_u32 s92, s92, s94\ns_sub_u32 s93, s90, s88\ns_not_b32 s88, s88\nv_mov_b32 v3, s88\nv_mov_b32 v4, s90\nv_mov_b32 v5, s92\nv_mov_b32 v6, s93")
            a("buffer_atomic_umax v3, v2, s[40:43], 0 offen sc1\nbuffer_atomic_umax v4, v2, s[40:43], 0 offen offset:4 sc1\nbuffer_atomic_umax v5, v2, s[40:43], 0 offen offset:8 sc1\nbuffer_atomic_umax v6, v2, s[40:43], 0 offen offset:12 sc1")
        if not stamps: return
        a("s_waitcnt lgkmcnt(0)\ns_mov_b64 exec, 1\nv_mov_b32 v2, 0\ns_lshl_b32 s40, s2, 10\ns_lshl_b32 s41, s3, 6\ns_add_u32 s40, s40, s41\ns_add_u32 s40, s40, %d" % STAMP_OFF)
        for k in [0] + list(ks):
            r = 88 if k == 0 else 64 + 2 * k - 2
            a("v_mov_b32 v3, s%d\nbuffer_store_dword v3, v2, s[12:15], s40 offen offset:%d" % (r, 4 * k))
        a("v_mov_b32 v3, s58\nbuffer_store_dword v3, v2, s[12:15], s40 offen offset:60")
        a("v_mov_b32 v3, s59\nbuffer_store_dword v3, v2, s[12:15], s40 offen offset:56")
    def zero_stamps():
        if stamps:
            a("s_mov_b32 s58, 0\ns_mov_b32 s59, 0")
            for k in range(1, 12): a("s_mov_b32 s%d, 0" % (64 + 2 * k - 2))
    def dpp(op, d, s0, s1, ctl, bank="0xf"):
        a("%s_dpp v%d, v%d, v%d %s row_mask:0xf bank_mask:%s" % (op, d, s0, s1, ctl, bank))
    def red8(op, regs_):
        for ctl in ("quad_perm:[1,0,3,2]", "quad_perm:[2,3,0,1]", "row_half_mirror"):
            for r in regs_: dpp(op, r, r, r, ctl)
    def redsw(op, pairs, sws):
        for sw in sws:
            for r, t in pairs: a("v_mov_b32 v%d, v%d" % (t, r))
            for r, t in pairs: a("%s v%d, v%d" % (sw, r, t))
            for r, t in pairs: a("%s v%d, v%d, v%d" % (op, r, r, t))
    def redrows(op, pairs):
        redsw(op, pairs, ("v_permlane16_swap_b32", "v_permlane32_swap_b32"))
    def redhi(op, pairs):
        for r, t in pairs: dpp(op, r, r, r, "row_ror:8")
        redrows(op, pairs)
    def redall(op, pairs):
        red8(op, [r for r, t in pairs]); redhi(op, pairs)
    def rbf(d, s):
        a("v_cvt_pk_bf16_f32 v%d, v%d, v%d\nv_lshlrev_b32 v%d, 16, v%d" % (d, s, s, d, d))
    def onehot(dst, tmp):
        for j in range(4): a("v_cndmask_b32 v%d, 0, v%d, s[%d:%d]" % (dst + j, tmp, 32 + 2 * j, 33 + 2 * j))
    def operand(dst, c, H, tmp):
        a("v_cvt_pk_bf16_f32 v%d, v%d, v%d\nv_and_b32 v%d, v%d, v%d" % (tmp, c, c, tmp, tmp, H))
        onehot(dst, tmp)
    def operand16(dst, c, SH):
        a("v_lshlrev_b32 v%d, v%d, v%d" % (c, SH, c))
        onehot(dst, c)
    def mfma(d, A, B, first):
        a("v_mfma_f32_16x16x32_bf16 v[%d:%d], v[%d:%d], v[%d:%d], %s" % (d, d + 3, A, A + 3, B, B + 3, "0" if first else "v[%d:%d]" % (d, d + 3)))
    def fold1(D, out):
        a("v_permlane32_swap_b32 v%d, v%d\nv_permlane32_swap_b32 v%d, v%d" % (D, D + 1, D + 2, D + 3))
        dpp("v_add_f32", out, D + 1, D, "row_ror:8", "0x3")
        dpp("v_add_f32", out, D + 2, D + 3, "row_ror:8", "0xc")
    def poll(loads, tags, errslot, nx=0):
        L, D = a.label("poll"), a.label("polld")
        a("s_mov_b32 s27, %d" % (SPIN // 4 if nx else SPIN))
        if nx: a("s_mov_b32 s62, %d" % (nx - 1))
        a(L + ":")
        if stamps and errslot == 5 and not ack: stamp(12)
        for l in loads: a(l)
        if stamps: a("s_add_u32 s59, s59, %d" % (1 << (5 * errslot)))
        a("s_waitcnt vmcnt(0)")
        a("v_cmp_ne_u32 s[40:41], s26, v%d" % tags[0])
        for t in tags[1:]:
            a("v_cmp_ne_u32 s[42:43], s26, v%d\ns_or_b64 s[40:41], s[40:41], s[42:43]" % t)
        if not (nodep >> errslot) & 1:
            a("s_cmp_eq_u64 s[40:41], 0\ns_cbranch_scc1 %s" % D)
            if nx:
                a("s_sub_u32 s62, s62, 1\ns_cbranch_scc0 %s\ns_mov_b32 s62, %d\nbuffer_wbl2 sc1\ns_waitcnt vmcnt(0)" % (L, NXR - 1))
                if stamps: a("s_or_b32 s58, s58, 512")
            a("s_sub_u32 s27, s27, 1\ns_cbranch_scc0 %s" % L)
        if stamps: a("s_or_b32 s58, s58, %d" % (1 << errslot))
        a(D + ":")
    def lwait(flag, thr, vaddr, vtmp, extra=()):
        L, D = a.label("lw"), a.label("lwd")
        if nodep & 64 and flag in (F_QRDY, F_STRDY, F_HRDY): thr = "0"
        a("s_mov_b32 s27, %d" % (SPIN * 8))
        a(L + ":")
        a("ds_read_b32 v%d, v%d offset:%d" % (vtmp, vaddr, flag))
        for l in extra: a(l)
        a("s_waitcnt lgkmcnt(0)\nv_readfirstlane_b32 s40, v%d\ns_cmp_ge_u32 s40, %s\ns_cbranch_scc1 %s" % (vtmp, thr, D))
        if SLP: a("s_sleep %d" % SLP)
        a("s_sub_u32 s27, s27, 1\ns_cbranch_scc0 %s" % L)
        if stamps: a("s_or_b32 s58, s58, 256")
        a(D + ":")
    def srd(base, ptr, size):
        a("s_mov_b32 s%d, s%d\ns_mov_b32 s%d, s%d\ns_mov_b32 s%d, %d\ns_mov_b32 s%d, 0x00020000" % (base, ptr, base + 1, ptr + 1, base + 2, size, base + 3))
    def nonce():
        a("s_waitcnt lgkmcnt(0)\ns_mul_i32 s26, s26, 0x19660d\ns_add_u32 s26, s26, 0x3c6ef35f")
    def masks():
        for j, m in enumerate(("0x03030303", "0x0c0c0c0c", "0x30303030", "0xc0c0c0c0")):
            a("s_mov_b32 s%d, %s\ns_mov_b32 s%d, %s" % (32 + 2 * j, m, 33 + 2 * j, m))
        a("v_and_b32 v2, 1, v0\nv_lshlrev_b32 v2, 4, v2")
    a("s_cmp_ge_u32 s2, 256\ns_cbranch_scc1 .Lend")
    a("s_load_dwordx16 s[64:79], s[0:1], 0\ns_load_dwordx8 s[80:87], s[0:1], 64")
    if stamps or dbgst: a("s_memrealtime s[88:89]")
    if dbgst == 1: a("s_memtime s[94:95]")
    a("""
    v_lshrrev_b32 v1, 6, v0
    v_and_b32 v0, 63, v0
    v_readfirstlane_b32 s3, v1
    s_and_b32 s24, s2, 7
    s_lshl_b32 s24, s24, 2
    s_bfe_u32 s25, s2, 0x20003
    s_or_b32 s24, s24, s25
    s_lshr_b32 s25, s2, 5
    v_lshrrev_b32 v4, 3, v0
    v_and_b32 v5, 7, v0
    s_cmp_lt_u32 s3, 5
    s_cbranch_scc1 .Laux
    """)
    KV = 32
    Q = 8
    SC = 20
    VOFF, H = 1, 2
    OP = 28
    T0, T1, T2, T3 = 3, 4, 5, 6
    TM = 7
    a("""
    v_mul_u32_u24 v1, 384, v4
    v_lshl_add_u32 v1, v5, 4, v1
    s_sub_u32 s48, s3, 5
    s_mul_i32 s28, s24, 1572864
    s_mul_i32 s29, s25, 196608
    s_add_u32 s28, s28, s29
    s_mul_i32 s29, s48, 24576
    s_add_u32 s28, s28, s29
    s_add_u32 s29, s28, 6144
    s_add_u32 s30, s28, 12288
    s_add_u32 s31, s28, 18432
    s_waitcnt lgkmcnt(0)
    """)
    srd(4, 66, 50331648)
    st = dict(n=0, landed=0)
    def need(idx):
        if idx >= st["landed"]:
            a("s_waitcnt vmcnt(%d)" % (st["n"] - 1 - idx)); st["landed"] = idx + 1
    def kvload(throttle=True):
        n = st["n"]; i = n % 24; t, ln = i // 3, i % 3
        Tn = T if n < TT else TTT
        if throttle and n >= Tn: need(n - Tn)
        r = KV + 4 * i
        a("buffer_load_dwordx4 v[%d:%d], v%d, s[%d:%d], s%d offen offset:%d%s" % (r, r + 3, VOFF, 4 if n < 24 else 8, 7 if n < 24 else 11, 28 + t // 2, 3072 * (t & 1) + 128 * ln, NT))
        st["n"] += 1
        n = st["n"]
        if n in (G1, G2, G3):
            a("s_mov_b64 exec, 1\nv_mov_b32 v%d, 0\nv_mov_b32 v%d, %d\nds_max_u32 v%d, v%d offset:%d\ns_mov_b64 exec, -1" % (OP, OP + 1, n, OP, OP + 1, F_PROG))
        if n == 24 + PW:
            a("s_mov_b64 exec, 1\nv_mov_b32 v%d, 0\nv_mov_b32 v%d, 1\nds_add_u32 v%d, v%d offset:%d\ns_mov_b64 exec, -1" % (OP, OP + 1, OP, OP + 1, F_WOGO))
    for _ in range(T): kvload()
    a("s_load_dword s26, s[86:87], 0")
    srd(8, 68, 50331648); srd(12, 86, 268435456); srd(16, 64, 1280); srd(20, 82, 1280)
    zero_stamps()
    masks()
    a("v_mov_b32 v3, 0xffff\nv_lshlrev_b32 v2, v2, v3")
    a("v_lshlrev_b32 v6, 4, v5")
    a(".Ltouch_b:\ns_branch .Lbulk2\n.Lbulk2:")
    a("s_barrier")
    while st["n"] < P1: kvload()
    nonce()
    stamp(1)
    lwait(F_QRDY, "3", 6, T0, ["ds_read_b128 v[%d:%d], v6 offset:%d" % (Q + 4 * ln, Q + 4 * ln + 3, L_Q + 128 * ln) for ln in range(3)])
    stamp(2)
    def qk(t):
        if abl & 1: return
        acc = [T0, T1, T2]
        for j in range(4):
            for ln in range(3):
                a("v_dot2_f32_bf16 v%d, v%d, v%d, %s" % (acc[ln], KV + 12 * t + 4 * ln + j, Q + 4 * ln + j, "0" if j == 0 else "v%d" % acc[ln]))
        a("v_add_f32 v%d, v%d, v%d\nv_add_f32 v%d, v%d, v%d" % (T0, T0, T1, T0, T0, T2))
        red8("v_add_f32", [T0])
        rbf(T0, T0)
        a("v_mul_f32 v%d, %s, v%d" % (T0, SCALE, T0))
        rbf(SC + t, T0)
    tq = 0
    while tq < 8:
        did = 0
        while tq < 8 and did < 2 and 3 * tq + 2 < st["landed"]:
            qk(tq); tq += 1; did += 1
        if tq < 8:
            if st["n"] >= 24 and (st["n"] - 24) // 3 >= tq:
                need(3 * tq + 2)
            else:
                kvload()
    a("v_max3_f32 v%d, v%d, v%d, v%d" % (TM, SC, SC + 1, SC + 2))
    a("v_max3_f32 v%d, v%d, v%d, v%d" % (T0, SC + 3, SC + 4, SC + 5))
    a("v_max3_f32 v%d, v%d, v%d, v%d" % (TM, TM, SC + 6, SC + 7))
    a("v_max_f32 v%d, v%d, v%d" % (TM, TM, T0))
    redhi("v_max_f32", [(TM, T0)])
    a("v_mul_f32 v%d, %s, v%d" % (T1, LOG2E, TM))
    a("s_mov_b32 s49, %s" % LOG2E)
    for t in range(8): a("v_fma_f32 v%d, v%d, s49, -v%d" % (SC + t, SC + t, T1))
    for t in range(8): a("v_exp_f32 v%d, v%d" % (SC + t, SC + t))
    a("v_add_f32 v%d, v%d, v%d\nv_add_f32 v%d, v%d, v%d" % (T2, SC, SC + 1, T3, SC + 2, SC + 3))
    a("v_add_f32 v%d, v%d, v%d\nv_add_f32 v%d, v%d, v%d" % (T2, T2, SC + 4, T3, T3, SC + 5))
    a("v_add_f32 v%d, v%d, v%d\nv_add_f32 v%d, v%d, v%d" % (T2, T2, SC + 6, T3, T3, SC + 7))
    S4 = Q
    a("v_add_f32 v%d, v%d, v%d" % (S4 + 1, T2, T3))
    redhi("v_add_f32", [(S4 + 1, T0)])
    a("v_mov_b32 v%d, v%d\nv_mov_b32 v%d, 0\nv_mov_b32 v%d, 1\ns_lshl_b32 s50, s48, 3\nv_mov_b32 v%d, s50" % (S4, TM, T3, S4 + 2, S4 + 3))
    a("s_mov_b64 exec, 1\nds_write_b64 v%d, v[%d:%d] offset:%d\nds_add_u32 v%d, v%d offset:%d\ns_mov_b64 exec, -1" % (S4 + 3, S4, S4 + 1, L_WST, T3, S4 + 2, F_STC))
    stamp(3)
    while st["n"] < 48: kvload()
    a("""
    v_and_b32 v1, 7, v0
    v_lshlrev_b32 v1, 3, v1
    v_bfe_u32 v5, v0, 4, 1
    v_lshl_add_u32 v1, v5, 2, v1
    v_bfe_u32 v5, v0, 3, 1
    v_lshl_add_u32 v1, v5, 1, v1
    v_bfe_u32 v5, v0, 5, 1
    v_add_u32 v1, v5, v1
    s_lshl_b32 s49, s48, 8
    """)
    PA = [28, 29, 30]
    stamp(4)
    lwait(F_STRDY, "1", T3, T0, ["ds_read_b64 v[%d:%d], v%d offset:%d" % (T1, T2, T3, L_ST)])
    a("s_mov_b32 s52, s40")
    stamp(5)
    a("v_sub_f32 v%d, v%d, v%d\nv_mul_f32 v%d, %s, v%d\nv_exp_f32 v%d, v%d\nv_mul_f32 v%d, v%d, v%d" % (T0, TM, T1, T0, LOG2E, T0, T0, T0, TM, T0, T2))
    for t in range(8):
        a("v_mul_f32 v%d, v%d, v%d" % (T0, SC + t, TM))
        operand(OP, T0, H, T1)
        for ln in range(3):
            need(24 + 3 * t + ln)
            mfma(Q + 4 * ln, OP, KV + 12 * t + 4 * ln, t == 0)
        if t == 6:
            PA[:] = [SC + 3, SC + 4, SC + 5]
            for ln in range(3):
                a("v_add_u32 v%d, %d, v1\nv_mul_u32_u24 v5, 171, v%d\nv_lshrrev_b32 v5, 9, v5\nv_add3_u32 v%d, v%d, v5, s49\nv_lshlrev_b32 v%d, 2, v%d" % (PA[ln], 64 * ln, PA[ln], PA[ln], PA[ln], PA[ln], PA[ln]))
            a("v_lshlrev_b32 v6, 4, v0\nv_lshlrev_b32 v5, 7, v0\ns_lshl_b32 s50, s24, 13\ns_lshl_b32 s51, s25, 4\ns_add_u32 s50, s50, s51\ns_add_u32 s50, s50, %d" % WS_O)
    stamp(6)
    for ln in range(3): fold1(Q + 4 * ln, SC + ln)
    for ln in range(3): a("ds_write_b32 v%d, v%d offset:%d" % (PA[ln], SC + ln, L_PART))
    a("v_mov_b32 v11, s26\ns_waitcnt lgkmcnt(0)")
    a("s_barrier")
    a("s_cmp_ge_u32 s48, 1\ns_cbranch_scc1 .Lbulk_opub")
    for k in range(8): a("ds_read_b128 v[%d:%d], v6 offset:%d" % (32 + 4 * k, 35 + 4 * k, L_PART + 1024 * k))
    for st_, wv in ((4, 4), (8, 0), (16, 0)):
        for k in range(0, 32, 2 * st_):
            if st_ == 4: a("s_waitcnt lgkmcnt(%d)" % (6 - k // 4))
            d = 8 if st_ == 16 else 32 + k
            a("v_pk_add_f32 v[%d:%d], v[%d:%d], v[%d:%d]\nv_add_f32 v%d, v%d, v%d" % (d, d + 1, 32 + k, 33 + k, 32 + k + st_, 33 + k + st_, d + 2, 34 + k, 34 + k + st_))
    a("s_cmp_eq_u32 s52, 1\ns_cbranch_scc0 .Lbulk_opy\nbuffer_store_dwordx4 v[8:11], v5, s[12:15], s50 offen\ns_branch .Lbulk_opub")
    a(".Lbulk_opy:\nbuffer_store_dwordx4 v[8:11], v5, s[12:15], s50 offen sc1")
    a(".Lbulk_opub:")
    stamp(7)
    a("s_cmp_ge_u32 s2, %d\ns_cbranch_scc1 .Lbulk_end" % NRED)
    a("""
    v_and_b32 v31, 3, v0
    v_lshlrev_b32 v31, 4, v31
    s_lshr_b32 s49, s2, 3
    s_lshl_b32 s49, s49, 7
    s_and_b32 s50, s2, 1
    s_lshl_b32 s50, s50, 6
    s_add_u32 s49, s49, s50
    s_and_b32 s50, s2, 6
    s_lshl_b32 s50, s50, 1
    s_add_u32 s49, s49, s50
    buffer_load_dword v30, v31, s[16:19], s49 offen
    """)
    a("v_lshlrev_b32 v1, 4, v0\ns_lshl_b32 s50, s2, 14\ns_lshl_b32 s51, s48, 11\ns_add_u32 s50, s50, s51\ns_add_u32 s50, s50, %d" % WS_A)
    a("v_lshlrev_b32 v3, 3, v0\ns_lshl_b32 s51, s48, 5\nv_add_u32 v3, s51, v3")
    a("s_lshl_b32 s51, s2, 12\ns_lshl_b32 s52, s48, 9\ns_add_u32 s51, s51, s52\ns_add_u32 s51, s51, %d" % WS_B)
    a("v_mov_b32 v8, 0\nv_mov_b32 v9, 0\nv_mov_b32 v12, 0\nv_mov_b32 v13, 0\ns_mov_b64 s[44:45], -1\ns_mov_b64 s[46:47], -1\ns_mov_b32 s52, -1\ns_mov_b32 s53, 0")
    MS = (52, 44, 46)
    def aissue(k):
        R = 32 + 12 * k
        if stamps: stamp(11); a("s_add_u32 s59, s59, %d" % (1 << 20))
        a("s_or_b64 exec, s[52:53], 1\nbuffer_load_dwordx4 v[%d:%d], v1, s[12:15], s51 offen sc1" % (R, R + 3))
        a("s_or_b64 exec, s[44:45], 1\nbuffer_load_dwordx4 v[%d:%d], v1, s[12:15], s50 offen sc1" % (R + 4, R + 7))
        a("s_or_b64 exec, s[46:47], 1\nbuffer_load_dwordx4 v[%d:%d], v1, s[12:15], s50 offen offset:1024 sc1" % (R + 8, R + 11))
    def acheck(k, w, br=True):
        for j in range(3):
            R, M, AC = 32 + 12 * k + 4 * j, MS[j], 12 if j == 0 else 8
            a("s_mov_b64 exec, s[%d:%d]\ns_waitcnt vmcnt(%d)" % (M, M + 1, w + 2 - j))
            a("v_cmp_eq_u32 vcc, s26, v%d\nv_cmp_eq_u32 s[42:43], s26, v%d\ns_and_b64 exec, vcc, s[42:43]" % (R + 1, R + 3))
            a("v_add_f32 v%d, v%d, v%d\nv_add_f32 v%d, v%d, v%d\ns_andn2_b64 s[%d:%d], s[%d:%d], exec" % (AC, AC, R, AC + 1, AC + 1, R + 2, M, M + 1, M, M + 1))
        if br: a("s_or_b64 s[40:41], s[44:45], s[46:47]\ns_or_b64 s[40:41], s[40:41], s[52:53]\ns_cbranch_scc0 .Lag_done")
    if early:
        aissue(0); acheck(0, 0, False)
    a("s_barrier")
    stamp(8)
    a("s_mov_b32 s27, %d" % SPIN)
    if early: a("s_branch .Lag_0")
    a(".Lag_1:")
    aissue(0); acheck(0, 0)
    a(".Lag_0:")
    if NS > 1:
        a("s_bcnt1_i32_b64 s40, s[44:45]\ns_bcnt1_i32_b64 s41, s[46:47]\ns_add_u32 s40, s40, s41\ns_cmp_le_u32 s40, %d\ns_cbranch_scc1 .Lag_2" % TH)
    a("s_sub_u32 s27, s27, 1\ns_cbranch_scc0 .Lag_1")
    if NS > 1:
        a("s_branch .Lag_fail\n.Lag_2:")
        for k in range(NS - 1): aissue(k)
        a(".Lag_3:")
        for k in range(NS):
            aissue((k + NS - 1) % NS)
            acheck(k, 3 * (NS - 1))
        a("s_sub_u32 s27, s27, 1\ns_cbranch_scc0 .Lag_3\n.Lag_fail:")
    if stamps: a("s_or_b32 s58, s58, 16")
    a(".Lag_done:\ns_mov_b64 exec, -1")
    stamp(9)
    for r in (8, 9, 12, 13): dpp("v_add_f32", r, r, r, "row_ror:4")
    redhi("v_add_f32", [(8, 10), (9, 11), (12, 14), (13, 15)])
    a("s_mov_b64 exec, 15\nds_write_b64 v3, v[8:9] offset:%d\nds_write_b64 v3, v[12:13] offset:%d\ns_mov_b64 exec, -1\ns_waitcnt lgkmcnt(0)" % (L_RED, L_REDB))
    a("s_barrier")
    a("s_cmp_lg_u32 s48, 0\ns_cbranch_scc1 .Lbulk_end")
    a("v_lshlrev_b32 v3, 3, v0\nds_read_b64 v[8:9], v3 offset:%d" % L_RED)
    a("v_lshlrev_b32 v14, 16, v30\nv_and_b32 v15, 0xffff0000, v30\ns_waitcnt lgkmcnt(0)")
    for ctl in ("row_ror:4", "row_ror:8"):
        for r in (8, 9): dpp("v_add_f32", r, r, r, ctl)
    a("v_mov_b32 v10, v8\nv_mov_b32 v11, v9\nv_permlane16_swap_b32 v8, v10\nv_permlane16_swap_b32 v9, v11\nv_add_f32 v8, v8, v10\nv_add_f32 v9, v9, v11")
    a("v_cvt_pk_bf16_f32 v8, v8, v9\nv_mov_b32 v12, v8\nv_permlane32_swap_b32 v8, v12")
    a("v_and_b32 v9, 0xffff0000, v8\nv_lshlrev_b32 v8, 16, v8\nv_add_f32 v8, v8, v14\nv_add_f32 v9, v9, v15")
    a("v_and_b32 v13, 0xffff0000, v12\nv_lshlrev_b32 v12, 16, v12")
    a("v_cvt_pk_bf16_f32 v8, v8, v9\nv_and_b32 v9, 0xffff0000, v8\nv_lshlrev_b32 v8, 16, v8\nv_add_f32 v8, v8, v12\nv_add_f32 v9, v9, v13")
    a("v_cvt_pk_bf16_f32 v8, v8, v9")
    a("s_mov_b64 exec, 15\nbuffer_store_dword v8, v31, s[20:23], s49 offen")
    a("s_cmp_lg_u32 s2, 0\ns_cbranch_scc1 .Lbulk_end")
    a("s_mov_b64 exec, 1\nv_mov_b32 v9, s26\nv_mov_b32 v1, 0\nbuffer_store_dword v9, v1, s[12:15], 0 offen sc1")
    a(".Lbulk_end:")
    stamp(10)
    flush_stamps(range(1, 12))
    a("s_endpgm")

    a(".Laux:\ns_setprio %d" % (0 if abl & 4 else 3))
    W1 = 32
    W2 = 76
    XF = 8
    C = 13
    G = 100
    AOP = 24
    ACC = 116
    Z = 124
    ONE = 127
    SH = 2
    a("v_mov_b32 v%d, 0\nv_mov_b32 v%d, 0\nv_mov_b32 v%d, 0\nv_mov_b32 v%d, 1\nv_lshlrev_b32 v1, 2, v0\nv_and_b32 v3, 60, v1" % (Z, Z + 1, Z + 2, ONE))
    a("ds_write_b32 v3, v%d offset:%d\nds_write_b32 v3, v%d offset:%d" % (Z, L_FLAG, Z, L_XN + 1280))
    a("""
    s_cmp_lt_u32 s3, 3
    s_cbranch_scc1 .Laux_q
    s_and_b32 s52, s24, 3
    s_lshl_b32 s52, s52, 1
    s_sub_u32 s53, s3, 3
    s_add_u32 s52, s52, s53
    s_mul_i32 s48, s52, 80
    s_lshr_b32 s53, s24, 2
    s_mul_i32 s53, s53, 3
    s_add_u32 s53, s53, s25
    s_sub_u32 s54, s53, 3
    s_cmp_ge_u32 s25, 3
    s_cselect_b32 s53, s54, s53
    s_cselect_b32 s54, 98304, 0
    s_lshl_b32 s49, s53, 7
    s_movk_i32 s50, 3072
    s_mul_i32 s51, s52, 12288
    s_lshl_b32 s53, s53, 9
    s_add_u32 s51, s51, s53
    s_mov_b32 s53, s54
    s_add_u32 s51, s51, s54
    s_add_u32 s51, s51, %d
    s_add_u32 s6, s48, 80
    s_waitcnt lgkmcnt(0)
    s_cmp_eq_u32 s53, 0
    s_cselect_b32 s4, s76, s78
    s_cselect_b32 s5, s77, s79
    s_branch .Laux_p
    .Laux_q:
    s_mul_i32 s48, s25, %d
    s_add_u32 s6, s48, %d
    s_mul_i32 s52, s25, %d
    s_add_u32 s52, s52, %d
    s_add_u32 s53, s52, %d
    s_cmp_ge_u32 s25, 6
    s_cselect_b32 s48, s52, s48
    s_cselect_b32 s6, s53, s6
    s_mul_i32 s49, s24, 384
    s_lshl_b32 s53, s3, 7
    s_add_u32 s49, s49, s53
    s_movk_i32 s50, 12288
    s_mul_i32 s51, s24, 12288
    s_mul_i32 s52, s25, 1536
    s_add_u32 s51, s51, s52
    s_lshl_b32 s53, s3, 9
    s_add_u32 s51, s51, s53
    s_add_u32 s51, s51, %d
    s_waitcnt lgkmcnt(0)
    s_mov_b32 s4, s70
    s_mov_b32 s5, s71
    .Laux_p:
    s_mul_i32 s6, s6, s50
    s_mov_b32 s7, 0x00020000
    """ % (WS_GU, QA, QA, QB, 6 * QA - 6 * QB, QB, WS_Q))
    srd(16, 64, 1280)
    a("s_cmp_lt_u32 s3, 3\ns_cbranch_scc1 .Laux_s1\ns_cmp_ge_u32 s25, 6\ns_cbranch_scc1 .Laux_s1skip")
    a(".Laux_s1:")
    for j in range(5): a("buffer_load_dword v%d, v1, s[16:19], 0 offen offset:%d" % (XF + j, 256 * j))
    a("v_mul_lo_u32 v6, v4, s50\nv_lshl_add_u32 v6, v5, 4, v6\ns_mul_i32 s52, s48, s50\ns_add_u32 s52, s52, s49\ns_lshl_b32 s50, s50, 3")
    if abl & 2: a("s_mov_b32 s6, 0")
    for t in range(NT1):
        a("buffer_load_dwordx4 v[%d:%d], v6, s[4:7], s52 offen%s" % (W1 + 4 * t, W1 + 4 * t + 3, NT))
        if t < NT1 - 1: a("s_add_u32 s52, s52, s50")
    a(".Laux_s1skip:\n.Ltouch_a:\n.Laux2:")
    a("s_barrier")
    a("s_load_dword s26, s[86:87], 0")
    if abl & 32: a("s_endpgm")
    srd(8, 72, 0 if abl & 16 else 7864320); srd(12, 86, 268435456); srd(20, 80, 0 if abl & 8 else 1966080)
    zero_stamps()
    masks()
    a("s_lshl_b32 s55, s24, 1\ns_add_u32 s55, s55, s25\ns_sub_u32 s55, s55, 6")
    a("s_cmp_lt_u32 s3, 3\ns_cbranch_scc1 .Laux_ln\ns_cmp_ge_u32 s25, 6\ns_cbranch_scc1 .Laux_pub_skip")
    a(".Laux_ln:\ns_waitcnt vmcnt(%d)" % NT1)
    stamp(1)
    U = G
    for j in range(5): a("v_lshlrev_b32 v%d, 16, v%d\nv_and_b32 v%d, 0xffff0000, v%d" % (U + 2 * j, XF + j, U + 2 * j + 1, XF + j))
    a("v_add_f32 v13, v%d, v%d" % (U, U + 1))
    for j in range(2, 10): a("v_add_f32 v13, v13, v%d" % (U + j))
    redall("v_add_f32", [(13, 14)])
    a("v_mul_f32 v13, 0x3acccccd, v13")
    a("v_sub_f32 v15, v%d, v13\nv_mul_f32 v14, v15, v15" % U)
    for j in range(1, 10): a("v_sub_f32 v15, v%d, v13\nv_fma_f32 v14, v15, v15, v14" % (U + j))
    redall("v_add_f32", [(14, 15)])
    a("v_mul_f32 v14, 0x3acccccd, v14")
    rbf(14, 14); a("v_add_f32 v14, 0x3727c5ac, v14"); rbf(14, 14)
    a("v_sqrt_f32 v14, v14"); rbf(14, 14); a("v_rcp_f32 v14, v14")
    rbf(13, 13)
    for j in range(10): a("v_sub_f32 v%d, v%d, v13" % (U + j, U + j))
    for j in range(5):
        a("v_cvt_pk_bf16_f32 v%d, v%d, v%d" % (XF + j, U + 2 * j, U + 2 * j + 1))
        a("v_lshlrev_b32 v%d, 16, v%d\nv_and_b32 v%d, 0xffff0000, v%d" % (U + 2 * j, XF + j, U + 2 * j + 1, XF + j))
        a("v_mul_f32 v%d, v%d, v14\nv_mul_f32 v%d, v%d, v14" % (U + 2 * j, U + 2 * j, U + 2 * j + 1, U + 2 * j + 1))
        a("v_cvt_pk_bf16_f32 v%d, v%d, v%d" % (XF + j, U + 2 * j, U + 2 * j + 1))
        a("ds_write_b32 v1, v%d offset:%d" % (XF + j, L_XN + 256 * j))
    a("v_add_lshl_u32 v3, v4, s48, 1")
    for t in range(NT1): a("ds_read_u16 v%d, v3 offset:%d" % (C + t, L_XN + 16 * t))
    nonce()
    stamp(2)
    for t in range(NT1):
        op = AOP + 4 * (t & 1)
        operand16(op, C + t, SH)
        a("s_waitcnt vmcnt(%d)" % (NT1 - 1 - t))
        mfma(ACC, op, W1 + 4 * t, t == 0)
    a("v_lshlrev_b32 v1, 4, v0")
    fold1(ACC, 36)
    a("v_mov_b32 v37, s26\nv_mov_b32 v39, s26\nv_permlane32_swap_b32 v36, v38")
    a("s_mov_b32 exec_hi, 0\nbuffer_store_dwordx4 v[36:39], v1, s[12:15], s51 offen")
    a("s_mov_b64 exec, -1")
    stamp(3)
    a("s_branch .Laux_pub_done\n.Laux_pub_skip:")
    nonce()
    a(".Laux_pub_done:")
    def stage2_loads(srdb, voffs, step):
        for t in range(3):
            for ln in range(2):
                r = W2 + 8 * t + 4 * ln
                a("buffer_load_dwordx4 v[%d:%d], v%d, s[%d:%d], s52 offen offset:%d%s" % (r, r + 3, voffs[t], srdb, srdb + 3, 128 * ln, NT))
            if t < 2 and step: a("s_add_u32 s52, s52, %d" % step)
    a("s_cmp_lt_u32 s25, 6\ns_cbranch_scc1 .Laux_nowdl")
    a("s_mul_i32 s56, s55, 24")
    for t in range(3):
        r = 16 + t
        a("v_add_u32 v3, s56, v4\nv_and_b32 v%d, 0xffffffc1, v3\nv_bfe_u32 v6, v3, 1, 3\nv_lshl_or_b32 v%d, v6, 3, v%d\nv_bfe_u32 v6, v3, 4, 2\nv_lshl_or_b32 v%d, v6, 1, v%d" % (r, r, r, r, r))
        a("v_mul_u32_u24 v%d, 1280, v%d\nv_lshl_add_u32 v%d, v5, 4, v%d" % (r, r, r, r))
        if t < 2: a("s_add_u32 s56, s56, 8")
    a("s_lshl_b32 s52, s3, 8")
    stage2_loads(20, [16, 17, 18], 0)
    a(".Laux_nowdl:")
    a("v_lshrrev_b32 v3, 2, v0\nv_and_b32 v6, 3, v0\nv_lshlrev_b32 v6, 4, v6\nv_lshl_add_u32 v19, v3, 12, v6\nv_lshl_add_u32 v20, v3, 14, v6\nv_lshlrev_b32 v12, 1, v4")
    a("v_and_b32 v13, 15, v0\nv_lshrrev_b32 v14, 4, v0")
    a("s_cmp_ge_u32 s3, 3\ns_cbranch_scc1 .Laux_qdone")
    a("v_and_b32 v1, 31, v0\nv_lshlrev_b32 v1, 4, v1\nv_lshrrev_b32 v3, 5, v0\nv_mul_u32_u24 v3, 1536, v3\nv_add_u32 v1, v1, v3")
    a("s_mul_i32 s52, s24, 12288\ns_lshl_b32 s53, s3, 9\ns_add_u32 s52, s52, s53\ns_add_u32 s52, s52, %d\ns_add_u32 s53, s52, 6144" % WS_Q)
    a("v_lshlrev_b32 v6, 4, v5\nv_bfe_u32 v3, v0, 4, 1\nv_lshl_add_u32 v6, v3, 3, v6\nv_bfe_u32 v3, v0, 3, 1\nv_lshl_add_u32 v6, v3, 2, v6\ns_lshl_b32 s54, s3, 7\nv_add_u32 v6, s54, v6")
    lwait(F_PROG, str(G1), Z, 3)
    poll(["buffer_load_dwordx4 v[%d:%d], v1, s[12:15], s%d offen offset:%d sc1" % (G + 4 * i, G + 4 * i + 3, 52 + i // 2, 3072 * (i & 1)) for i in range(4)], [G + 2 * i + 1 for i in range(8)], 0, NXQ)
    for e in (0, 2): a("v_add_f32 v%d, v%d, v%d\nv_add_f32 v%d, v%d, v%d" % (G + e, G + e, G + 4 + e, G + 8 + e, G + 8 + e, G + 12 + e))
    for e in (0, 2): a("v_add_f32 v%d, v%d, v%d" % (G + e, G + e, G + 8 + e))
    redsw("v_add_f32", [(G, G + 1), (G + 2, G + 3)], ("v_permlane32_swap_b32",))
    a("v_cvt_pk_bf16_f32 v%d, v%d, v%d\nds_write_b32 v6, v%d offset:%d" % (G, G, G + 2, G, L_Q))
    a("s_waitcnt lgkmcnt(0)\ns_mov_b64 exec, 1\nds_add_u32 v%d, v%d offset:%d\ns_mov_b64 exec, -1" % (Z, ONE, F_QRDY))
    stamp(4)
    a(".Laux_qdone:")
    a("s_cmp_lt_u32 s25, 6\ns_cbranch_scc1 .Laux_wddone")
    a("s_cmp_lg_u32 s3, 3\ns_cbranch_scc1 .Laux_hwait")
    a("v_mul_u32_u24 v1, 12288, v14\nv_lshl_add_u32 v1, v13, 4, v1\ns_mul_i32 s52, s55, 192\ns_add_u32 s52, s52, %d\ns_add_u32 s53, s52, 49152\ns_add_u32 s54, s52, 98304\ns_add_u32 s57, s52, 147456\nv_lshlrev_b32 v6, 2, v13" % WS_GU)
    lwait(F_PROG, str(G3), Z, 3)
    a("s_mov_b32 exec_lo, %s\ns_mov_b32 exec_hi, %s" % (M12, M12))
    poll(["buffer_load_dwordx4 v[%d:%d], v1, s[12:15], s%d offen sc1" % (G + 4 * i, G + 4 * i + 3, [52, 53, 54, 57][i]) for i in range(4)], [G + 2 * i + 1 for i in range(8)], 1)
    for e in (0, 2): a("v_add_f32 v%d, v%d, v%d\nv_add_f32 v%d, v%d, v%d" % (G + e, G + e, G + 4 + e, G + 8 + e, G + 8 + e, G + 12 + e))
    redrows("v_add_f32", [(G, G + 1), (G + 2, G + 3), (G + 8, G + 9), (G + 10, G + 11)])
    for r in (G, G + 2, G + 8, G + 10): rbf(r, r)
    for e in (0, 2):
        g, u = G + e, G + 8 + e
        a("v_mul_f32 v%d, 0xbfb8aa3b, v%d\nv_exp_f32 v%d, v%d\nv_add_f32 v%d, 1.0, v%d\nv_rcp_f32 v%d, v%d" % (g, g, g, g, g, g, g, g))
        rbf(g, g)
        a("v_mul_f32 v%d, v%d, v%d" % (g, g, u))
    a("v_cvt_pk_bf16_f32 v%d, v%d, v%d\nds_write_b32 v6, v%d offset:%d" % (G, G, G + 2, G, L_H))
    a("s_waitcnt lgkmcnt(0)\ns_mov_b64 exec, 1\nds_write_b32 v%d, v%d offset:%d\ns_mov_b64 exec, -1" % (Z, ONE, F_HRDY))
    a(".Laux_hwait:")
    def stage2(R, f32=False):
        for t in range(3):
            op = AOP + 4 * t
            if f32: operand(op, G + t, 22, G + t)
            else: operand16(op, G + t, SH)
            mfma(ACC, op, W2 + 8 * t, t == 0)
            mfma(ACC + 4, op, W2 + 8 * t + 4, t == 0)
        for r in range(4): a("v_permlane32_swap_b32 v%d, v%d" % (ACC + r, ACC + 4 + r))
        X, Y = ACC, ACC + 4
        dpp("v_add_f32", R, Y + 0, X + 0, "row_ror:8", "0x3")
        dpp("v_add_f32", R + 2, Y + 1, X + 1, "row_ror:8", "0x3")
        dpp("v_add_f32", R, X + 2, Y + 2, "row_ror:8", "0xc")
        dpp("v_add_f32", R + 2, X + 3, Y + 3, "row_ror:8", "0xc")
    BST = "buffer_store_dwordx4 v[40:43], v19, s[12:15], s56 offen sc1"
    a("s_lshl_b32 s56, s3, 16\ns_lshl_b32 s53, s55, 6\ns_add_u32 s56, s56, s53\ns_add_u32 s56, s56, %d\nv_mov_b32 v41, s26\nv_mov_b32 v43, s26" % WS_B)
    lwait(F_HRDY, "1", Z, 3, ["ds_read_u16 v%d, v12 offset:%d" % (G + t, L_H + 16 * t) for t in range(3)])
    a("s_waitcnt vmcnt(0)")
    stage2(40)
    if not bdef: a(BST)
    stamp(5)
    a(".Laux_wddone:")
    a("s_cmp_lg_u32 s3, 4\ns_cbranch_scc1 .Laux_s2")
    a("v_lshlrev_b32 v1, 4, v0\nv_lshlrev_b32 v6, 3, v0\ns_lshl_b32 s52, s24, 10\ns_add_u32 s52, s52, %d\ns_lshl_b32 s53, s25, 7\ns_add_u32 s53, s53, s52\ns_getreg_b32 s57, hwreg(HW_REG_XCC_ID, 0, 4)\nv_mov_b32 v%d, s57\nv_mov_b32 v%d, s26" % (WS_ST, G + 6, G + 7))
    lwait(F_STC, "8", Z, 3, ["ds_read_b64 v[%d:%d], v6 offset:%d" % (G + 4, G + 5, L_WST)])
    a("s_mov_b64 exec, 0xff\nbuffer_store_dwordx4 v[%d:%d], v1, s[12:15], s53 offen" % (G + 4, G + 7))
    a("s_mov_b64 exec, -1")
    stamp(4)
    lwait(F_PROG, str(G2), Z, 3)
    stamp(6)
    poll(["buffer_load_dwordx4 v[%d:%d], v1, s[12:15], s52 offen sc1" % (G, G + 3)], [G + 3], 3, NXQ)
    a("v_cmp_ne_u32 s[40:41], s57, v%d\nv_mov_b32 v21, 1\ns_cmp_eq_u64 s[40:41], 0\ns_cbranch_scc1 .Laux_same\nbuffer_wbl2 sc1\nv_mov_b32 v21, 2\ns_waitcnt vmcnt(0)\n.Laux_same:" % (G + 2))
    a("v_mov_b32 v16, v%d" % G)
    redall("v_max_f32", [(16, 18)])
    a("v_sub_f32 v17, v%d, v16\nv_mul_f32 v17, %s, v17\nv_exp_f32 v17, v17\nv_mul_f32 v17, v17, v%d" % (G, LOG2E, G + 1))
    redall("v_add_f32", [(17, 18)])
    a("v_rcp_f32 v17, v17\ns_mov_b64 exec, 1\nds_write_b64 v%d, v[16:17] offset:%d\ns_waitcnt lgkmcnt(0)\nds_write_b32 v%d, v21 offset:%d\ns_mov_b64 exec, -1" % (Z, L_ST, Z, F_STRDY))
    a(".Laux_s2:")
    stamp(7)
    a("v_mul_u32_u24 v7, 3840, v4\nv_lshl_add_u32 v7, v5, 4, v7")
    a("s_mul_i32 s52, s24, 192\ns_mul_i32 s53, s25, 24\ns_add_u32 s52, s52, s53\ns_mul_i32 s52, s52, 1280\ns_lshl_b32 s53, s3, 8\ns_add_u32 s52, s52, s53")
    a("v_lshlrev_b32 v17, 4, v0\ns_lshl_b32 s54, s24, 13\ns_lshl_b32 s53, s25, 10\ns_add_u32 s54, s54, s53\ns_add_u32 s54, s54, %d" % WS_O)
    a("v_mov_b32 v9, s26\nv_mov_b32 v11, s26\nv_mov_b32 v22, 0xffff\nv_lshlrev_b32 v22, v%d, v22" % SH)
    if aslot == 0: a("s_lshl_b32 s60, s3, 18\ns_lshl_b32 s53, s24, 9\ns_add_u32 s60, s60, s53\ns_lshl_b32 s53, s25, 6\ns_add_u32 s60, s60, s53\ns_add_u32 s60, s60, %d" % WS_A)
    if aslot == 1: a("s_lshl_b32 s60, s3, 18\ns_and_b32 s53, s24, 15\ns_lshl_b32 s53, s53, 10\ns_add_u32 s60, s60, s53\ns_lshl_b32 s53, s25, 7\ns_add_u32 s60, s60, s53\ns_lshr_b32 s53, s24, 4\ns_lshl_b32 s53, s53, 6\ns_add_u32 s60, s60, s53\ns_add_u32 s60, s60, %d" % WS_A)
    if aslot == 2: a("s_lshl_b32 s60, s3, 18\ns_lshl_b32 s53, s2, 6\ns_add_u32 s60, s60, s53\ns_add_u32 s60, s60, %d" % WS_A)
    cw = [int(c) for c in "%05d" % CW]
    a("s_lshl_b32 s53, s3, 2\ns_lshr_b32 s61, 0x%x, s53\ns_and_b32 s61, s61, 15" % sum(c << (4 * i) for i, c in enumerate(cw)))
    lwait(F_WOGO, "s61", Z, 3)
    stage2_loads(8, [7, 7, 7], 1280)
    stamp(8)
    a("s_barrier")
    stamp(9)
    poll(["buffer_load_dwordx4 v[%d:%d], v17, s[12:15], s54 offen sc1" % (G, G + 3)], [G + 3], 5)
    stamp(10)
    if bdef: a("s_cmp_lt_u32 s25, 6\ns_cbranch_scc1 .Laux_nob\n%s\n.Laux_nob:" % BST)
    red8("v_add_f32", [G, G + 1, G + 2])
    stage2(8, True)
    a("buffer_store_dwordx4 v[8:11], v20, s[12:15], s60 offen sc1")
    stamp(11)
    if gue: a("s_cmp_lt_u32 s3, 3\ns_cbranch_scc1 .Laux_nogu\ns_cmp_ge_u32 s25, 6\ns_cbranch_scc1 .Laux_nogu\ns_mov_b32 exec_hi, 0\nbuffer_store_dwordx4 v[36:39], v17, s[12:15], s51 offen sc1\n.Laux_nogu:")
    if ack: a("s_waitcnt vmcnt(0)"); stamp(12)
    a("s_cmp_ge_u32 s2, %d\ns_cbranch_scc1 .Laux_end\ns_barrier" % NRED)
    a(".Laux_end:")
    flush_stamps(range(1, 13))
    a(".Lend:\ns_endpgm")
    i0, i1 = a.l.index(".Lbulk2:"), a.l.index(".Laux:")
    a.l = a.l[:i0] + a.l[i1:] + a.l[i0:i1]
    base = a.l
    def build(np_):
        l = list(base)
        tb, ta = [], []
        for k in range(np_):
            wv = 5 + k if k < 8 else 12 - k
            (tb if k < 8 else ta).extend(["    s_cmp_eq_u32 s3, %d" % wv, "    s_cbranch_scc1 .Lpad_%d" % k])
        i = l.index(".Ltouch_b:"); l[i:i + 1] = tb
        i = l.index(".Ltouch_a:"); l[i:i + 1] = ta
        l += [".Lpad_%d:" % k for k in range(np_)]
        l, n = hazard.fix(l)
        return l[:len(l) - np_]
    np_ = 0
    while True:
        l = build(np_)
        if not warm: break
        l, k = pads.add(l, [".Lbulk2"] * 8 + [".Laux2"] * 5, WIN)
        if k == np_: break
        assert k > np_
        np_ = k
    a.l, n = hazard.fix(l)
    assert n == 0
    return a.text(256, 832, LDS_BYTES, 128)

if __name__ == "__main__":
    out = sys.argv[1]
    kw = dict(x.split("=") for x in sys.argv[2:])
    kw = {k: int(v) for k, v in kw.items()}
    open(out, "w").write(gen(**kw))
```

```python
import sys
from asmlib import *
import hazard, pads

WS_Q, WS_GU, WS_ST, WS_O, WS_B, WS_A = 0x10000, 0x80000, 0xC0000, 0x100000, 0x180000, 0x200000
L_Q, L_ST, L_FLAG, L_PART, L_RED, L_REDB = 0, 384, 448, 512, 8704, 8960
L_XN, L_H, L_WST = 9216, 10560, 10624
F_PROG, F_QRDY, F_STRDY, F_WOGO, F_HRDY, F_STC, F_MODE = [L_FLAG + 4 * i for i in range(7)]
LDS_BYTES = 11136
SPIN = 40000
LOG2E = "0x3fb8aa3b"
SCALE = "0x3d93cd3a"
M12 = "0x0fff0fff"

def gen(T=3, P1=24, PW=24, CW=88888, G1=12, G3=16, G2=36, stamps=0, NRED=80, SLP=0, dbgst=0, pol=0, QA=88, QB=56, TT=48, TTT=24, nodep=0, ack=0, pre=0, abl=0, NS=4, TH=32, NXQ=24, NXR=3, gue=1, early=0, bdef=1, aslot=0, warm=1, WIN=1280, tlb=0, rlo=0):
    a = Asm()
    NT = [" nt", "", " sc1 nt", " sc0 sc1 nt", " sc1", " sc0 sc1", " sc0 nt"][pol]
    assert 6 * QA + 2 * QB == 640 and QA % 8 == 0 and QB % 8 == 0
    NT1 = max(QA, QB, 80) // 8
    def stamp(k):
        if stamps: a("s_memrealtime s[%d:%d]" % (64 + 2 * k - 2, 64 + 2 * k - 1))
    def flush_stamps(ks):
        if dbgst >= 2 and len(ks) == 11:
            a("s_cmp_lg_u32 s3, 5\ns_cbranch_scc1 .Lend\ns_add_u32 s88, s88, %d\ns_mov_b32 s9, 100000" % dbgst)
            if pre == 1: a("s_waitcnt vmcnt(0)\nbuffer_wbl2 sc1\ns_waitcnt vmcnt(0)")
            if pre == 2: a("s_cmp_lg_u32 s2, 0\ns_cbranch_scc1 .Lend")
            a(".Lsp:\ns_memrealtime s[6:7]\ns_waitcnt lgkmcnt(0)\ns_sub_u32 s9, s9, 1\ns_cbranch_scc1 .Lend\ns_sub_u32 s7, s6, s88\ns_cmp_lt_i32 s7, 0\ns_cbranch_scc1 .Lsp")
        if dbgst == 1 and len(ks) == 11:
            a("s_cmp_lg_u32 s3, 5\ns_cbranch_scc1 .Lend")
            a("s_memrealtime s[90:91]\ns_memtime s[92:93]\ns_mov_b32 s40, s84\ns_mov_b32 s41, s85\ns_mov_b32 s42, 256\ns_mov_b32 s43, 0x00020000\ns_waitcnt lgkmcnt(0)\ns_mov_b64 exec, 1\nv_mov_b32 v2, 0\ns_sub_u32 s92, s92, s94\ns_sub_u32 s93, s90, s88\ns_not_b32 s88, s88\nv_mov_b32 v3, s88\nv_mov_b32 v4, s90\nv_mov_b32 v5, s92\nv_mov_b32 v6, s93")
            a("buffer_atomic_umax v3, v2, s[40:43], 0 offen sc1\nbuffer_atomic_umax v4, v2, s[40:43], 0 offen offset:4 sc1\nbuffer_atomic_umax v5, v2, s[40:43], 0 offen offset:8 sc1\nbuffer_atomic_umax v6, v2, s[40:43], 0 offen offset:12 sc1")
        if not stamps: return
        a("s_waitcnt lgkmcnt(0)\ns_mov_b64 exec, 1\nv_mov_b32 v2, 0\ns_lshl_b32 s40, s2, 10\ns_lshl_b32 s41, s3, 6\ns_add_u32 s40, s40, s41\ns_add_u32 s40, s40, %d" % STAMP_OFF)
        for k in [0] + list(ks):
            r = 88 if k == 0 else 64 + 2 * k - 2
            a("v_mov_b32 v3, s%d\nbuffer_store_dword v3, v2, s[12:15], s40 offen offset:%d" % (r, 4 * k))
        a("v_mov_b32 v3, s58\nbuffer_store_dword v3, v2, s[12:15], s40 offen offset:60")
        a("v_mov_b32 v3, s59\nbuffer_store_dword v3, v2, s[12:15], s40 offen offset:56")
    def zero_stamps():
        if stamps:
            a("s_mov_b32 s58, 0\ns_mov_b32 s59, 0")
            for k in range(1, 12): a("s_mov_b32 s%d, 0" % (64 + 2 * k - 2))
    def dpp(op, d, s0, s1, ctl, bank="0xf"):
        a("%s_dpp v%d, v%d, v%d %s row_mask:0xf bank_mask:%s" % (op, d, s0, s1, ctl, bank))
    def red8(op, regs_):
        for ctl in ("quad_perm:[1,0,3,2]", "quad_perm:[2,3,0,1]", "row_half_mirror"):
            for r in regs_: dpp(op, r, r, r, ctl)
    def redsw(op, pairs, sws):
        for sw in sws:
            for r, t in pairs: a("v_mov_b32 v%d, v%d" % (t, r))
            for r, t in pairs: a("%s v%d, v%d" % (sw, r, t))
            for r, t in pairs: a("%s v%d, v%d, v%d" % (op, r, r, t))
    def redrows(op, pairs):
        redsw(op, pairs, ("v_permlane16_swap_b32", "v_permlane32_swap_b32"))
    def redhi(op, pairs):
        for r, t in pairs: dpp(op, r, r, r, "row_ror:8")
        redrows(op, pairs)
    def redall(op, pairs):
        red8(op, [r for r, t in pairs]); redhi(op, pairs)
    def rbf(d, s):
        a("v_cvt_pk_bf16_f32 v%d, v%d, v%d\nv_lshlrev_b32 v%d, 16, v%d" % (d, s, s, d, d))
    def onehot(dst, tmp):
        for j in range(4): a("v_cndmask_b32 v%d, 0, v%d, s[%d:%d]" % (dst + j, tmp, 32 + 2 * j, 33 + 2 * j))
    def operand(dst, c, H, tmp):
        a("v_cvt_pk_bf16_f32 v%d, v%d, v%d\nv_and_b32 v%d, v%d, v%d" % (tmp, c, c, tmp, tmp, H))
        onehot(dst, tmp)
    def operand16(dst, c, SH):
        a("v_lshlrev_b32 v%d, v%d, v%d" % (c, SH, c))
        onehot(dst, c)
    def mfma(d, A, B, first):
        a("v_mfma_f32_16x16x32_bf16 v[%d:%d], v[%d:%d], v[%d:%d], %s" % (d, d + 3, A, A + 3, B, B + 3, "0" if first else "v[%d:%d]" % (d, d + 3)))
    def fold1(D, out):
        a("v_permlane32_swap_b32 v%d, v%d\nv_permlane32_swap_b32 v%d, v%d" % (D, D + 1, D + 2, D + 3))
        dpp("v_add_f32", out, D + 1, D, "row_ror:8", "0x3")
        dpp("v_add_f32", out, D + 2, D + 3, "row_ror:8", "0xc")
    def poll(loads, tags, errslot, nx=0):
        L, D = a.label("poll"), a.label("polld")
        a("s_mov_b32 s27, %d" % (SPIN // 4 if nx else SPIN))
        if nx: a("s_mov_b32 s62, %d" % (nx - 1))
        a(L + ":")
        if stamps and errslot == 5 and not ack: stamp(12)
        for l in loads: a(l)
        if stamps: a("s_add_u32 s59, s59, %d" % (1 << (5 * errslot)))
        a("s_waitcnt vmcnt(0)")
        a("v_cmp_ne_u32 s[40:41], s26, v%d" % tags[0])
        for t in tags[1:]:
            a("v_cmp_ne_u32 s[42:43], s26, v%d\ns_or_b64 s[40:41], s[40:41], s[42:43]" % t)
        if not (nodep >> errslot) & 1:
            a("s_cmp_eq_u64 s[40:41], 0\ns_cbranch_scc1 %s" % D)
            if nx:
                a("s_sub_u32 s62, s62, 1\ns_cbranch_scc0 %s\ns_mov_b32 s62, %d\nbuffer_wbl2 sc1\ns_waitcnt vmcnt(0)" % (L, NXR - 1))
                if stamps: a("s_or_b32 s58, s58, 512")
            a("s_sub_u32 s27, s27, 1\ns_cbranch_scc0 %s" % L)
        if stamps: a("s_or_b32 s58, s58, %d" % (1 << errslot))
        a(D + ":")
    def lwait(flag, thr, vaddr, vtmp, extra=()):
        L, D = a.label("lw"), a.label("lwd")
        if nodep & 64 and flag in (F_QRDY, F_STRDY, F_HRDY): thr = "0"
        a("s_mov_b32 s27, %d" % (SPIN * 8))
        a(L + ":")
        a("ds_read_b32 v%d, v%d offset:%d" % (vtmp, vaddr, flag))
        for l in extra: a(l)
        a("s_waitcnt lgkmcnt(0)\nv_readfirstlane_b32 s40, v%d\ns_cmp_ge_u32 s40, %s\ns_cbranch_scc1 %s" % (vtmp, thr, D))
        if SLP: a("s_sleep %d" % SLP)
        a("s_sub_u32 s27, s27, 1\ns_cbranch_scc0 %s" % L)
        if stamps: a("s_or_b32 s58, s58, 256")
        a(D + ":")
    def srd(base, ptr, size):
        a("s_mov_b32 s%d, s%d\ns_mov_b32 s%d, s%d\ns_mov_b32 s%d, %d\ns_mov_b32 s%d, 0x00020000" % (base, ptr, base + 1, ptr + 1, base + 2, size, base + 3))
    def nonce():
        a("s_waitcnt lgkmcnt(0)\ns_mul_i32 s26, s26, 0x19660d\ns_add_u32 s26, s26, 0x3c6ef35f")
    def masks():
        for j, m in enumerate(("0x03030303", "0x0c0c0c0c", "0x30303030", "0xc0c0c0c0")):
            a("s_mov_b32 s%d, %s\ns_mov_b32 s%d, %s" % (32 + 2 * j, m, 33 + 2 * j, m))
        a("v_and_b32 v2, 1, v0\nv_lshlrev_b32 v2, 4, v2")
    a("s_cmp_ge_u32 s2, 256\ns_cbranch_scc1 .Lend")
    a("s_load_dwordx16 s[64:79], s[0:1], 0\ns_load_dwordx8 s[80:87], s[0:1], 64")
    if stamps or dbgst: a("s_memrealtime s[88:89]")
    if dbgst == 1: a("s_memtime s[94:95]")
    a("""
    v_lshrrev_b32 v1, 6, v0
    v_and_b32 v0, 63, v0
    v_readfirstlane_b32 s3, v1
    s_and_b32 s24, s2, 7
    s_lshl_b32 s24, s24, 2
    s_bfe_u32 s25, s2, 0x20003
    s_or_b32 s24, s24, s25
    s_lshr_b32 s25, s2, 5
    v_lshrrev_b32 v4, 3, v0
    v_and_b32 v5, 7, v0
    s_cmp_lt_u32 s3, 5
    s_cbranch_scc1 .Laux
    """)
    KV = 32
    Q = 8
    SC = 20
    VOFF, H = 1, 2
    OP = 28
    T0, T1, T2, T3 = 3, 4, 5, 6
    TM = 7
    a("""
    v_mul_u32_u24 v1, 384, v4
    v_lshl_add_u32 v1, v5, 4, v1
    s_sub_u32 s48, s3, 5
    s_mul_i32 s28, s24, 1572864
    s_mul_i32 s29, s25, 196608
    s_add_u32 s28, s28, s29
    s_mul_i32 s29, s48, 24576
    s_add_u32 s28, s28, s29
    s_add_u32 s29, s28, 6144
    s_add_u32 s30, s28, 12288
    s_add_u32 s31, s28, 18432
    s_waitcnt lgkmcnt(0)
    """)
    srd(4, 66, 50331648)
    st = dict(n=0, landed=0)
    def need(idx):
        if idx >= st["landed"]:
            a("s_waitcnt vmcnt(%d)" % (st["n"] - 1 - idx)); st["landed"] = idx + 1
    def kvload(throttle=True):
        n = st["n"]; i = n % 24; t, ln = i // 3, i % 3
        Tn = T if n < TT else TTT
        if throttle and n >= Tn: need(n - Tn)
        r = KV + 4 * i
        a("buffer_load_dwordx4 v[%d:%d], v%d, s[%d:%d], s%d offen offset:%d%s" % (r, r + 3, VOFF, 4 if n < 24 else 8, 7 if n < 24 else 11, 28 + t // 2, 3072 * (t & 1) + 128 * ln, NT))
        st["n"] += 1
        n = st["n"]
        if n in (G1, G2, G3):
            a("s_mov_b64 exec, 1\nv_mov_b32 v%d, 0\nv_mov_b32 v%d, %d\nds_max_u32 v%d, v%d offset:%d\ns_mov_b64 exec, -1" % (OP, OP + 1, n, OP, OP + 1, F_PROG))
        if n == 24 + PW:
            a("s_mov_b64 exec, 1\nv_mov_b32 v%d, 0\nv_mov_b32 v%d, 1\nds_add_u32 v%d, v%d offset:%d\ns_mov_b64 exec, -1" % (OP, OP + 1, OP, OP + 1, F_WOGO))
    for _ in range(T): kvload()
    a("s_load_dword s26, s[86:87], 0")
    srd(8, 68, 50331648); srd(12, 86, 268435456); srd(16, 64, 1280); srd(20, 82, 1280)
    zero_stamps()
    masks()
    a("v_mov_b32 v3, 0xffff\nv_lshlrev_b32 v2, v2, v3")
    a("v_lshlrev_b32 v6, 4, v5")
    a(".Ltouch_b:\ns_branch .Lbulk2\n.Lbulk2:")
    a("s_barrier")
    while st["n"] < P1: kvload()
    nonce()
    stamp(1)
    lwait(F_QRDY, "3", 6, T0, ["ds_read_b128 v[%d:%d], v6 offset:%d" % (Q + 4 * ln, Q + 4 * ln + 3, L_Q + 128 * ln) for ln in range(3)])
    stamp(2)
    def qk(t):
        if abl & 1: return
        acc = [T0, T1, T2]
        for j in range(4):
            for ln in range(3):
                a("v_dot2_f32_bf16 v%d, v%d, v%d, %s" % (acc[ln], KV + 12 * t + 4 * ln + j, Q + 4 * ln + j, "0" if j == 0 else "v%d" % acc[ln]))
        a("v_add_f32 v%d, v%d, v%d\nv_add_f32 v%d, v%d, v%d" % (T0, T0, T1, T0, T0, T2))
        red8("v_add_f32", [T0])
        rbf(T0, T0)
        a("v_mul_f32 v%d, %s, v%d" % (T0, SCALE, T0))
        rbf(SC + t, T0)
    tq = 0
    while tq < 8:
        did = 0
        while tq < 8 and did < 2 and 3 * tq + 2 < st["landed"]:
            qk(tq); tq += 1; did += 1
        if tq < 8:
            if st["n"] >= 24 and (st["n"] - 24) // 3 >= tq:
                need(3 * tq + 2)
            else:
                kvload()
    a("v_max3_f32 v%d, v%d, v%d, v%d" % (TM, SC, SC + 1, SC + 2))
    a("v_max3_f32 v%d, v%d, v%d, v%d" % (T0, SC + 3, SC + 4, SC + 5))
    a("v_max3_f32 v%d, v%d, v%d, v%d" % (TM, TM, SC + 6, SC + 7))
    a("v_max_f32 v%d, v%d, v%d" % (TM, TM, T0))
    redhi("v_max_f32", [(TM, T0)])
    a("v_mul_f32 v%d, %s, v%d" % (T1, LOG2E, TM))
    a("s_mov_b32 s49, %s" % LOG2E)
    for t in range(8): a("v_fma_f32 v%d, v%d, s49, -v%d" % (SC + t, SC + t, T1))
    for t in range(8): a("v_exp_f32 v%d, v%d" % (SC + t, SC + t))
    a("v_add_f32 v%d, v%d, v%d\nv_add_f32 v%d, v%d, v%d" % (T2, SC, SC + 1, T3, SC + 2, SC + 3))
    a("v_add_f32 v%d, v%d, v%d\nv_add_f32 v%d, v%d, v%d" % (T2, T2, SC + 4, T3, T3, SC + 5))
    a("v_add_f32 v%d, v%d, v%d\nv_add_f32 v%d, v%d, v%d" % (T2, T2, SC + 6, T3, T3, SC + 7))
    S4 = Q
    a("v_add_f32 v%d, v%d, v%d" % (S4 + 1, T2, T3))
    redhi("v_add_f32", [(S4 + 1, T0)])
    a("v_mov_b32 v%d, v%d\nv_mov_b32 v%d, 0\nv_mov_b32 v%d, 1\ns_lshl_b32 s50, s48, 3\nv_mov_b32 v%d, s50" % (S4, TM, T3, S4 + 2, S4 + 3))
    a("s_mov_b64 exec, 1\nds_write_b64 v%d, v[%d:%d] offset:%d\nds_add_u32 v%d, v%d offset:%d\ns_mov_b64 exec, -1" % (S4 + 3, S4, S4 + 1, L_WST, T3, S4 + 2, F_STC))
    stamp(3)
    while st["n"] < 48: kvload()
    a("""
    v_and_b32 v1, 7, v0
    v_lshlrev_b32 v1, 3, v1
    v_bfe_u32 v5, v0, 4, 1
    v_lshl_add_u32 v1, v5, 2, v1
    v_bfe_u32 v5, v0, 3, 1
    v_lshl_add_u32 v1, v5, 1, v1
    v_bfe_u32 v5, v0, 5, 1
    v_add_u32 v1, v5, v1
    s_lshl_b32 s49, s48, 8
    """)
    PA = [28, 29, 30]
    stamp(4)
    lwait(F_STRDY, "1", T3, T0, ["ds_read_b64 v[%d:%d], v%d offset:%d" % (T1, T2, T3, L_ST)])
    a("s_mov_b32 s52, s40")
    stamp(5)
    a("v_sub_f32 v%d, v%d, v%d\nv_mul_f32 v%d, %s, v%d\nv_exp_f32 v%d, v%d\nv_mul_f32 v%d, v%d, v%d" % (T0, TM, T1, T0, LOG2E, T0, T0, T0, TM, T0, T2))
    for t in range(8):
        a("v_mul_f32 v%d, v%d, v%d" % (T0, SC + t, TM))
        operand(OP, T0, H, T1)
        for ln in range(3):
            need(24 + 3 * t + ln)
            mfma(Q + 4 * ln, OP, KV + 12 * t + 4 * ln, t == 0)
        if t == 6:
            PA[:] = [SC + 3, SC + 4, SC + 5]
            for ln in range(3):
                a("v_add_u32 v%d, %d, v1\nv_mul_u32_u24 v5, 171, v%d\nv_lshrrev_b32 v5, 9, v5\nv_add3_u32 v%d, v%d, v5, s49\nv_lshlrev_b32 v%d, 2, v%d" % (PA[ln], 64 * ln, PA[ln], PA[ln], PA[ln], PA[ln], PA[ln]))
            a("v_lshlrev_b32 v6, 4, v0\nv_lshlrev_b32 v5, 7, v0\ns_lshl_b32 s50, s24, 13\ns_lshl_b32 s51, s25, 4\ns_add_u32 s50, s50, s51\ns_add_u32 s50, s50, %d" % WS_O)
    stamp(6)
    for ln in range(3): fold1(Q + 4 * ln, SC + ln)
    for ln in range(3): a("ds_write_b32 v%d, v%d offset:%d" % (PA[ln], SC + ln, L_PART))
    a("v_mov_b32 v11, s26\ns_waitcnt lgkmcnt(0)")
    a("s_barrier")
    a("s_cmp_ge_u32 s48, 1\ns_cbranch_scc1 .Lbulk_opub")
    for k in range(8): a("ds_read_b128 v[%d:%d], v6 offset:%d" % (32 + 4 * k, 35 + 4 * k, L_PART + 1024 * k))
    for st_, wv in ((4, 4), (8, 0), (16, 0)):
        for k in range(0, 32, 2 * st_):
            if st_ == 4: a("s_waitcnt lgkmcnt(%d)" % (6 - k // 4))
            d = 8 if st_ == 16 else 32 + k
            a("v_pk_add_f32 v[%d:%d], v[%d:%d], v[%d:%d]\nv_add_f32 v%d, v%d, v%d" % (d, d + 1, 32 + k, 33 + k, 32 + k + st_, 33 + k + st_, d + 2, 34 + k, 34 + k + st_))
    a("s_cmp_eq_u32 s52, 1\ns_cbranch_scc0 .Lbulk_opy\nbuffer_store_dwordx4 v[8:11], v5, s[12:15], s50 offen\ns_branch .Lbulk_opub")
    a(".Lbulk_opy:\nbuffer_store_dwordx4 v[8:11], v5, s[12:15], s50 offen sc1")
    a(".Lbulk_opub:")
    stamp(7)
    a("s_cmp_ge_u32 s2, %d\ns_cbranch_scc1 .Lbulk_end" % NRED)
    a("""
    v_and_b32 v31, 3, v0
    v_lshlrev_b32 v31, 4, v31
    s_lshr_b32 s49, s2, 3
    s_lshl_b32 s49, s49, 7
    s_and_b32 s50, s2, 1
    s_lshl_b32 s50, s50, 6
    s_add_u32 s49, s49, s50
    s_and_b32 s50, s2, 6
    s_lshl_b32 s50, s50, 1
    s_add_u32 s49, s49, s50
    buffer_load_dword v30, v31, s[16:19], s49 offen
    """)
    a("v_lshlrev_b32 v1, 4, v0\ns_lshl_b32 s50, s2, 14\ns_lshl_b32 s51, s48, 11\ns_add_u32 s50, s50, s51\ns_add_u32 s50, s50, %d" % WS_A)
    a("v_lshlrev_b32 v3, 3, v0\ns_lshl_b32 s51, s48, 5\nv_add_u32 v3, s51, v3")
    a("s_lshl_b32 s51, s2, 12\ns_lshl_b32 s52, s48, 9\ns_add_u32 s51, s51, s52\ns_add_u32 s51, s51, %d" % WS_B)
    a("v_mov_b32 v8, 0\nv_mov_b32 v9, 0\nv_mov_b32 v12, 0\nv_mov_b32 v13, 0\ns_mov_b64 s[44:45], -1\ns_mov_b64 s[46:47], -1\ns_mov_b32 s52, -1\ns_mov_b32 s53, 0")
    MS = (52, 44, 46)
    def aissue(k):
        R = 32 + 12 * k
        if stamps: stamp(11); a("s_add_u32 s59, s59, %d" % (1 << 20))
        a("s_or_b64 exec, s[52:53], 1\nbuffer_load_dwordx4 v[%d:%d], v1, s[12:15], s51 offen sc1" % (R, R + 3))
        a("s_or_b64 exec, s[44:45], 1\nbuffer_load_dwordx4 v[%d:%d], v1, s[12:15], s50 offen sc1" % (R + 4, R + 7))
        a("s_or_b64 exec, s[46:47], 1\nbuffer_load_dwordx4 v[%d:%d], v1, s[12:15], s50 offen offset:1024 sc1" % (R + 8, R + 11))
    def acheck(k, w, br=True):
        for j in range(3):
            R, M, AC = 32 + 12 * k + 4 * j, MS[j], 12 if j == 0 else 8
            a("s_mov_b64 exec, s[%d:%d]\ns_waitcnt vmcnt(%d)" % (M, M + 1, w + 2 - j))
            a("v_cmp_eq_u32 vcc, s26, v%d\nv_cmp_eq_u32 s[42:43], s26, v%d\ns_and_b64 exec, vcc, s[42:43]" % (R + 1, R + 3))
            a("v_add_f32 v%d, v%d, v%d\nv_add_f32 v%d, v%d, v%d\ns_andn2_b64 s[%d:%d], s[%d:%d], exec" % (AC, AC, R, AC + 1, AC + 1, R + 2, M, M + 1, M, M + 1))
        if br: a("s_or_b64 s[40:41], s[44:45], s[46:47]\ns_or_b64 s[40:41], s[40:41], s[52:53]\ns_cbranch_scc0 .Lag_done")
    if early:
        aissue(0); acheck(0, 0, False)
    a("s_barrier")
    stamp(8)
    a("s_mov_b32 s27, %d" % SPIN)
    if early: a("s_branch .Lag_0")
    a(".Lag_1:")
    aissue(0); acheck(0, 0)
    a(".Lag_0:")
    if NS > 1:
        a("s_bcnt1_i32_b64 s40, s[44:45]\ns_bcnt1_i32_b64 s41, s[46:47]\ns_add_u32 s40, s40, s41\ns_cmp_le_u32 s40, %d\ns_cbranch_scc1 .Lag_2" % TH)
    a("s_sub_u32 s27, s27, 1\ns_cbranch_scc0 .Lag_1")
    if NS > 1:
        a("s_branch .Lag_fail\n.Lag_2:")
        for k in range(NS - 1): aissue(k)
        a(".Lag_3:")
        for k in range(NS):
            aissue((k + NS - 1) % NS)
            acheck(k, 3 * (NS - 1))
        a("s_sub_u32 s27, s27, 1\ns_cbranch_scc0 .Lag_3\n.Lag_fail:")
    if stamps: a("s_or_b32 s58, s58, 16")
    a(".Lag_done:\ns_mov_b64 exec, -1")
    stamp(9)
    for r in (8, 9, 12, 13): dpp("v_add_f32", r, r, r, "row_ror:4")
    redhi("v_add_f32", [(8, 10), (9, 11), (12, 14), (13, 15)])
    a("s_mov_b64 exec, 15\nds_write_b64 v3, v[8:9] offset:%d\nds_write_b64 v3, v[12:13] offset:%d\ns_mov_b64 exec, -1\ns_waitcnt lgkmcnt(0)" % (L_RED, L_REDB))
    a("s_barrier")
    a("s_cmp_lg_u32 s48, 0\ns_cbranch_scc1 .Lbulk_end")
    a("v_lshlrev_b32 v3, 3, v0\nds_read_b64 v[8:9], v3 offset:%d" % L_RED)
    a("v_lshlrev_b32 v14, 16, v30\nv_and_b32 v15, 0xffff0000, v30\ns_waitcnt lgkmcnt(0)")
    for ctl in ("row_ror:4", "row_ror:8"):
        for r in (8, 9): dpp("v_add_f32", r, r, r, ctl)
    a("v_mov_b32 v10, v8\nv_mov_b32 v11, v9\nv_permlane16_swap_b32 v8, v10\nv_permlane16_swap_b32 v9, v11\nv_add_f32 v8, v8, v10\nv_add_f32 v9, v9, v11")
    a("v_cvt_pk_bf16_f32 v8, v8, v9\nv_mov_b32 v12, v8\nv_permlane32_swap_b32 v8, v12")
    a("v_and_b32 v9, 0xffff0000, v8\nv_lshlrev_b32 v8, 16, v8\nv_add_f32 v8, v8, v14\nv_add_f32 v9, v9, v15")
    a("v_and_b32 v13, 0xffff0000, v12\nv_lshlrev_b32 v12, 16, v12")
    a("v_cvt_pk_bf16_f32 v8, v8, v9\nv_and_b32 v9, 0xffff0000, v8\nv_lshlrev_b32 v8, 16, v8\nv_add_f32 v8, v8, v12\nv_add_f32 v9, v9, v13")
    a("v_cvt_pk_bf16_f32 v8, v8, v9")
    a("s_mov_b64 exec, 15\nbuffer_store_dword v8, v31, s[20:23], s49 offen")
    a("s_cmp_lg_u32 s2, 0\ns_cbranch_scc1 .Lbulk_end")
    a("s_mov_b64 exec, 1\nv_mov_b32 v9, s26\nv_mov_b32 v1, 0\nbuffer_store_dword v9, v1, s[12:15], 0 offen")
    a(".Lbulk_end:")
    stamp(10)
    flush_stamps(range(1, 12))
    a("s_endpgm")

    a(".Laux:\ns_setprio %d" % (0 if abl & 4 else 3))
    W1 = 32
    W2 = 76
    XF = 8
    C = 13
    G = 100
    AOP = 24
    ACC = 116
    Z = 124
    ONE = 127
    SH = 2
    a("v_mov_b32 v%d, 0\nv_mov_b32 v%d, 0\nv_mov_b32 v%d, 0\nv_mov_b32 v%d, 1\nv_lshlrev_b32 v1, 2, v0\nv_and_b32 v3, 60, v1" % (Z, Z + 1, Z + 2, ONE))
    a("ds_write_b32 v3, v%d offset:%d\nds_write_b32 v3, v%d offset:%d" % (Z, L_FLAG, Z, L_XN + 1280))
    a("""
    s_cmp_lt_u32 s3, 3
    s_cbranch_scc1 .Laux_q
    s_and_b32 s52, s24, 3
    s_lshl_b32 s52, s52, 1
    s_sub_u32 s53, s3, 3
    s_add_u32 s52, s52, s53
    s_mul_i32 s48, s52, 80
    s_lshr_b32 s53, s24, 2
    s_mul_i32 s53, s53, 3
    s_add_u32 s53, s53, s25
    s_sub_u32 s54, s53, 3
    s_cmp_ge_u32 s25, 3
    s_cselect_b32 s53, s54, s53
    s_cselect_b32 s54, 98304, 0
    s_lshl_b32 s49, s53, 7
    s_movk_i32 s50, 3072
    s_mul_i32 s51, s52, 12288
    s_lshl_b32 s53, s53, 9
    s_add_u32 s51, s51, s53
    s_mov_b32 s53, s54
    s_add_u32 s51, s51, s54
    s_add_u32 s51, s51, %d
    s_add_u32 s6, s48, 80
    s_waitcnt lgkmcnt(0)
    s_cmp_eq_u32 s53, 0
    s_cselect_b32 s4, s76, s78
    s_cselect_b32 s5, s77, s79
    s_branch .Laux_p
    .Laux_q:
    s_mul_i32 s48, s25, %d
    s_add_u32 s6, s48, %d
    s_mul_i32 s52, s25, %d
    s_add_u32 s52, s52, %d
    s_add_u32 s53, s52, %d
    s_cmp_ge_u32 s25, 6
    s_cselect_b32 s48, s52, s48
    s_cselect_b32 s6, s53, s6
    s_mul_i32 s49, s24, 384
    s_lshl_b32 s53, s3, 7
    s_add_u32 s49, s49, s53
    s_movk_i32 s50, 12288
    s_mul_i32 s51, s24, 12288
    s_mul_i32 s52, s25, 1536
    s_add_u32 s51, s51, s52
    s_lshl_b32 s53, s3, 9
    s_add_u32 s51, s51, s53
    s_add_u32 s51, s51, %d
    s_waitcnt lgkmcnt(0)
    s_mov_b32 s4, s70
    s_mov_b32 s5, s71
    .Laux_p:
    s_mul_i32 s6, s6, s50
    s_mov_b32 s7, 0x00020000
    """ % (WS_GU, QA, QA, QB, 6 * QA - 6 * QB, QB, WS_Q))
    srd(16, 64, 1280)
    a("s_cmp_lt_u32 s3, 3\ns_cbranch_scc1 .Laux_s1\ns_cmp_ge_u32 s25, 6\ns_cbranch_scc1 .Laux_s1skip")
    a(".Laux_s1:")
    for j in range(5): a("buffer_load_dword v%d, v1, s[16:19], 0 offen offset:%d" % (XF + j, 256 * j))
    a("v_mul_lo_u32 v6, v4, s50\nv_lshl_add_u32 v6, v5, 4, v6\ns_mul_i32 s52, s48, s50\ns_add_u32 s52, s52, s49\ns_lshl_b32 s50, s50, 3")
    if abl & 2: a("s_mov_b32 s6, 0")
    for t in range(NT1):
        a("buffer_load_dwordx4 v[%d:%d], v6, s[4:7], s52 offen%s" % (W1 + 4 * t, W1 + 4 * t + 3, NT))
        if t < NT1 - 1: a("s_add_u32 s52, s52, s50")
    a(".Laux_s1skip:\n.Ltouch_a:\n.Laux2:")
    a("s_barrier")
    a("s_load_dword s26, s[86:87], 0")
    if abl & 32: a("s_endpgm")
    srd(8, 72, 0 if abl & 16 else 7864320); srd(12, 86, 268435456); srd(20, 80, 0 if abl & 8 else 1966080)
    if tlb: srd(44, 68, 50331648); srd(28, 82, 1280)
    zero_stamps()
    masks()
    a("s_lshl_b32 s55, s24, 1\ns_add_u32 s55, s55, s25\ns_sub_u32 s55, s55, 6")
    a("s_cmp_lt_u32 s3, 3\ns_cbranch_scc1 .Laux_ln\ns_cmp_ge_u32 s25, 6\ns_cbranch_scc1 .Laux_pub_skip")
    a(".Laux_ln:\ns_waitcnt vmcnt(%d)" % NT1)
    stamp(1)
    U = G
    for j in range(5): a("v_lshlrev_b32 v%d, 16, v%d\nv_and_b32 v%d, 0xffff0000, v%d" % (U + 2 * j, XF + j, U + 2 * j + 1, XF + j))
    a("v_add_f32 v13, v%d, v%d" % (U, U + 1))
    for j in range(2, 10): a("v_add_f32 v13, v13, v%d" % (U + j))
    redall("v_add_f32", [(13, 14)])
    a("v_mul_f32 v13, 0x3acccccd, v13")
    a("v_sub_f32 v15, v%d, v13\nv_mul_f32 v14, v15, v15" % U)
    for j in range(1, 10): a("v_sub_f32 v15, v%d, v13\nv_fma_f32 v14, v15, v15, v14" % (U + j))
    redall("v_add_f32", [(14, 15)])
    a("v_mul_f32 v14, 0x3acccccd, v14")
    rbf(14, 14); a("v_add_f32 v14, 0x3727c5ac, v14"); rbf(14, 14)
    a("v_sqrt_f32 v14, v14"); rbf(14, 14); a("v_rcp_f32 v14, v14")
    rbf(13, 13)
    for j in range(10): a("v_sub_f32 v%d, v%d, v13" % (U + j, U + j))
    for j in range(5):
        a("v_cvt_pk_bf16_f32 v%d, v%d, v%d" % (XF + j, U + 2 * j, U + 2 * j + 1))
        a("v_lshlrev_b32 v%d, 16, v%d\nv_and_b32 v%d, 0xffff0000, v%d" % (U + 2 * j, XF + j, U + 2 * j + 1, XF + j))
        a("v_mul_f32 v%d, v%d, v14\nv_mul_f32 v%d, v%d, v14" % (U + 2 * j, U + 2 * j, U + 2 * j + 1, U + 2 * j + 1))
        a("v_cvt_pk_bf16_f32 v%d, v%d, v%d" % (XF + j, U + 2 * j, U + 2 * j + 1))
        a("ds_write_b32 v1, v%d offset:%d" % (XF + j, L_XN + 256 * j))
    a("v_add_lshl_u32 v3, v4, s48, 1")
    for t in range(NT1): a("ds_read_u16 v%d, v3 offset:%d" % (C + t, L_XN + 16 * t))
    nonce()
    stamp(2)
    for t in range(NT1):
        op = AOP + 4 * (t & 1)
        operand16(op, C + t, SH)
        a("s_waitcnt vmcnt(%d)" % (NT1 - 1 - t))
        mfma(ACC, op, W1 + 4 * t, t == 0)
    a("v_lshlrev_b32 v1, 4, v0")
    fold1(ACC, 36)
    a("v_mov_b32 v37, s26\nv_mov_b32 v39, s26\nv_permlane32_swap_b32 v36, v38")
    a("s_mov_b32 exec_hi, 0\nbuffer_store_dwordx4 v[36:39], v1, s[12:15], s51 offen")
    a("s_mov_b64 exec, -1")
    stamp(3)
    a("s_branch .Laux_pub_done\n.Laux_pub_skip:")
    nonce()
    a(".Laux_pub_done:")
    if tlb:
        a("s_cmp_lg_u32 s3, 3\ns_cbranch_scc1 .Laux_notlb\ns_mov_b64 exec, 1")
        if tlb & 1:
            a("s_mul_i32 s52, s24, 1572864\ns_mul_i32 s53, s25, 196608\ns_add_u32 s52, s52, s53\ns_add_u32 s53, s52, 196480")
            a("buffer_load_dword v44, v%d, s[44:47], s52 offen\nbuffer_load_dword v45, v%d, s[44:47], s53 offen" % (Z, Z))
        if tlb & 2:
            a("s_mul_i32 s52, s24, 192\ns_mul_i32 s53, s25, 24\ns_add_u32 s52, s52, s53\ns_mul_i32 s52, s52, 1280\ns_add_u32 s53, s52, 30592")
            a("buffer_load_dword v46, v%d, s[8:11], s52 offen\nbuffer_load_dword v47, v%d, s[8:11], s53 offen" % (Z, Z))
        if tlb & 4:
            a("s_mov_b32 s52, %d\nbuffer_load_dword v48, v%d, s[12:15], s52 offen" % (WS_A + 0x180000, Z))
        if tlb & 8:
            a("buffer_load_dword v49, v%d, s[28:31], 0 offen" % Z)
        a("s_mov_b64 exec, -1\n.Laux_notlb:")
    def stage2_loads(srdb, voffs, step):
        for t in range(3):
            for ln in range(2):
                r = W2 + 8 * t + 4 * ln
                a("buffer_load_dwordx4 v[%d:%d], v%d, s[%d:%d], s52 offen offset:%d%s" % (r, r + 3, voffs[t], srdb, srdb + 3, 128 * ln, NT))
            if t < 2 and step: a("s_add_u32 s52, s52, %d" % step)
    a("s_cmp_lt_u32 s25, 6\ns_cbranch_scc1 .Laux_nowdl")
    a("s_mul_i32 s56, s55, 24")
    for t in range(3):
        r = 16 + t
        a("v_add_u32 v3, s56, v4\nv_and_b32 v%d, 0xffffffc1, v3\nv_bfe_u32 v6, v3, 1, 3\nv_lshl_or_b32 v%d, v6, 3, v%d\nv_bfe_u32 v6, v3, 4, 2\nv_lshl_or_b32 v%d, v6, 1, v%d" % (r, r, r, r, r))
        a("v_mul_u32_u24 v%d, 1280, v%d\nv_lshl_add_u32 v%d, v5, 4, v%d" % (r, r, r, r))
        if t < 2: a("s_add_u32 s56, s56, 8")
    a("s_lshl_b32 s52, s3, 8")
    stage2_loads(20, [16, 17, 18], 0)
    a(".Laux_nowdl:")
    a("v_lshrrev_b32 v3, 2, v0\nv_and_b32 v6, 3, v0\nv_lshlrev_b32 v6, 4, v6\nv_lshl_add_u32 v19, v3, 12, v6\nv_lshl_add_u32 v20, v3, 14, v6\nv_lshlrev_b32 v12, 1, v4")
    a("v_and_b32 v13, 15, v0\nv_lshrrev_b32 v14, 4, v0")
    a("s_cmp_ge_u32 s3, 3\ns_cbranch_scc1 .Laux_qdone")
    a("v_and_b32 v1, 31, v0\nv_lshlrev_b32 v1, 4, v1\nv_lshrrev_b32 v3, 5, v0\nv_mul_u32_u24 v3, 1536, v3\nv_add_u32 v1, v1, v3")
    a("s_mul_i32 s52, s24, 12288\ns_lshl_b32 s53, s3, 9\ns_add_u32 s52, s52, s53\ns_add_u32 s52, s52, %d\ns_add_u32 s53, s52, 6144" % WS_Q)
    a("v_lshlrev_b32 v6, 4, v5\nv_bfe_u32 v3, v0, 4, 1\nv_lshl_add_u32 v6, v3, 3, v6\nv_bfe_u32 v3, v0, 3, 1\nv_lshl_add_u32 v6, v3, 2, v6\ns_lshl_b32 s54, s3, 7\nv_add_u32 v6, s54, v6")
    lwait(F_PROG, str(G1), Z, 3)
    poll(["buffer_load_dwordx4 v[%d:%d], v1, s[12:15], s%d offen offset:%d sc1" % (G + 4 * i, G + 4 * i + 3, 52 + i // 2, 3072 * (i & 1)) for i in range(4)], [G + 2 * i + 1 for i in range(8)], 0, NXQ)
    for e in (0, 2): a("v_add_f32 v%d, v%d, v%d\nv_add_f32 v%d, v%d, v%d" % (G + e, G + e, G + 4 + e, G + 8 + e, G + 8 + e, G + 12 + e))
    for e in (0, 2): a("v_add_f32 v%d, v%d, v%d" % (G + e, G + e, G + 8 + e))
    redsw("v_add_f32", [(G, G + 1), (G + 2, G + 3)], ("v_permlane32_swap_b32",))
    a("v_cvt_pk_bf16_f32 v%d, v%d, v%d\nds_write_b32 v6, v%d offset:%d" % (G, G, G + 2, G, L_Q))
    a("s_waitcnt lgkmcnt(0)\ns_mov_b64 exec, 1\nds_add_u32 v%d, v%d offset:%d\ns_mov_b64 exec, -1" % (Z, ONE, F_QRDY))
    stamp(4)
    a(".Laux_qdone:")
    a("s_cmp_lt_u32 s25, 6\ns_cbranch_scc1 .Laux_wddone")
    a("s_cmp_lg_u32 s3, 3\ns_cbranch_scc1 .Laux_hwait")
    a("v_mul_u32_u24 v1, 12288, v14\nv_lshl_add_u32 v1, v13, 4, v1\ns_mul_i32 s52, s55, 192\ns_add_u32 s52, s52, %d\ns_add_u32 s53, s52, 49152\ns_add_u32 s54, s52, 98304\ns_add_u32 s57, s52, 147456\nv_lshlrev_b32 v6, 2, v13" % WS_GU)
    lwait(F_PROG, str(G3), Z, 3)
    a("s_mov_b32 exec_lo, %s\ns_mov_b32 exec_hi, %s" % (M12, M12))
    poll(["buffer_load_dwordx4 v[%d:%d], v1, s[12:15], s%d offen sc1" % (G + 4 * i, G + 4 * i + 3, [52, 53, 54, 57][i]) for i in range(4)], [G + 2 * i + 1 for i in range(8)], 1)
    for e in (0, 2): a("v_add_f32 v%d, v%d, v%d\nv_add_f32 v%d, v%d, v%d" % (G + e, G + e, G + 4 + e, G + 8 + e, G + 8 + e, G + 12 + e))
    redrows("v_add_f32", [(G, G + 1), (G + 2, G + 3), (G + 8, G + 9), (G + 10, G + 11)])
    for r in (G, G + 2, G + 8, G + 10): rbf(r, r)
    for e in (0, 2):
        g, u = G + e, G + 8 + e
        a("v_mul_f32 v%d, 0xbfb8aa3b, v%d\nv_exp_f32 v%d, v%d\nv_add_f32 v%d, 1.0, v%d\nv_rcp_f32 v%d, v%d" % (g, g, g, g, g, g, g, g))
        rbf(g, g)
        a("v_mul_f32 v%d, v%d, v%d" % (g, g, u))
    a("v_cvt_pk_bf16_f32 v%d, v%d, v%d\nds_write_b32 v6, v%d offset:%d" % (G, G, G + 2, G, L_H))
    a("s_waitcnt lgkmcnt(0)\ns_mov_b64 exec, 1\nds_write_b32 v%d, v%d offset:%d\ns_mov_b64 exec, -1" % (Z, ONE, F_HRDY))
    a(".Laux_hwait:")
    def stage2(R, f32=False):
        for t in range(3):
            op = AOP + 4 * t
            if f32: operand(op, G + t, 22, G + t)
            else: operand16(op, G + t, SH)
            mfma(ACC, op, W2 + 8 * t, t == 0)
            mfma(ACC + 4, op, W2 + 8 * t + 4, t == 0)
        for r in range(4): a("v_permlane32_swap_b32 v%d, v%d" % (ACC + r, ACC + 4 + r))
        X, Y = ACC, ACC + 4
        dpp("v_add_f32", R, Y + 0, X + 0, "row_ror:8", "0x3")
        dpp("v_add_f32", R + 2, Y + 1, X + 1, "row_ror:8", "0x3")
        dpp("v_add_f32", R, X + 2, Y + 2, "row_ror:8", "0xc")
        dpp("v_add_f32", R + 2, X + 3, Y + 3, "row_ror:8", "0xc")
    BST = "buffer_store_dwordx4 v[40:43], v19, s[12:15], s56 offen sc1"
    a("s_lshl_b32 s56, s3, 16\ns_lshl_b32 s53, s55, 6\ns_add_u32 s56, s56, s53\ns_add_u32 s56, s56, %d\nv_mov_b32 v41, s26\nv_mov_b32 v43, s26" % WS_B)
    lwait(F_HRDY, "1", Z, 3, ["ds_read_u16 v%d, v12 offset:%d" % (G + t, L_H + 16 * t) for t in range(3)])
    a("s_waitcnt vmcnt(0)")
    stage2(40)
    if not bdef: a(BST)
    stamp(5)
    a(".Laux_wddone:")
    a("s_cmp_lg_u32 s3, 4\ns_cbranch_scc1 .Laux_s2")
    a("v_lshlrev_b32 v1, 4, v0\nv_lshlrev_b32 v6, 3, v0\ns_lshl_b32 s52, s24, 10\ns_add_u32 s52, s52, %d\ns_lshl_b32 s53, s25, 7\ns_add_u32 s53, s53, s52\ns_getreg_b32 s57, hwreg(HW_REG_XCC_ID, 0, 4)\nv_mov_b32 v%d, s57\nv_mov_b32 v%d, s26" % (WS_ST, G + 6, G + 7))
    lwait(F_STC, "8", Z, 3, ["ds_read_b64 v[%d:%d], v6 offset:%d" % (G + 4, G + 5, L_WST)])
    a("s_mov_b64 exec, 0xff\nbuffer_store_dwordx4 v[%d:%d], v1, s[12:15], s53 offen" % (G + 4, G + 7))
    a("s_mov_b64 exec, -1")
    stamp(4)
    lwait(F_PROG, str(G2), Z, 3)
    stamp(6)
    poll(["buffer_load_dwordx4 v[%d:%d], v1, s[12:15], s52 offen sc1" % (G, G + 3)], [G + 3], 3, NXQ)
    a("v_cmp_ne_u32 s[40:41], s57, v%d\nv_mov_b32 v21, 1\ns_cmp_eq_u64 s[40:41], 0\ns_cbranch_scc1 .Laux_same\nbuffer_wbl2 sc1\nv_mov_b32 v21, 2\ns_waitcnt vmcnt(0)\n.Laux_same:" % (G + 2))
    a("v_mov_b32 v16, v%d" % G)
    redall("v_max_f32", [(16, 18)])
    a("v_sub_f32 v17, v%d, v16\nv_mul_f32 v17, %s, v17\nv_exp_f32 v17, v17\nv_mul_f32 v17, v17, v%d" % (G, LOG2E, G + 1))
    redall("v_add_f32", [(17, 18)])
    a("v_rcp_f32 v17, v17\ns_mov_b64 exec, 1\nds_write_b64 v%d, v[16:17] offset:%d\ns_waitcnt lgkmcnt(0)\nds_write_b32 v%d, v21 offset:%d\ns_mov_b64 exec, -1" % (Z, L_ST, Z, F_STRDY))
    a(".Laux_s2:")
    stamp(7)
    a("v_mul_u32_u24 v7, 3840, v4\nv_lshl_add_u32 v7, v5, 4, v7")
    a("s_mul_i32 s52, s24, 192\ns_mul_i32 s53, s25, 24\ns_add_u32 s52, s52, s53\ns_mul_i32 s52, s52, 1280\ns_lshl_b32 s53, s3, 8\ns_add_u32 s52, s52, s53")
    a("v_lshlrev_b32 v17, 4, v0\ns_lshl_b32 s54, s24, 13\ns_lshl_b32 s53, s25, 10\ns_add_u32 s54, s54, s53\ns_add_u32 s54, s54, %d" % WS_O)
    a("v_mov_b32 v9, s26\nv_mov_b32 v11, s26\nv_mov_b32 v22, 0xffff\nv_lshlrev_b32 v22, v%d, v22" % SH)
    if aslot == 0: a("s_lshl_b32 s60, s3, 18\ns_lshl_b32 s53, s24, 9\ns_add_u32 s60, s60, s53\ns_lshl_b32 s53, s25, 6\ns_add_u32 s60, s60, s53\ns_add_u32 s60, s60, %d" % WS_A)
    if aslot == 1: a("s_lshl_b32 s60, s3, 18\ns_and_b32 s53, s24, 15\ns_lshl_b32 s53, s53, 10\ns_add_u32 s60, s60, s53\ns_lshl_b32 s53, s25, 7\ns_add_u32 s60, s60, s53\ns_lshr_b32 s53, s24, 4\ns_lshl_b32 s53, s53, 6\ns_add_u32 s60, s60, s53\ns_add_u32 s60, s60, %d" % WS_A)
    if aslot == 2: a("s_lshl_b32 s60, s3, 18\ns_lshl_b32 s53, s2, 6\ns_add_u32 s60, s60, s53\ns_add_u32 s60, s60, %d" % WS_A)
    cw = [int(c) for c in "%05d" % CW]
    a("s_lshl_b32 s53, s3, 2\ns_lshr_b32 s61, 0x%x, s53\ns_and_b32 s61, s61, 15" % sum(c << (4 * i) for i, c in enumerate(cw)))
    if PW <= 24:
        lwait(F_WOGO, "s61", Z, 3)
        stage2_loads(8, [7, 7, 7], 1280)
    stamp(8)
    a("s_barrier")
    if PW > 24: stage2_loads(8, [7, 7, 7], 1280)
    stamp(9)
    poll(["buffer_load_dwordx4 v[%d:%d], v17, s[12:15], s54 offen sc1" % (G, G + 3)], [G + 3], 5)
    stamp(10)
    if bdef: a("s_cmp_lt_u32 s25, 6\ns_cbranch_scc1 .Laux_nob\n%s\n.Laux_nob:" % BST)
    red8("v_add_f32", [G, G + 1, G + 2])
    stage2(8, True)
    a("buffer_store_dwordx4 v[8:11], v20, s[12:15], s60 offen sc1")
    stamp(11)
    if gue: a("s_cmp_lt_u32 s3, 3\ns_cbranch_scc1 .Laux_nogu\ns_cmp_ge_u32 s25, 6\ns_cbranch_scc1 .Laux_nogu\ns_mov_b32 exec_hi, 0\nbuffer_store_dwordx4 v[36:39], v17, s[12:15], s51 offen sc1\n.Laux_nogu:")
    if ack: a("s_waitcnt vmcnt(0)"); stamp(12)
    a("s_cmp_ge_u32 s2, %d\ns_cbranch_scc1 .Laux_end\ns_barrier" % NRED)
    a(".Laux_end:")
    flush_stamps(range(1, 13))
    a(".Lend:\ns_endpgm")
    i0, i1 = a.l.index(".Lbulk2:"), a.l.index(".Laux:")
    a.l = a.l[:i0] + a.l[i1:] + a.l[i0:i1]
    base = a.l
    def build(np_):
        l = list(base)
        tb, ta = [], []
        for k in range(np_):
            wv = 5 + k if k < 8 else 12 - k
            (tb if k < 8 else ta).extend(["    s_cmp_eq_u32 s3, %d" % wv, "    s_cbranch_scc1 .Lpad_%d" % k])
        i = l.index(".Ltouch_b:"); l[i:i + 1] = tb
        i = l.index(".Ltouch_a:"); l[i:i + 1] = ta
        l += [".Lpad_%d:" % k for k in range(np_)]
        l, n = hazard.fix(l)
        return l[:len(l) - np_]
    np_ = 0
    while True:
        l = build(np_)
        if not warm: break
        l, k = pads.add(l, [".Lbulk2"] * 8 + [".Laux2"] * 5, WIN)
        if k == np_: break
        assert k > np_
        np_ = k
    a.l, n = hazard.fix(l)
    assert n == 0
    return a.text(256, 832, LDS_BYTES, 128)

if __name__ == "__main__":
    out = sys.argv[1]
    kw = dict(x.split("=") for x in sys.argv[2:])
    kw = {k: int(v) for k, v in kw.items()}
    open(out, "w").write(gen(**kw))
```

```python
import sys
from asmlib import *
import hazard, pads

WS_Q, WS_GU, WS_ST, WS_O, WS_B, WS_A = 0x10000, 0x80000, 0xC0000, 0x100000, 0x180000, 0x200000
L_Q, L_ST, L_FLAG, L_PART, L_RED, L_REDB = 0, 384, 448, 512, 8704, 8960
L_XN, L_H, L_WST = 9216, 10560, 10624
F_PROG, F_QRDY, F_STRDY, F_WOGO, F_HRDY, F_STC, F_MODE = [L_FLAG + 4 * i for i in range(7)]
LDS_BYTES = 11136
SPIN = 40000
LOG2E = "0x3fb8aa3b"
SCALE = "0x3d93cd3a"
M12 = "0x0fff0fff"

def gen(T=3, P1=24, PW=24, CW=88888, G1=12, G3=16, G2=36, stamps=0, NRED=80, SLP=0, dbgst=0, pol=0, QA=88, QB=56, TT=48, TTT=24, nodep=0, ack=0, pre=0, abl=0, NS=4, TH=32, NXQ=24, NXR=3, gue=1, early=0, bdef=1, aslot=0, warm=1, WIN=1280, tlb=0, rlo=0, pd=0, pa=0, lag=9999, pk=0, TP=0, SB=99, SBM=0, SBN=1, WA=0, WN=30, pat=0, A1=99, A2=0, AT=99, GUD=0, WDL=0, T0N=0, GA=99, QPL=2, SSP=0, Q4=0, Q1=0, TM=0, TM0=6, TM1=48):
    a = Asm()
    NT = [" nt", "", " sc1 nt", " sc0 sc1 nt", " sc1", " sc0 sc1", " sc0 nt"][pol]
    assert 6 * QA + 2 * QB == 640 and QA % 8 == 0 and QB % 8 == 0
    NT1 = max(QA, QB, 80) // 8
    def stamp(k):
        if stamps: a("s_memrealtime s[%d:%d]" % (64 + 2 * k - 2, 64 + 2 * k - 1))
    def flush_stamps(ks):
        if dbgst >= 2 and len(ks) == 11:
            a("s_cmp_lg_u32 s3, 5\ns_cbranch_scc1 .Lend\ns_add_u32 s88, s88, %d\ns_mov_b32 s9, 100000" % dbgst)
            if pre == 1: a("s_waitcnt vmcnt(0)\nbuffer_wbl2 sc1\ns_waitcnt vmcnt(0)")
            if pre == 2: a("s_cmp_lg_u32 s2, 0\ns_cbranch_scc1 .Lend")
            a(".Lsp:\ns_memrealtime s[6:7]\ns_waitcnt lgkmcnt(0)\ns_sub_u32 s9, s9, 1\ns_cbranch_scc1 .Lend\ns_sub_u32 s7, s6, s88\ns_cmp_lt_i32 s7, 0\ns_cbranch_scc1 .Lsp")
        if dbgst == 1 and len(ks) == 11:
            a("s_cmp_lg_u32 s3, 5\ns_cbranch_scc1 .Lend")
            a("s_memrealtime s[90:91]\ns_memtime s[92:93]\ns_mov_b32 s40, s84\ns_mov_b32 s41, s85\ns_mov_b32 s42, 256\ns_mov_b32 s43, 0x00020000\ns_waitcnt lgkmcnt(0)\ns_mov_b64 exec, 1\nv_mov_b32 v2, 0\ns_sub_u32 s92, s92, s94\ns_sub_u32 s93, s90, s88\ns_not_b32 s88, s88\nv_mov_b32 v3, s88\nv_mov_b32 v4, s90\nv_mov_b32 v5, s92\nv_mov_b32 v6, s93")
            a("buffer_atomic_umax v3, v2, s[40:43], 0 offen sc1\nbuffer_atomic_umax v4, v2, s[40:43], 0 offen offset:4 sc1\nbuffer_atomic_umax v5, v2, s[40:43], 0 offen offset:8 sc1\nbuffer_atomic_umax v6, v2, s[40:43], 0 offen offset:12 sc1")
        if not stamps: return
        a("s_waitcnt lgkmcnt(0)\ns_mov_b64 exec, 1\nv_mov_b32 v2, 0\ns_lshl_b32 s40, s2, 10\ns_lshl_b32 s41, s3, 6\ns_add_u32 s40, s40, s41\ns_add_u32 s40, s40, %d" % STAMP_OFF)
        for k in [0] + list(ks):
            r = 88 if k == 0 else 64 + 2 * k - 2
            a("v_mov_b32 v3, s%d\nbuffer_store_dword v3, v2, s[12:15], s40 offen offset:%d" % (r, 4 * k))
        a("v_mov_b32 v3, s58\nbuffer_store_dword v3, v2, s[12:15], s40 offen offset:60")
        a("v_mov_b32 v3, s59\nbuffer_store_dword v3, v2, s[12:15], s40 offen offset:56")
    def zero_stamps():
        if stamps:
            a("s_mov_b32 s58, 0\ns_mov_b32 s59, 0")
            for k in range(1, 12): a("s_mov_b32 s%d, 0" % (64 + 2 * k - 2))
    def dpp(op, d, s0, s1, ctl, bank="0xf"):
        a("%s_dpp v%d, v%d, v%d %s row_mask:0xf bank_mask:%s" % (op, d, s0, s1, ctl, bank))
    def red8(op, regs_):
        for ctl in ("quad_perm:[1,0,3,2]", "quad_perm:[2,3,0,1]", "row_half_mirror"):
            for r in regs_: dpp(op, r, r, r, ctl)
    def redsw(op, pairs, sws):
        for sw in sws:
            for r, t in pairs: a("v_mov_b32 v%d, v%d" % (t, r))
            for r, t in pairs: a("%s v%d, v%d" % (sw, r, t))
            for r, t in pairs: a("%s v%d, v%d, v%d" % (op, r, r, t))
    def redrows(op, pairs):
        redsw(op, pairs, ("v_permlane16_swap_b32", "v_permlane32_swap_b32"))
    def redhi(op, pairs):
        for r, t in pairs: dpp(op, r, r, r, "row_ror:8")
        redrows(op, pairs)
    def redall(op, pairs):
        red8(op, [r for r, t in pairs]); redhi(op, pairs)
    def rbf(d, s):
        a("v_cvt_pk_bf16_f32 v%d, v%d, v%d\nv_lshlrev_b32 v%d, 16, v%d" % (d, s, s, d, d))
    def onehot(dst, tmp):
        for j in range(4): a("v_cndmask_b32 v%d, 0, v%d, s[%d:%d]" % (dst + j, tmp, 32 + 2 * j, 33 + 2 * j))
    def operand(dst, c, H, tmp):
        a("v_cvt_pk_bf16_f32 v%d, v%d, v%d\nv_and_b32 v%d, v%d, v%d" % (tmp, c, c, tmp, tmp, H))
        onehot(dst, tmp)
    def operand16(dst, c, SH):
        a("v_lshlrev_b32 v%d, v%d, v%d" % (c, SH, c))
        onehot(dst, c)
    def mfma(d, A, B, first):
        a("v_mfma_f32_16x16x32_bf16 v[%d:%d], v[%d:%d], v[%d:%d], %s" % (d, d + 3, A, A + 3, B, B + 3, "0" if first else "v[%d:%d]" % (d, d + 3)))
    def fold1(D, out):
        a("v_permlane32_swap_b32 v%d, v%d\nv_permlane32_swap_b32 v%d, v%d" % (D, D + 1, D + 2, D + 3))
        dpp("v_add_f32", out, D + 1, D, "row_ror:8", "0x3")
        dpp("v_add_f32", out, D + 2, D + 3, "row_ror:8", "0xc")
    def poll(loads, tags, errslot, nx=0):
        L, D = a.label("poll"), a.label("polld")
        a("s_mov_b32 s27, %d" % (SPIN // 4 if nx else SPIN))
        if nx: a("s_mov_b32 s62, %d" % (nx - 1))
        a(L + ":")
        if stamps and errslot == 5 and not ack: stamp(12)
        for l in loads: a(l)
        if stamps: a("s_add_u32 s59, s59, %d" % (1 << (5 * errslot)))
        a("s_waitcnt vmcnt(0)")
        a("v_cmp_ne_u32 s[40:41], s26, v%d" % tags[0])
        for t in tags[1:]:
            a("v_cmp_ne_u32 s[42:43], s26, v%d\ns_or_b64 s[40:41], s[40:41], s[42:43]" % t)
        if not (nodep >> errslot) & 1:
            a("s_cmp_eq_u64 s[40:41], 0\ns_cbranch_scc1 %s" % D)
            if nx:
                a("s_sub_u32 s62, s62, 1\ns_cbranch_scc0 %s\ns_mov_b32 s62, %d\nbuffer_wbl2 sc1\ns_waitcnt vmcnt(0)" % (L, NXR - 1))
                if stamps: a("s_or_b32 s58, s58, 512")
            a("s_sub_u32 s27, s27, 1\ns_cbranch_scc0 %s" % L)
        if stamps: a("s_or_b32 s58, s58, %d" % (1 << errslot))
        a(D + ":")
    def lwait(flag, thr, vaddr, vtmp, extra=()):
        L, D = a.label("lw"), a.label("lwd")
        if nodep & 64 and flag in (F_QRDY, F_STRDY, F_HRDY): thr = "0"
        a("s_mov_b32 s27, %d" % (SPIN * 8))
        a(L + ":")
        a("ds_read_b32 v%d, v%d offset:%d" % (vtmp, vaddr, flag))
        for l in extra: a(l)
        a("s_waitcnt lgkmcnt(0)\nv_readfirstlane_b32 s40, v%d\ns_cmp_ge_u32 s40, %s\ns_cbranch_scc1 %s" % (vtmp, thr, D))
        if SLP: a("s_sleep %d" % SLP)
        a("s_sub_u32 s27, s27, 1\ns_cbranch_scc0 %s" % L)
        if stamps: a("s_or_b32 s58, s58, 256")
        a(D + ":")
    def srd(base, ptr, size):
        a("s_mov_b32 s%d, s%d\ns_mov_b32 s%d, s%d\ns_mov_b32 s%d, %d\ns_mov_b32 s%d, 0x00020000" % (base, ptr, base + 1, ptr + 1, base + 2, size, base + 3))
    def nonce():
        a("s_waitcnt lgkmcnt(0)\ns_mul_i32 s26, s26, 0x19660d\ns_add_u32 s26, s26, 0x3c6ef35f")
    def masks():
        for j, m in enumerate(("0x03030303", "0x0c0c0c0c", "0x30303030", "0xc0c0c0c0")):
            a("s_mov_b32 s%d, %s\ns_mov_b32 s%d, %s" % (32 + 2 * j, m, 33 + 2 * j, m))
        a("v_and_b32 v2, 1, v0\nv_lshlrev_b32 v2, 4, v2")
    a("s_cmp_ge_u32 s2, 256\ns_cbranch_scc1 .Lend")
    a("s_load_dwordx16 s[64:79], s[0:1], 0\ns_load_dwordx8 s[80:87], s[0:1], 64")
    if stamps or dbgst: a("s_memrealtime s[88:89]")
    if dbgst == 1: a("s_memtime s[94:95]")
    a("""
    v_lshrrev_b32 v1, 6, v0
    v_and_b32 v0, 63, v0
    v_readfirstlane_b32 s3, v1
    s_and_b32 s24, s2, 7
    s_lshl_b32 s24, s24, 2
    s_bfe_u32 s25, s2, 0x20003
    s_or_b32 s24, s24, s25
    s_lshr_b32 s25, s2, 5
    v_lshrrev_b32 v4, 3, v0
    v_and_b32 v5, 7, v0
    s_cmp_lt_u32 s3, 5
    s_cbranch_scc1 .Laux
    """)
    KV = 32
    Q = 8
    SC = 20
    VOFF, H = 1, 2
    OP = 28
    T0, T1, T2, T3 = 3, 4, 5, 6
    TMX = TM; TM = 7
    a("""
    v_mul_u32_u24 v1, 384, v4
    v_lshl_add_u32 v1, v5, 4, v1
    s_sub_u32 s48, s3, 5
    s_mul_i32 s28, s24, 1572864
    s_mul_i32 s29, s25, 196608
    s_add_u32 s28, s28, s29
    s_mul_i32 s29, s48, 24576
    s_add_u32 s28, s28, s29
    s_add_u32 s29, s28, 6144
    s_add_u32 s30, s28, 12288
    s_add_u32 s31, s28, 18432
    """)
    if pat == 8: a("s_and_b32 s28, s2, 7\ns_mul_i32 s28, s28, 1572864\ns_lshr_b32 s29, s2, 3\ns_mul_i32 s29, s29, 49152\ns_add_u32 s28, s28, s29\ns_mul_i32 s29, s48, 6144\ns_add_u32 s28, s28, s29\ns_add_u32 s29, s28, 12582912\ns_add_u32 s30, s29, 12582912\ns_add_u32 s31, s30, 12582912")
    if pat == 9: a("s_and_b32 s28, s2, 15\ns_mul_i32 s28, s28, 1572864\ns_lshr_b32 s29, s2, 4\ns_mul_i32 s29, s29, 98304\ns_add_u32 s28, s28, s29\ns_mul_i32 s29, s48, 12288\ns_add_u32 s28, s28, s29\ns_add_u32 s29, s28, 6144\ns_add_u32 s30, s28, 25165824\ns_add_u32 s31, s30, 6144")
    a("s_waitcnt lgkmcnt(0)")
    srd(4, 66, 50331648)
    st = dict(n=0, landed=0)
    def need(idx):
        if idx >= st["landed"]:
            a("s_waitcnt vmcnt(%d)" % (st["n"] - 1 - idx)); st["landed"] = idx + 1
    def kvload(throttle=True):
        n = st["n"]; i = n % 24; t, ln = i // 3, i % 3
        Tn = T if n < TT else TTT
        if n < T0N: Tn = T - 1
        if 24 <= n < 24 + Q4: Tn = T + 1
        if TP and n >= 6: Tn = int(str(TP)[n % len(str(TP))])
        if pd and n == 5: a("s_load_dword s92, s[94:95], 0")
        if pd and n == 8: a("s_waitcnt lgkmcnt(0)\ns_cmp_eq_u32 s92, 0\ns_cselect_b32 s92, s88, s92")
        if pd and n >= 8:
            L = a.label("pc"); thr = (pa * 10 + min(n, 24) * (pk or pd) + max(n - 24, 0) * pd) // 10
            CK = "s_memrealtime s[90:91]\ns_waitcnt lgkmcnt(0)\ns_sub_u32 s90, s90, s92\ns_cmp_ge_i32 s90, %d\ns_cbranch_scc1 %s"
            if lag < 9999:
                need(n - Tn - 1); a(CK % (thr + lag, L)); a("s_waitcnt vmcnt(%d)" % (Tn - 1))
            else: need(n - Tn)
            a(CK % (thr, L)); a("s_waitcnt vmcnt(%d)\n%s:" % (Tn - 2, L))
        elif st.get("post") and SBM and SB <= n < SB + SBN:
            L = a.label("sb")
            need(n - Tn)
            a("ds_read_b32 v%d, v%d offset:%d\ns_waitcnt lgkmcnt(0)\nv_readfirstlane_b32 s40, v%d\ns_cmp_lg_u32 s40, 0\ns_cbranch_scc1 %s\ns_waitcnt vmcnt(%d)" % (T0, T3, F_STRDY, T0, L, SBM - 1))
            if stamps: a("s_add_u32 s59, s59, 1")
            a(L + ":")
        elif st.get("post") and n == SB:
            need(n - Tn)
            lwait(F_STRDY, "1", T3, T0)
        elif WA and WN <= n < WN + 4:
            L = a.label("wa")
            need(n - Tn - 1)
            a("s_cmp_ge_u32 s48, %d\ns_cbranch_scc1 %s\ns_waitcnt vmcnt(%d)" % (WA % 10, L, Tn - 1))
            if n < WN + (WA // 100): a("s_cmp_ge_u32 s48, %d\ns_cbranch_scc1 %s\ns_waitcnt vmcnt(%d)" % (WA // 10 % 10, L, Tn - 2))
            a(L + ":")
        elif TMX and TM0 <= n < TM1:
            L = a.label("tm")
            need(n - Tn)
            a("s_bitcmp1_b64 s[60:61], %d\ns_cbranch_scc1 %s\ns_waitcnt vmcnt(%d)\n%s:" % (n, L, Tn - 2, L))
        elif throttle and n >= Tn: need(n - Tn)
        r = KV + 4 * i
        a("buffer_load_dwordx4 v[%d:%d], v%d, s[%d:%d], s%d offen offset:%d%s" % (r, r + 3, VOFF, 4 if n < 24 else 8, 7 if n < 24 else 11, 28 + t // 2, 3072 * (t & 1) + 128 * ln, NT))
        st["n"] += 1
        n = st["n"]
        if n in (G1, G2, G3, GUD, WDL):
            a("s_mov_b64 exec, 1\nv_mov_b32 v%d, 0\nv_mov_b32 v%d, %d\nds_max_u32 v%d, v%d offset:%d\ns_mov_b64 exec, -1" % (OP, OP + 1, n, OP, OP + 1, F_PROG))
        if n == 24 + PW:
            a("s_mov_b64 exec, 1\nv_mov_b32 v%d, 0\nv_mov_b32 v%d, 1\nds_add_u32 v%d, v%d offset:%d\ns_mov_b64 exec, -1" % (OP, OP + 1, OP, OP + 1, F_WOGO))
    for _ in range(T - (1 if T0N else 0)): kvload()
    a("s_load_dword s26, s[86:87], 0")
    srd(8, 68, 50331648); srd(12, 86, 268435456); srd(16, 64, 1280); srd(20, 82, 1280)
    if pd: a("s_mov_b32 s94, s84\ns_mov_b32 s95, s85")
    zero_stamps()
    masks()
    a("v_mov_b32 v3, 0xffff\nv_lshlrev_b32 v2, v2, v3")
    a("v_lshlrev_b32 v6, 4, v5")
    if TMX:
        p = str(TMX); m = sum((p[i % len(p)] == "3") << i for i in range(64))
        a("s_mov_b32 s60, 0x%x\ns_mov_b32 s61, 0x%x\ns_mul_i32 s49, s48, %d\ns_lshr_b32 s49, s49, 3\ns_lshr_b64 s[60:61], s[60:61], s49" % (m & 0xffffffff, m >> 32, len(p)))
    a(".Ltouch_b:\ns_branch .Lbulk2\n.Lbulk2:")
    a("s_barrier")
    while st["n"] < P1: kvload()
    nonce()
    stamp(1)
    lwait(F_QRDY, "3", 6, T0, ["ds_read_b128 v[%d:%d], v6 offset:%d" % (Q + 4 * ln, Q + 4 * ln + 3, L_Q + 128 * ln) for ln in range(3)])
    stamp(2)
    def qk(t):
        if abl & 1: return
        acc = [T0, T1, T2]
        for j in range(4):
            for ln in range(3):
                a("v_dot2_f32_bf16 v%d, v%d, v%d, %s" % (acc[ln], KV + 12 * t + 4 * ln + j, Q + 4 * ln + j, "0" if j == 0 else "v%d" % acc[ln]))
        a("v_add_f32 v%d, v%d, v%d\nv_add_f32 v%d, v%d, v%d" % (T0, T0, T1, T0, T0, T2))
        red8("v_add_f32", [T0])
        rbf(T0, T0)
        a("v_mul_f32 v%d, %s, v%d" % (T0, SCALE, T0))
        rbf(SC + t, T0)
    tq = 0
    while tq < 8:
        did = 0
        while tq < 8 and did < (1 if tq < Q1 else QPL) and 3 * tq + 2 < st["landed"]:
            qk(tq); tq += 1; did += 1
        if tq < 8:
            if st["n"] >= 24 and (st["n"] - 24) // 3 >= tq:
                need(3 * tq + 2)
            else:
                kvload()
    if SSP & 1: kvload()
    a("v_max3_f32 v%d, v%d, v%d, v%d" % (TM, SC, SC + 1, SC + 2))
    a("v_max3_f32 v%d, v%d, v%d, v%d" % (T0, SC + 3, SC + 4, SC + 5))
    a("v_max3_f32 v%d, v%d, v%d, v%d" % (TM, TM, SC + 6, SC + 7))
    a("v_max_f32 v%d, v%d, v%d" % (TM, TM, T0))
    redhi("v_max_f32", [(TM, T0)])
    a("v_mul_f32 v%d, %s, v%d" % (T1, LOG2E, TM))
    a("s_mov_b32 s49, %s" % LOG2E)
    for t in range(8): a("v_fma_f32 v%d, v%d, s49, -v%d" % (SC + t, SC + t, T1))
    for t in range(8): a("v_exp_f32 v%d, v%d" % (SC + t, SC + t))
    if SSP & 2: kvload()
    a("v_add_f32 v%d, v%d, v%d\nv_add_f32 v%d, v%d, v%d" % (T2, SC, SC + 1, T3, SC + 2, SC + 3))
    a("v_add_f32 v%d, v%d, v%d\nv_add_f32 v%d, v%d, v%d" % (T2, T2, SC + 4, T3, T3, SC + 5))
    a("v_add_f32 v%d, v%d, v%d\nv_add_f32 v%d, v%d, v%d" % (T2, T2, SC + 6, T3, T3, SC + 7))
    S4 = Q
    a("v_add_f32 v%d, v%d, v%d" % (S4 + 1, T2, T3))
    redhi("v_add_f32", [(S4 + 1, T0)])
    a("v_mov_b32 v%d, v%d\nv_mov_b32 v%d, 0\nv_mov_b32 v%d, 1\ns_lshl_b32 s50, s48, 3\nv_mov_b32 v%d, s50" % (S4, TM, T3, S4 + 2, S4 + 3))
    a("s_mov_b64 exec, 1\nds_write_b64 v%d, v[%d:%d] offset:%d\nds_add_u32 v%d, v%d offset:%d\ns_mov_b64 exec, -1" % (S4 + 3, S4, S4 + 1, L_WST, T3, S4 + 2, F_STC))
    stamp(3)
    st["post"] = 1; assert SB >= st["n"] and SB >= G2, st["n"]; sys.stderr.write('n at stats %d\n' % st['n'])
    while st["n"] < 48: kvload()
    a("""
    v_and_b32 v1, 7, v0
    v_lshlrev_b32 v1, 3, v1
    v_bfe_u32 v5, v0, 4, 1
    v_lshl_add_u32 v1, v5, 2, v1
    v_bfe_u32 v5, v0, 3, 1
    v_lshl_add_u32 v1, v5, 1, v1
    v_bfe_u32 v5, v0, 5, 1
    v_add_u32 v1, v5, v1
    s_lshl_b32 s49, s48, 8
    """)
    PA = [28, 29, 30]
    stamp(4)
    lwait(F_STRDY, "1", T3, T0, ["ds_read_b64 v[%d:%d], v%d offset:%d" % (T1, T2, T3, L_ST)])
    a("s_mov_b32 s52, s40")
    stamp(5)
    a("v_sub_f32 v%d, v%d, v%d\nv_mul_f32 v%d, %s, v%d\nv_exp_f32 v%d, v%d\nv_mul_f32 v%d, v%d, v%d" % (T0, TM, T1, T0, LOG2E, T0, T0, T0, TM, T0, T2))
    for t in range(8):
        a("v_mul_f32 v%d, v%d, v%d" % (T0, SC + t, TM))
        operand(OP, T0, H, T1)
        for ln in range(3):
            need(24 + 3 * t + ln)
            mfma(Q + 4 * ln, OP, KV + 12 * t + 4 * ln, t == 0)
        if t == 6:
            PA[:] = [SC + 3, SC + 4, SC + 5]
            for ln in range(3):
                a("v_add_u32 v%d, %d, v1\nv_mul_u32_u24 v5, 171, v%d\nv_lshrrev_b32 v5, 9, v5\nv_add3_u32 v%d, v%d, v5, s49\nv_lshlrev_b32 v%d, 2, v%d" % (PA[ln], 64 * ln, PA[ln], PA[ln], PA[ln], PA[ln], PA[ln]))
            a("v_lshlrev_b32 v6, 4, v0\nv_lshlrev_b32 v5, 7, v0\ns_lshl_b32 s50, s24, 13\ns_lshl_b32 s51, s25, 4\ns_add_u32 s50, s50, s51\ns_add_u32 s50, s50, %d" % WS_O)
    stamp(6)
    for ln in range(3): fold1(Q + 4 * ln, SC + ln)
    for ln in range(3): a("ds_write_b32 v%d, v%d offset:%d" % (PA[ln], SC + ln, L_PART))
    a("v_mov_b32 v11, s26\ns_waitcnt lgkmcnt(0)")
    a("s_barrier")
    a("s_cmp_ge_u32 s48, 1\ns_cbranch_scc1 .Lbulk_opub")
    for k in range(8): a("ds_read_b128 v[%d:%d], v6 offset:%d" % (32 + 4 * k, 35 + 4 * k, L_PART + 1024 * k))
    for st_, wv in ((4, 4), (8, 0), (16, 0)):
        for k in range(0, 32, 2 * st_):
            if st_ == 4: a("s_waitcnt lgkmcnt(%d)" % (6 - k // 4))
            d = 8 if st_ == 16 else 32 + k
            a("v_pk_add_f32 v[%d:%d], v[%d:%d], v[%d:%d]\nv_add_f32 v%d, v%d, v%d" % (d, d + 1, 32 + k, 33 + k, 32 + k + st_, 33 + k + st_, d + 2, 34 + k, 34 + k + st_))
    a("s_cmp_eq_u32 s52, 1\ns_cbranch_scc0 .Lbulk_opy\nbuffer_store_dwordx4 v[8:11], v5, s[12:15], s50 offen\ns_branch .Lbulk_opub")
    a(".Lbulk_opy:\nbuffer_store_dwordx4 v[8:11], v5, s[12:15], s50 offen sc1")
    a(".Lbulk_opub:")
    stamp(7)
    a("s_cmp_ge_u32 s2, %d\ns_cbranch_scc1 .Lbulk_end" % NRED)
    a("""
    v_and_b32 v31, 3, v0
    v_lshlrev_b32 v31, 4, v31
    s_lshr_b32 s49, s2, 3
    s_lshl_b32 s49, s49, 7
    s_and_b32 s50, s2, 1
    s_lshl_b32 s50, s50, 6
    s_add_u32 s49, s49, s50
    s_and_b32 s50, s2, 6
    s_lshl_b32 s50, s50, 1
    s_add_u32 s49, s49, s50
    buffer_load_dword v30, v31, s[16:19], s49 offen
    """)
    a("v_lshlrev_b32 v1, 4, v0\ns_lshl_b32 s50, s2, 14\ns_lshl_b32 s51, s48, 11\ns_add_u32 s50, s50, s51\ns_add_u32 s50, s50, %d" % WS_A)
    a("v_lshlrev_b32 v3, 3, v0\ns_lshl_b32 s51, s48, 5\nv_add_u32 v3, s51, v3")
    a("s_lshl_b32 s51, s2, 12\ns_lshl_b32 s52, s48, 9\ns_add_u32 s51, s51, s52\ns_add_u32 s51, s51, %d" % WS_B)
    a("v_mov_b32 v8, 0\nv_mov_b32 v9, 0\nv_mov_b32 v12, 0\nv_mov_b32 v13, 0\ns_mov_b64 s[44:45], -1\ns_mov_b64 s[46:47], -1\ns_mov_b32 s52, -1\ns_mov_b32 s53, 0")
    MS = (52, 44, 46)
    def aissue(k):
        R = 32 + 12 * k
        if stamps: stamp(11); a("s_add_u32 s59, s59, %d" % (1 << 20))
        a("s_or_b64 exec, s[52:53], 1\nbuffer_load_dwordx4 v[%d:%d], v1, s[12:15], s51 offen sc1" % (R, R + 3))
        a("s_or_b64 exec, s[44:45], 1\nbuffer_load_dwordx4 v[%d:%d], v1, s[12:15], s50 offen sc1" % (R + 4, R + 7))
        a("s_or_b64 exec, s[46:47], 1\nbuffer_load_dwordx4 v[%d:%d], v1, s[12:15], s50 offen offset:1024 sc1" % (R + 8, R + 11))
    def acheck(k, w, br=True):
        for j in range(3):
            R, M, AC = 32 + 12 * k + 4 * j, MS[j], 12 if j == 0 else 8
            a("s_mov_b64 exec, s[%d:%d]\ns_waitcnt vmcnt(%d)" % (M, M + 1, w + 2 - j))
            a("v_cmp_eq_u32 vcc, s26, v%d\nv_cmp_eq_u32 s[42:43], s26, v%d\ns_and_b64 exec, vcc, s[42:43]" % (R + 1, R + 3))
            a("v_add_f32 v%d, v%d, v%d\nv_add_f32 v%d, v%d, v%d\ns_andn2_b64 s[%d:%d], s[%d:%d], exec" % (AC, AC, R, AC + 1, AC + 1, R + 2, M, M + 1, M, M + 1))
        if br: a("s_or_b64 s[40:41], s[44:45], s[46:47]\ns_or_b64 s[40:41], s[40:41], s[52:53]\ns_cbranch_scc0 .Lag_done")
    if early:
        aissue(0); acheck(0, 0, False)
    a("s_barrier")
    stamp(8)
    a("s_mov_b32 s27, %d" % SPIN)
    if early: a("s_branch .Lag_0")
    a(".Lag_1:")
    aissue(0); acheck(0, 0)
    a(".Lag_0:")
    if NS > 1:
        a("s_bcnt1_i32_b64 s40, s[44:45]\ns_bcnt1_i32_b64 s41, s[46:47]\ns_add_u32 s40, s40, s41\ns_cmp_le_u32 s40, %d\ns_cbranch_scc1 .Lag_2" % TH)
    a("s_sub_u32 s27, s27, 1\ns_cbranch_scc0 .Lag_1")
    if NS > 1:
        a("s_branch .Lag_fail\n.Lag_2:")
        for k in range(NS - 1): aissue(k)
        a(".Lag_3:")
        for k in range(NS):
            aissue((k + NS - 1) % NS)
            acheck(k, 3 * (NS - 1))
        a("s_sub_u32 s27, s27, 1\ns_cbranch_scc0 .Lag_3\n.Lag_fail:")
    if stamps: a("s_or_b32 s58, s58, 16")
    a(".Lag_done:\ns_mov_b64 exec, -1")
    stamp(9)
    for r in (8, 9, 12, 13): dpp("v_add_f32", r, r, r, "row_ror:4")
    redhi("v_add_f32", [(8, 10), (9, 11), (12, 14), (13, 15)])
    a("s_mov_b64 exec, 15\nds_write_b64 v3, v[8:9] offset:%d\nds_write_b64 v3, v[12:13] offset:%d\ns_mov_b64 exec, -1\ns_waitcnt lgkmcnt(0)" % (L_RED, L_REDB))
    a("s_barrier")
    a("s_cmp_lg_u32 s48, 0\ns_cbranch_scc1 .Lbulk_end")
    a("v_lshlrev_b32 v3, 3, v0\nds_read_b64 v[8:9], v3 offset:%d" % L_RED)
    a("v_lshlrev_b32 v14, 16, v30\nv_and_b32 v15, 0xffff0000, v30\ns_waitcnt lgkmcnt(0)")
    for ctl in ("row_ror:4", "row_ror:8"):
        for r in (8, 9): dpp("v_add_f32", r, r, r, ctl)
    a("v_mov_b32 v10, v8\nv_mov_b32 v11, v9\nv_permlane16_swap_b32 v8, v10\nv_permlane16_swap_b32 v9, v11\nv_add_f32 v8, v8, v10\nv_add_f32 v9, v9, v11")
    a("v_cvt_pk_bf16_f32 v8, v8, v9\nv_mov_b32 v12, v8\nv_permlane32_swap_b32 v8, v12")
    a("v_and_b32 v9, 0xffff0000, v8\nv_lshlrev_b32 v8, 16, v8\nv_add_f32 v8, v8, v14\nv_add_f32 v9, v9, v15")
    a("v_and_b32 v13, 0xffff0000, v12\nv_lshlrev_b32 v12, 16, v12")
    a("v_cvt_pk_bf16_f32 v8, v8, v9\nv_and_b32 v9, 0xffff0000, v8\nv_lshlrev_b32 v8, 16, v8\nv_add_f32 v8, v8, v12\nv_add_f32 v9, v9, v13")
    a("v_cvt_pk_bf16_f32 v8, v8, v9")
    a("s_mov_b64 exec, 15\nbuffer_store_dword v8, v31, s[20:23], s49 offen")
    a("s_cmp_lg_u32 s2, 0\ns_cbranch_scc1 .Lbulk_end")
    a("s_mov_b64 exec, 1\nv_mov_b32 v9, s26\nv_mov_b32 v1, 0\nbuffer_store_dword v9, v1, s[12:15], 0 offen")
    a(".Lbulk_end:")
    stamp(10)
    flush_stamps(range(1, 12))
    a("s_endpgm")

    a(".Laux:\ns_setprio %d" % (0 if abl & 4 else 3))
    W1 = 32
    W2 = 76
    XF = 8
    C = 13
    G = 100
    AOP = 24
    ACC = 116
    Z = 124
    ONE = 127
    SH = 2
    a("v_mov_b32 v%d, 0\nv_mov_b32 v%d, 0\nv_mov_b32 v%d, 0\nv_mov_b32 v%d, 1\nv_lshlrev_b32 v1, 2, v0\nv_and_b32 v3, 60, v1" % (Z, Z + 1, Z + 2, ONE))
    a("ds_write_b32 v3, v%d offset:%d\nds_write_b32 v3, v%d offset:%d" % (Z, L_FLAG, Z, L_XN + 1280))
    a("""
    s_cmp_lt_u32 s3, 3
    s_cbranch_scc1 .Laux_q
    s_and_b32 s52, s24, 3
    s_lshl_b32 s52, s52, 1
    s_sub_u32 s53, s3, 3
    s_add_u32 s52, s52, s53
    s_mul_i32 s48, s52, 80
    s_lshr_b32 s53, s24, 2
    s_mul_i32 s53, s53, 3
    s_add_u32 s53, s53, s25
    s_sub_u32 s54, s53, 3
    s_cmp_ge_u32 s25, 3
    s_cselect_b32 s53, s54, s53
    s_cselect_b32 s54, 98304, 0
    s_lshl_b32 s49, s53, 7
    s_movk_i32 s50, 3072
    s_mul_i32 s51, s52, 12288
    s_lshl_b32 s53, s53, 9
    s_add_u32 s51, s51, s53
    s_mov_b32 s53, s54
    s_add_u32 s51, s51, s54
    s_add_u32 s51, s51, %d
    s_add_u32 s6, s48, 80
    s_waitcnt lgkmcnt(0)
    s_cmp_eq_u32 s53, 0
    s_cselect_b32 s4, s76, s78
    s_cselect_b32 s5, s77, s79
    s_branch .Laux_p
    .Laux_q:
    s_mul_i32 s48, s25, %d
    s_add_u32 s6, s48, %d
    s_mul_i32 s52, s25, %d
    s_add_u32 s52, s52, %d
    s_add_u32 s53, s52, %d
    s_cmp_ge_u32 s25, 6
    s_cselect_b32 s48, s52, s48
    s_cselect_b32 s6, s53, s6
    s_mul_i32 s49, s24, 384
    s_lshl_b32 s53, s3, 7
    s_add_u32 s49, s49, s53
    s_movk_i32 s50, 12288
    s_mul_i32 s51, s24, 12288
    s_mul_i32 s52, s25, 1536
    s_add_u32 s51, s51, s52
    s_lshl_b32 s53, s3, 9
    s_add_u32 s51, s51, s53
    s_add_u32 s51, s51, %d
    s_waitcnt lgkmcnt(0)
    s_mov_b32 s4, s70
    s_mov_b32 s5, s71
    .Laux_p:
    s_mul_i32 s6, s6, s50
    s_mov_b32 s7, 0x00020000
    """ % (WS_GU, QA, QA, QB, 6 * QA - 6 * QB, QB, WS_Q))
    srd(16, 64, 1280)
    if pd:
        a("s_or_b32 s52, s2, s3\ns_cbranch_scc1 .Lnp")
        srd(28, 84, 256)
        a("v_mov_b32 v3, s88\nbuffer_store_dword v3, v%d, s[28:31], 0 offen sc1\ns_waitcnt vmcnt(0)\n.Lnp:" % Z)
    a("s_cmp_lt_u32 s3, 3\ns_cbranch_scc1 .Laux_s1\ns_cmp_ge_u32 s25, 6\ns_cbranch_scc1 .Laux_s1skip")
    a(".Laux_s1:")
    for j in range(5): a("buffer_load_dword v%d, v1, s[16:19], 0 offen offset:%d" % (XF + j, 256 * j))
    a("v_mul_lo_u32 v6, v4, s50\nv_lshl_add_u32 v6, v5, 4, v6\ns_mul_i32 s52, s48, s50\ns_add_u32 s52, s52, s49\ns_lshl_b32 s50, s50, 3")
    if abl & 2: a("s_mov_b32 s6, 0")
    if abl & 64: a("s_cmp_lt_u32 s3, 3\ns_cselect_b32 s6, s6, 0")
    A1 = min(A1, NT1); A2 = min(A2, NT1 - A1)
    def w1load(t):
        a("buffer_load_dwordx4 v[%d:%d], v6, s[4:7], s52 offen%s" % (W1 + 4 * t, W1 + 4 * t + 3, NT))
        if t < NT1 - 1: a("s_add_u32 s52, s52, s50")
    if GUD: a("s_cmp_ge_u32 s3, 3\ns_cbranch_scc1 .Laux_s1skip")
    for t in range(A1): w1load(t)
    a(".Laux_s1skip:\n.Ltouch_a:\n.Laux2:")
    a("s_barrier")
    a("s_load_dword s26, s[86:87], 0")
    if abl & 32: a("s_endpgm")
    srd(8, 72, 0 if abl & 16 else 7864320); srd(12, 86, 268435456); srd(20, 80, 0 if abl & 8 else 1966080)
    if tlb: srd(44, 68, 50331648); srd(28, 82, 1280)
    if abl & 128: a("s_cmp_eq_u32 s3, 0\ns_cselect_b32 s44, s76, s78\ns_cselect_b32 s45, s77, s79\ns_cmp_eq_u32 s3, 2\ns_cselect_b32 s44, s80, s44\ns_cselect_b32 s45, s81, s45\ns_mov_b32 s46, 1966080\ns_mov_b32 s47, 0x00020000")
    zero_stamps()
    masks()
    a("s_lshl_b32 s55, s24, 1\ns_add_u32 s55, s55, s25\ns_sub_u32 s55, s55, 6")
    a("s_cmp_lt_u32 s3, 3\ns_cbranch_scc1 .Laux_ln\ns_cmp_ge_u32 s25, 6\ns_cbranch_scc1 .Laux_pub_skip")
    a(".Laux_ln:")
    if GUD: a("s_cmp_lt_u32 s3, 3\ns_cbranch_scc1 .Laux_l1\ns_waitcnt vmcnt(0)\ns_branch .Laux_l2\n.Laux_l1:")
    a("s_waitcnt vmcnt(%d)" % A1)
    for t in range(A1, A1 + A2): w1load(t)
    if GUD: a(".Laux_l2:")
    stamp(1)
    U = G
    for j in range(5): a("v_lshlrev_b32 v%d, 16, v%d\nv_and_b32 v%d, 0xffff0000, v%d" % (U + 2 * j, XF + j, U + 2 * j + 1, XF + j))
    a("v_add_f32 v13, v%d, v%d" % (U, U + 1))
    for j in range(2, 10): a("v_add_f32 v13, v13, v%d" % (U + j))
    redall("v_add_f32", [(13, 14)])
    a("v_mul_f32 v13, 0x3acccccd, v13")
    a("v_sub_f32 v15, v%d, v13\nv_mul_f32 v14, v15, v15" % U)
    for j in range(1, 10): a("v_sub_f32 v15, v%d, v13\nv_fma_f32 v14, v15, v15, v14" % (U + j))
    redall("v_add_f32", [(14, 15)])
    a("v_mul_f32 v14, 0x3acccccd, v14")
    rbf(14, 14); a("v_add_f32 v14, 0x3727c5ac, v14"); rbf(14, 14)
    a("v_sqrt_f32 v14, v14"); rbf(14, 14); a("v_rcp_f32 v14, v14")
    rbf(13, 13)
    for j in range(10): a("v_sub_f32 v%d, v%d, v13" % (U + j, U + j))
    for j in range(5):
        a("v_cvt_pk_bf16_f32 v%d, v%d, v%d" % (XF + j, U + 2 * j, U + 2 * j + 1))
        a("v_lshlrev_b32 v%d, 16, v%d\nv_and_b32 v%d, 0xffff0000, v%d" % (U + 2 * j, XF + j, U + 2 * j + 1, XF + j))
        a("v_mul_f32 v%d, v%d, v14\nv_mul_f32 v%d, v%d, v14" % (U + 2 * j, U + 2 * j, U + 2 * j + 1, U + 2 * j + 1))
        a("v_cvt_pk_bf16_f32 v%d, v%d, v%d" % (XF + j, U + 2 * j, U + 2 * j + 1))
        a("ds_write_b32 v1, v%d offset:%d" % (XF + j, L_XN + 256 * j))
    a("v_add_lshl_u32 v3, v4, s48, 1")
    for t in range(NT1): a("ds_read_u16 v%d, v3 offset:%d" % (C + t, L_XN + 16 * t))
    nonce()
    stamp(2)
    if GUD:
        a("s_cmp_lt_u32 s3, 3\ns_cbranch_scc1 .Laux_l3")
        if GUD > 1: lwait(F_PROG, str(GUD), Z, 3)
        for t in range(A1 + A2):
            if t >= GA: a("s_waitcnt vmcnt(%d)" % (GA - 1))
            w1load(t)
        a(".Laux_l3:")
    iss = A1 + A2
    while iss < min(AT, NT1): w1load(iss); iss += 1
    for t in range(NT1):
        op = AOP + 4 * (t & 1)
        operand16(op, C + t, SH)
        a("s_waitcnt vmcnt(%d)" % (iss - 1 - t))
        while iss < min(t + 1 + AT, NT1): w1load(iss); iss += 1
        mfma(ACC, op, W1 + 4 * t, t == 0)
    a("v_lshlrev_b32 v1, 4, v0")
    fold1(ACC, 36)
    a("v_mov_b32 v37, s26\nv_mov_b32 v39, s26\nv_permlane32_swap_b32 v36, v38")
    a("s_mov_b32 exec_hi, 0\nbuffer_store_dwordx4 v[36:39], v1, s[12:15], s51 offen")
    a("s_mov_b64 exec, -1")
    stamp(3)
    a("s_branch .Laux_pub_done\n.Laux_pub_skip:")
    nonce()
    a(".Laux_pub_done:")
    if tlb:
        a("s_cmp_lg_u32 s3, 3\ns_cbranch_scc1 .Laux_notlb\ns_mov_b64 exec, 1")
        if tlb & 1:
            a("s_mul_i32 s52, s24, 1572864\ns_mul_i32 s53, s25, 196608\ns_add_u32 s52, s52, s53\ns_add_u32 s53, s52, 196480")
            a("buffer_load_dword v44, v%d, s[44:47], s52 offen\nbuffer_load_dword v45, v%d, s[44:47], s53 offen" % (Z, Z))
        if tlb & 2:
            a("s_mul_i32 s52, s24, 192\ns_mul_i32 s53, s25, 24\ns_add_u32 s52, s52, s53\ns_mul_i32 s52, s52, 1280\ns_add_u32 s53, s52, 30592")
            a("buffer_load_dword v46, v%d, s[8:11], s52 offen\nbuffer_load_dword v47, v%d, s[8:11], s53 offen" % (Z, Z))
        if tlb & 4:
            a("s_mov_b32 s52, %d\nbuffer_load_dword v48, v%d, s[12:15], s52 offen" % (WS_A + 0x180000, Z))
        if tlb & 8:
            a("buffer_load_dword v49, v%d, s[28:31], 0 offen" % Z)
        a("s_mov_b64 exec, -1\n.Laux_notlb:")
    def stage2_loads(srdb, voffs, step):
        for t in range(3):
            for ln in range(2):
                r = W2 + 8 * t + 4 * ln
                a("buffer_load_dwordx4 v[%d:%d], v%d, s[%d:%d], s52 offen offset:%d%s" % (r, r + 3, voffs[t], srdb, srdb + 3, 128 * ln, NT))
            if t < 2 and step: a("s_add_u32 s52, s52, %d" % step)
    def wdl():
        a("s_cmp_lt_u32 s25, 6\ns_cbranch_scc1 .Laux_nowdl")
        a("s_mul_i32 s56, s55, 24")
        for t in range(3):
            r = 16 + t
            a("v_add_u32 v3, s56, v4\nv_and_b32 v%d, 0xffffffc1, v3\nv_bfe_u32 v6, v3, 1, 3\nv_lshl_or_b32 v%d, v6, 3, v%d\nv_bfe_u32 v6, v3, 4, 2\nv_lshl_or_b32 v%d, v6, 1, v%d" % (r, r, r, r, r))
            a("v_mul_u32_u24 v%d, 1280, v%d\nv_lshl_add_u32 v%d, v5, 4, v%d" % (r, r, r, r))
            if t < 2: a("s_add_u32 s56, s56, 8")
        a("s_lshl_b32 s52, s3, 8")
        if WDL: lwait(F_PROG, str(WDL), Z, 3)
        stage2_loads(20, [16, 17, 18], 0)
        a(".Laux_nowdl:")
    if not WDL: wdl()
    a("v_lshrrev_b32 v3, 2, v0\nv_and_b32 v6, 3, v0\nv_lshlrev_b32 v6, 4, v6\nv_lshl_add_u32 v19, v3, 12, v6\nv_lshl_add_u32 v20, v3, 14, v6\nv_lshlrev_b32 v12, 1, v4")
    a("v_and_b32 v13, 15, v0\nv_lshrrev_b32 v14, 4, v0")
    a("s_cmp_ge_u32 s3, 3\ns_cbranch_scc1 .Laux_qdone")
    a("v_and_b32 v1, 31, v0\nv_lshlrev_b32 v1, 4, v1\nv_lshrrev_b32 v3, 5, v0\nv_mul_u32_u24 v3, 1536, v3\nv_add_u32 v1, v1, v3")
    a("s_mul_i32 s52, s24, 12288\ns_lshl_b32 s53, s3, 9\ns_add_u32 s52, s52, s53\ns_add_u32 s52, s52, %d\ns_add_u32 s53, s52, 6144" % WS_Q)
    a("v_lshlrev_b32 v6, 4, v5\nv_bfe_u32 v3, v0, 4, 1\nv_lshl_add_u32 v6, v3, 3, v6\nv_bfe_u32 v3, v0, 3, 1\nv_lshl_add_u32 v6, v3, 2, v6\ns_lshl_b32 s54, s3, 7\nv_add_u32 v6, s54, v6")
    lwait(F_PROG, str(G1), Z, 3)
    poll(["buffer_load_dwordx4 v[%d:%d], v1, s[12:15], s%d offen offset:%d sc1" % (G + 4 * i, G + 4 * i + 3, 52 + i // 2, 3072 * (i & 1)) for i in range(4)], [G + 2 * i + 1 for i in range(8)], 0, NXQ)
    for e in (0, 2): a("v_add_f32 v%d, v%d, v%d\nv_add_f32 v%d, v%d, v%d" % (G + e, G + e, G + 4 + e, G + 8 + e, G + 8 + e, G + 12 + e))
    for e in (0, 2): a("v_add_f32 v%d, v%d, v%d" % (G + e, G + e, G + 8 + e))
    redsw("v_add_f32", [(G, G + 1), (G + 2, G + 3)], ("v_permlane32_swap_b32",))
    a("v_cvt_pk_bf16_f32 v%d, v%d, v%d\nds_write_b32 v6, v%d offset:%d" % (G, G, G + 2, G, L_Q))
    a("s_waitcnt lgkmcnt(0)\ns_mov_b64 exec, 1\nds_add_u32 v%d, v%d offset:%d\ns_mov_b64 exec, -1" % (Z, ONE, F_QRDY))
    stamp(4)
    a(".Laux_qdone:")
    if WDL: wdl()
    a("s_cmp_lt_u32 s25, 6\ns_cbranch_scc1 .Laux_wddone")
    a("s_cmp_lg_u32 s3, 3\ns_cbranch_scc1 .Laux_hwait")
    a("v_mul_u32_u24 v1, 12288, v14\nv_lshl_add_u32 v1, v13, 4, v1\ns_mul_i32 s52, s55, 192\ns_add_u32 s52, s52, %d\ns_add_u32 s53, s52, 49152\ns_add_u32 s54, s52, 98304\ns_add_u32 s57, s52, 147456\nv_lshlrev_b32 v6, 2, v13" % WS_GU)
    lwait(F_PROG, str(G3), Z, 3)
    a("s_mov_b32 exec_lo, %s\ns_mov_b32 exec_hi, %s" % (M12, M12))
    poll(["buffer_load_dwordx4 v[%d:%d], v1, s[12:15], s%d offen sc1" % (G + 4 * i, G + 4 * i + 3, [52, 53, 54, 57][i]) for i in range(4)], [G + 2 * i + 1 for i in range(8)], 1)
    for e in (0, 2): a("v_add_f32 v%d, v%d, v%d\nv_add_f32 v%d, v%d, v%d" % (G + e, G + e, G + 4 + e, G + 8 + e, G + 8 + e, G + 12 + e))
    redrows("v_add_f32", [(G, G + 1), (G + 2, G + 3), (G + 8, G + 9), (G + 10, G + 11)])
    for r in (G, G + 2, G + 8, G + 10): rbf(r, r)
    for e in (0, 2):
        g, u = G + e, G + 8 + e
        a("v_mul_f32 v%d, 0xbfb8aa3b, v%d\nv_exp_f32 v%d, v%d\nv_add_f32 v%d, 1.0, v%d\nv_rcp_f32 v%d, v%d" % (g, g, g, g, g, g, g, g))
        rbf(g, g)
        a("v_mul_f32 v%d, v%d, v%d" % (g, g, u))
    a("v_cvt_pk_bf16_f32 v%d, v%d, v%d\nds_write_b32 v6, v%d offset:%d" % (G, G, G + 2, G, L_H))
    a("s_waitcnt lgkmcnt(0)\ns_mov_b64 exec, 1\nds_write_b32 v%d, v%d offset:%d\ns_mov_b64 exec, -1" % (Z, ONE, F_HRDY))
    a(".Laux_hwait:")
    def stage2(R, f32=False):
        for t in range(3):
            op = AOP + 4 * t
            if f32: operand(op, G + t, 22, G + t)
            else: operand16(op, G + t, SH)
            mfma(ACC, op, W2 + 8 * t, t == 0)
            mfma(ACC + 4, op, W2 + 8 * t + 4, t == 0)
        for r in range(4): a("v_permlane32_swap_b32 v%d, v%d" % (ACC + r, ACC + 4 + r))
        X, Y = ACC, ACC + 4
        dpp("v_add_f32", R, Y + 0, X + 0, "row_ror:8", "0x3")
        dpp("v_add_f32", R + 2, Y + 1, X + 1, "row_ror:8", "0x3")
        dpp("v_add_f32", R, X + 2, Y + 2, "row_ror:8", "0xc")
        dpp("v_add_f32", R + 2, X + 3, Y + 3, "row_ror:8", "0xc")
    BST = "buffer_store_dwordx4 v[40:43], v19, s[12:15], s56 offen sc1"
    a("s_lshl_b32 s56, s3, 16\ns_lshl_b32 s53, s55, 6\ns_add_u32 s56, s56, s53\ns_add_u32 s56, s56, %d\nv_mov_b32 v41, s26\nv_mov_b32 v43, s26" % WS_B)
    lwait(F_HRDY, "1", Z, 3, ["ds_read_u16 v%d, v12 offset:%d" % (G + t, L_H + 16 * t) for t in range(3)])
    a("s_waitcnt vmcnt(0)")
    stage2(40)
    if not bdef: a(BST)
    stamp(5)
    a(".Laux_wddone:")
    a("s_cmp_lg_u32 s3, 4\ns_cbranch_scc1 .Laux_s2")
    a("v_lshlrev_b32 v1, 4, v0\nv_lshlrev_b32 v6, 3, v0\ns_lshl_b32 s52, s24, 10\ns_add_u32 s52, s52, %d\ns_lshl_b32 s53, s25, 7\ns_add_u32 s53, s53, s52\ns_getreg_b32 s57, hwreg(HW_REG_XCC_ID, 0, 4)\nv_mov_b32 v%d, s57\nv_mov_b32 v%d, s26" % (WS_ST, G + 6, G + 7))
    lwait(F_STC, "8", Z, 3, ["ds_read_b64 v[%d:%d], v6 offset:%d" % (G + 4, G + 5, L_WST)])
    a("s_mov_b64 exec, 0xff\nbuffer_store_dwordx4 v[%d:%d], v1, s[12:15], s53 offen" % (G + 4, G + 7))
    a("s_mov_b64 exec, -1")
    stamp(4)
    lwait(F_PROG, str(G2), Z, 3)
    stamp(6)
    poll(["buffer_load_dwordx4 v[%d:%d], v1, s[12:15], s52 offen sc1" % (G, G + 3)], [G + 3], 3, NXQ)
    a("v_cmp_ne_u32 s[40:41], s57, v%d\nv_mov_b32 v21, 1\ns_cmp_eq_u64 s[40:41], 0\ns_cbranch_scc1 .Laux_same\nbuffer_wbl2 sc1\nv_mov_b32 v21, 2\ns_waitcnt vmcnt(0)\n.Laux_same:" % (G + 2))
    a("v_mov_b32 v16, v%d" % G)
    redall("v_max_f32", [(16, 18)])
    a("v_sub_f32 v17, v%d, v16\nv_mul_f32 v17, %s, v17\nv_exp_f32 v17, v17\nv_mul_f32 v17, v17, v%d" % (G, LOG2E, G + 1))
    redall("v_add_f32", [(17, 18)])
    a("v_rcp_f32 v17, v17\ns_mov_b64 exec, 1\nds_write_b64 v%d, v[16:17] offset:%d\ns_waitcnt lgkmcnt(0)\nds_write_b32 v%d, v21 offset:%d\ns_mov_b64 exec, -1" % (Z, L_ST, Z, F_STRDY))
    a(".Laux_s2:")
    stamp(7)
    a("v_mul_u32_u24 v7, 3840, v4\nv_lshl_add_u32 v7, v5, 4, v7")
    a("s_mul_i32 s52, s24, 192\ns_mul_i32 s53, s25, 24\ns_add_u32 s52, s52, s53\ns_mul_i32 s52, s52, 1280\ns_lshl_b32 s53, s3, 8\ns_add_u32 s52, s52, s53")
    a("v_lshlrev_b32 v17, 4, v0\ns_lshl_b32 s54, s24, 13\ns_lshl_b32 s53, s25, 10\ns_add_u32 s54, s54, s53\ns_add_u32 s54, s54, %d" % WS_O)
    a("v_mov_b32 v9, s26\nv_mov_b32 v11, s26\nv_mov_b32 v22, 0xffff\nv_lshlrev_b32 v22, v%d, v22" % SH)
    if aslot == 0: a("s_lshl_b32 s60, s3, 18\ns_lshl_b32 s53, s24, 9\ns_add_u32 s60, s60, s53\ns_lshl_b32 s53, s25, 6\ns_add_u32 s60, s60, s53\ns_add_u32 s60, s60, %d" % WS_A)
    if aslot == 1: a("s_lshl_b32 s60, s3, 18\ns_and_b32 s53, s24, 15\ns_lshl_b32 s53, s53, 10\ns_add_u32 s60, s60, s53\ns_lshl_b32 s53, s25, 7\ns_add_u32 s60, s60, s53\ns_lshr_b32 s53, s24, 4\ns_lshl_b32 s53, s53, 6\ns_add_u32 s60, s60, s53\ns_add_u32 s60, s60, %d" % WS_A)
    if aslot == 2: a("s_lshl_b32 s60, s3, 18\ns_lshl_b32 s53, s2, 6\ns_add_u32 s60, s60, s53\ns_add_u32 s60, s60, %d" % WS_A)
    cw = [int(c) for c in "%05d" % CW]
    a("s_lshl_b32 s53, s3, 2\ns_lshr_b32 s61, 0x%x, s53\ns_and_b32 s61, s61, 15" % sum(c << (4 * i) for i, c in enumerate(cw)))
    if PW <= 24:
        lwait(F_WOGO, "s61", Z, 3)
        def dummy():
            a("s_cmp_ge_u32 s3, 3\ns_cbranch_scc1 .Lnodum\ns_cmp_lt_u32 s3, %d\ns_cbranch_scc1 .Lnodum\ns_mul_i32 s28, s2, 7680\ns_add_u32 s29, s28, 4096" % (0 if abl & 64 else 2))
            for t in range(8): a("buffer_load_dwordx4 v[%d:%d], v17, s[44:47], s%d offen offset:%d%s" % (44 + 4 * t, 47 + 4 * t, 28 + t // 4, 1024 * (t & 3), NT))
            if abl & 512: a("s_waitcnt vmcnt(2)")
            a(".Lnodum:")
        if abl & 128 and abl & 256: dummy()
        stage2_loads(8, [7, 7, 7], 1280)
        if abl & 128 and not abl & 256: dummy()
    stamp(8)
    a("s_barrier")
    if PW > 24: stage2_loads(8, [7, 7, 7], 1280)
    stamp(9)
    poll(["buffer_load_dwordx4 v[%d:%d], v17, s[12:15], s54 offen sc1" % (G, G + 3)], [G + 3], 5)
    stamp(10)
    if bdef: a("s_cmp_lt_u32 s25, 6\ns_cbranch_scc1 .Laux_nob\n%s\n.Laux_nob:" % BST)
    red8("v_add_f32", [G, G + 1, G + 2])
    stage2(8, True)
    a("buffer_store_dwordx4 v[8:11], v20, s[12:15], s60 offen sc1")
    stamp(11)
    if gue: a("s_cmp_lt_u32 s3, 3\ns_cbranch_scc1 .Laux_nogu\ns_cmp_ge_u32 s25, 6\ns_cbranch_scc1 .Laux_nogu\ns_mov_b32 exec_hi, 0\nbuffer_store_dwordx4 v[36:39], v17, s[12:15], s51 offen sc1\n.Laux_nogu:")
    if ack: a("s_waitcnt vmcnt(0)"); stamp(12)
    a("s_cmp_ge_u32 s2, %d\ns_cbranch_scc1 .Laux_end\ns_barrier" % NRED)
    a(".Laux_end:")
    flush_stamps(range(1, 13))
    a(".Lend:\ns_endpgm")
    i0, i1 = a.l.index(".Lbulk2:"), a.l.index(".Laux:")
    a.l = a.l[:i0] + a.l[i1:] + a.l[i0:i1]
    base = a.l
    def build(np_):
        l = list(base)
        tb, ta = [], []
        for k in range(np_):
            wv = 5 + k if k < 8 else 12 - k
            (tb if k < 8 else ta).extend(["    s_cmp_eq_u32 s3, %d" % wv, "    s_cbranch_scc1 .Lpad_%d" % k])
        i = l.index(".Ltouch_b:"); l[i:i + 1] = tb
        i = l.index(".Ltouch_a:"); l[i:i + 1] = ta
        l += [".Lpad_%d:" % k for k in range(np_)]
        l, n = hazard.fix(l)
        return l[:len(l) - np_]
    np_ = 0
    while True:
        l = build(np_)
        if not warm: break
        l, k = pads.add(l, [".Lbulk2"] * 8 + [".Laux2"] * 5, WIN)
        if k == np_: break
        assert k > np_
        np_ = k
    a.l, n = hazard.fix(l)
    assert n == 0
    return a.text(256, 832, LDS_BYTES, 128)

if __name__ == "__main__":
    out = sys.argv[1]
    kw = dict(x.split("=") for x in sys.argv[2:])
    kw = {k: int(v) for k, v in kw.items()}
    open(out, "w").write(gen(**kw))
```

```python
import sys
from asmlib import *
import hazard, pads

WS_Q, WS_GU, WS_ST, WS_O, WS_B, WS_A = 0x10000, 0x80000, 0xC0000, 0x100000, 0x180000, 0x200000
L_Q, L_ST, L_FLAG, L_PART, L_RED, L_REDB = 0, 384, 448, 512, 8704, 8960
L_XN, L_H, L_WST = 9216, 10560, 10624
F_PROG, F_QRDY, F_STRDY, F_WOGO, F_HRDY, F_STC, F_MODE = [L_FLAG + 4 * i for i in range(7)]
LDS_BYTES = 11136
SPIN = 40000
LOG2E = "0x3fb8aa3b"
SCALE = "0x3d93cd3a"
M12 = "0x0fff0fff"

def gen(T=3, P1=24, PW=24, CW=88888, G1=12, G3=16, G2=36, stamps=0, NRED=80, SLP=0, dbgst=0, pol=0, QA=88, QB=56, TT=48, TTT=24, nodep=0, ack=0, pre=0, abl=0, NS=4, TH=32, NXQ=24, NXR=3, gue=1, early=0, bdef=1, aslot=0, warm=1, WIN=1280, tlb=0, rlo=0, pd=0, pa=0, lag=9999, pk=0, TP=0, SB=99, SBM=0, SBN=1, WA=0, WN=30, pat=0, A1=99, A2=0, AT=99, GUD=0, WDL=0, T0N=0, GA=99, QPL=2, SSP=0, Q4=0, Q1=0, TM=0, TM0=6, TM1=48, AE=0, GO=0, GN=38, GW=1, GT=99, oack=0, OD=0, OS=0, OQ=0, OW=0, PT=0, DG=0, DN=6, PQ=0, AN=0, XD=0, CL=0):
    a = Asm()
    NT = [" nt", "", " sc1 nt", " sc0 sc1 nt", " sc1", " sc0 sc1", " sc0 nt"][pol]
    assert 6 * QA + 2 * QB == 640 and QA % 8 == 0 and QB % 8 == 0
    NT1 = max(QA, QB, 80) // 8
    def stamp(k):
        if stamps: a("s_memrealtime s[%d:%d]" % (64 + 2 * k - 2, 64 + 2 * k - 1))
    def flush_stamps(ks):
        if dbgst >= 2 and len(ks) == 11:
            a("s_cmp_lg_u32 s3, 5\ns_cbranch_scc1 .Lend\ns_add_u32 s88, s88, %d\ns_mov_b32 s9, 100000" % dbgst)
            if pre == 1: a("s_waitcnt vmcnt(0)\nbuffer_wbl2 sc1\ns_waitcnt vmcnt(0)")
            if pre == 2: a("s_cmp_lg_u32 s2, 0\ns_cbranch_scc1 .Lend")
            a(".Lsp:\ns_memrealtime s[6:7]\ns_waitcnt lgkmcnt(0)\ns_sub_u32 s9, s9, 1\ns_cbranch_scc1 .Lend\ns_sub_u32 s7, s6, s88\ns_cmp_lt_i32 s7, 0\ns_cbranch_scc1 .Lsp")
        if dbgst == 1 and len(ks) == 11:
            a("s_cmp_lg_u32 s3, 5\ns_cbranch_scc1 .Lend")
            a("s_memrealtime s[90:91]\ns_memtime s[92:93]\ns_mov_b32 s40, s84\ns_mov_b32 s41, s85\ns_mov_b32 s42, 256\ns_mov_b32 s43, 0x00020000\ns_waitcnt lgkmcnt(0)\ns_mov_b64 exec, 1\nv_mov_b32 v2, 0\ns_sub_u32 s92, s92, s94\ns_sub_u32 s93, s90, s88\ns_not_b32 s88, s88\nv_mov_b32 v3, s88\nv_mov_b32 v4, s90\nv_mov_b32 v5, s92\nv_mov_b32 v6, s93")
            a("buffer_atomic_umax v3, v2, s[40:43], 0 offen sc1\nbuffer_atomic_umax v4, v2, s[40:43], 0 offen offset:4 sc1\nbuffer_atomic_umax v5, v2, s[40:43], 0 offen offset:8 sc1\nbuffer_atomic_umax v6, v2, s[40:43], 0 offen offset:12 sc1")
        if not stamps: return
        a("s_waitcnt lgkmcnt(0)\ns_mov_b64 exec, 1\nv_mov_b32 v2, 0\ns_lshl_b32 s40, s2, 10\ns_lshl_b32 s41, s3, 6\ns_add_u32 s40, s40, s41\ns_add_u32 s40, s40, %d" % STAMP_OFF)
        for k in [0] + list(ks):
            r = 88 if k == 0 else 64 + 2 * k - 2
            a("v_mov_b32 v3, s%d\nbuffer_store_dword v3, v2, s[12:15], s40 offen offset:%d" % (r, 4 * k))
        a("v_mov_b32 v3, s58\nbuffer_store_dword v3, v2, s[12:15], s40 offen offset:60")
        a("v_mov_b32 v3, s59\nbuffer_store_dword v3, v2, s[12:15], s40 offen offset:56")
    def zero_stamps():
        if stamps:
            a("s_mov_b32 s58, 0\ns_mov_b32 s59, 0")
            for k in range(1, 12): a("s_mov_b32 s%d, 0" % (64 + 2 * k - 2))
    def dpp(op, d, s0, s1, ctl, bank="0xf"):
        a("%s_dpp v%d, v%d, v%d %s row_mask:0xf bank_mask:%s" % (op, d, s0, s1, ctl, bank))
    def red8(op, regs_):
        for ctl in ("quad_perm:[1,0,3,2]", "quad_perm:[2,3,0,1]", "row_half_mirror"):
            for r in regs_: dpp(op, r, r, r, ctl)
    def redsw(op, pairs, sws):
        for sw in sws:
            for r, t in pairs: a("v_mov_b32 v%d, v%d" % (t, r))
            for r, t in pairs: a("%s v%d, v%d" % (sw, r, t))
            for r, t in pairs: a("%s v%d, v%d, v%d" % (op, r, r, t))
    def redrows(op, pairs):
        redsw(op, pairs, ("v_permlane16_swap_b32", "v_permlane32_swap_b32"))
    def redhi(op, pairs):
        for r, t in pairs: dpp(op, r, r, r, "row_ror:8")
        redrows(op, pairs)
    def redall(op, pairs):
        red8(op, [r for r, t in pairs]); redhi(op, pairs)
    def rbf(d, s):
        a("v_cvt_pk_bf16_f32 v%d, v%d, v%d\nv_lshlrev_b32 v%d, 16, v%d" % (d, s, s, d, d))
    def onehot(dst, tmp):
        for j in range(4): a("v_cndmask_b32 v%d, 0, v%d, s[%d:%d]" % (dst + j, tmp, 32 + 2 * j, 33 + 2 * j))
    def operand(dst, c, H, tmp):
        a("v_cvt_pk_bf16_f32 v%d, v%d, v%d\nv_and_b32 v%d, v%d, v%d" % (tmp, c, c, tmp, tmp, H))
        onehot(dst, tmp)
    def operand16(dst, c, SH):
        a("v_lshlrev_b32 v%d, v%d, v%d" % (c, SH, c))
        onehot(dst, c)
    def mfma(d, A, B, first):
        a("v_mfma_f32_16x16x32_bf16 v[%d:%d], v[%d:%d], v[%d:%d], %s" % (d, d + 3, A, A + 3, B, B + 3, "0" if first else "v[%d:%d]" % (d, d + 3)))
    def fold1(D, out):
        a("v_permlane32_swap_b32 v%d, v%d\nv_permlane32_swap_b32 v%d, v%d" % (D, D + 1, D + 2, D + 3))
        dpp("v_add_f32", out, D + 1, D, "row_ror:8", "0x3")
        dpp("v_add_f32", out, D + 2, D + 3, "row_ror:8", "0xc")
    def poll(loads, tags, errslot, nx=0):
        L, D = a.label("poll"), a.label("polld")
        a("s_mov_b32 s27, %d" % (SPIN // 4 if nx else SPIN))
        if nx: a("s_mov_b32 s62, %d" % (nx - 1))
        a(L + ":")
        if stamps and errslot == 5 and not ack: stamp(12)
        for l in loads: a(l)
        if stamps: a("s_add_u32 s59, s59, %d" % (1 << (5 * errslot)))
        a("s_waitcnt vmcnt(0)")
        a("v_cmp_ne_u32 s[40:41], s26, v%d" % tags[0])
        for t in tags[1:]:
            a("v_cmp_ne_u32 s[42:43], s26, v%d\ns_or_b64 s[40:41], s[40:41], s[42:43]" % t)
        if not (nodep >> errslot) & 1:
            a("s_cmp_eq_u64 s[40:41], 0\ns_cbranch_scc1 %s" % D)
            if nx:
                a("s_sub_u32 s62, s62, 1\ns_cbranch_scc0 %s\ns_mov_b32 s62, %d\nbuffer_wbl2 sc1\ns_waitcnt vmcnt(0)" % (L, NXR - 1))
                if stamps: a("s_or_b32 s58, s58, 512")
            a("s_sub_u32 s27, s27, 1\ns_cbranch_scc0 %s" % L)
        if stamps: a("s_or_b32 s58, s58, %d" % (1 << errslot))
        a(D + ":")
    def lwait(flag, thr, vaddr, vtmp, extra=()):
        L, D = a.label("lw"), a.label("lwd")
        if nodep & 64 and flag in (F_QRDY, F_STRDY, F_HRDY): thr = "0"
        a("s_mov_b32 s27, %d" % (SPIN * 8))
        a(L + ":")
        a("ds_read_b32 v%d, v%d offset:%d" % (vtmp, vaddr, flag))
        for l in extra: a(l)
        a("s_waitcnt lgkmcnt(0)\nv_readfirstlane_b32 s40, v%d\ns_cmp_ge_u32 s40, %s\ns_cbranch_scc1 %s" % (vtmp, thr, D))
        if SLP: a("s_sleep %d" % SLP)
        a("s_sub_u32 s27, s27, 1\ns_cbranch_scc0 %s" % L)
        if stamps: a("s_or_b32 s58, s58, 256")
        a(D + ":")
    def srd(base, ptr, size):
        a("s_mov_b32 s%d, s%d\ns_mov_b32 s%d, s%d\ns_mov_b32 s%d, %d\ns_mov_b32 s%d, 0x00020000" % (base, ptr, base + 1, ptr + 1, base + 2, size, base + 3))
    def nonce():
        a("s_waitcnt lgkmcnt(0)\ns_mul_i32 s26, s26, 0x19660d\ns_add_u32 s26, s26, 0x3c6ef35f")
    def masks():
        for j, m in enumerate(("0x03030303", "0x0c0c0c0c", "0x30303030", "0xc0c0c0c0")):
            a("s_mov_b32 s%d, %s\ns_mov_b32 s%d, %s" % (32 + 2 * j, m, 33 + 2 * j, m))
        a("v_and_b32 v2, 1, v0\nv_lshlrev_b32 v2, 4, v2")
    a("s_cmp_ge_u32 s2, 256\ns_cbranch_scc1 .Lend")
    a("s_load_dwordx16 s[64:79], s[0:1], 0\ns_load_dwordx8 s[80:87], s[0:1], 64")
    if stamps or dbgst: a("s_memrealtime s[88:89]")
    if dbgst == 1: a("s_memtime s[94:95]")
    a("""
    v_lshrrev_b32 v1, 6, v0
    v_and_b32 v0, 63, v0
    v_readfirstlane_b32 s3, v1
    s_and_b32 s24, s2, 7
    s_lshl_b32 s24, s24, 2
    s_bfe_u32 s25, s2, 0x20003
    s_or_b32 s24, s24, s25
    s_lshr_b32 s25, s2, 5
    v_lshrrev_b32 v4, 3, v0
    v_and_b32 v5, 7, v0
    s_cmp_lt_u32 s3, 5
    s_cbranch_scc1 .Laux
    """)
    KV = 32
    Q = 8
    SC = 20
    VOFF, H = 1, 2
    OP = 28
    T0, T1, T2, T3 = 3, 4, 5, 6
    TMX = TM; TM = 7
    a("""
    v_mul_u32_u24 v1, 384, v4
    v_lshl_add_u32 v1, v5, 4, v1
    s_sub_u32 s48, s3, 5
    s_mul_i32 s28, s24, 1572864
    s_mul_i32 s29, s25, 196608
    s_add_u32 s28, s28, s29
    s_mul_i32 s29, s48, 24576
    s_add_u32 s28, s28, s29
    s_add_u32 s29, s28, 6144
    s_add_u32 s30, s28, 12288
    s_add_u32 s31, s28, 18432
    """)
    if pat == 8: a("s_and_b32 s28, s2, 7\ns_mul_i32 s28, s28, 1572864\ns_lshr_b32 s29, s2, 3\ns_mul_i32 s29, s29, 49152\ns_add_u32 s28, s28, s29\ns_mul_i32 s29, s48, 6144\ns_add_u32 s28, s28, s29\ns_add_u32 s29, s28, 12582912\ns_add_u32 s30, s29, 12582912\ns_add_u32 s31, s30, 12582912")
    if pat == 9: a("s_and_b32 s28, s2, 15\ns_mul_i32 s28, s28, 1572864\ns_lshr_b32 s29, s2, 4\ns_mul_i32 s29, s29, 98304\ns_add_u32 s28, s28, s29\ns_mul_i32 s29, s48, 12288\ns_add_u32 s28, s28, s29\ns_add_u32 s29, s28, 6144\ns_add_u32 s30, s28, 25165824\ns_add_u32 s31, s30, 6144")
    a("s_waitcnt lgkmcnt(0)")
    srd(4, 66, 50331648)
    st = dict(n=0, landed=0)
    def need(idx):
        if idx >= st["landed"]:
            a("s_waitcnt vmcnt(%d)" % (st["n"] - 1 - idx)); st["landed"] = idx + 1
    def kvload(throttle=True):
        n = st["n"]; i = n % 24; t, ln = i // 3, i % 3
        Tn = T if n < TT else TTT
        if n < T0N: Tn = T - 1
        if 24 <= n < 24 + Q4: Tn = T + 1
        if TP and n >= 6: Tn = int(str(TP)[n % len(str(TP))])
        if pd and n == 5: a("s_load_dword s92, s[94:95], 0")
        if pd and n == 8: a("s_waitcnt lgkmcnt(0)\ns_cmp_eq_u32 s92, 0\ns_cselect_b32 s92, s88, s92")
        if pd and n >= 8:
            L = a.label("pc"); thr = (pa * 10 + min(n, 24) * (pk or pd) + max(n - 24, 0) * pd) // 10
            CK = "s_memrealtime s[90:91]\ns_waitcnt lgkmcnt(0)\ns_sub_u32 s90, s90, s92\ns_cmp_ge_i32 s90, %d\ns_cbranch_scc1 %s"
            if lag < 9999:
                need(n - Tn - 1); a(CK % (thr + lag, L)); a("s_waitcnt vmcnt(%d)" % (Tn - 1))
            else: need(n - Tn)
            a(CK % (thr, L)); a("s_waitcnt vmcnt(%d)\n%s:" % (Tn - 2, L))
        elif st.get("post") and SBM and SB <= n < SB + SBN:
            L = a.label("sb")
            need(n - Tn)
            a("ds_read_b32 v%d, v%d offset:%d\ns_waitcnt lgkmcnt(0)\nv_readfirstlane_b32 s40, v%d\ns_cmp_lg_u32 s40, 0\ns_cbranch_scc1 %s\ns_waitcnt vmcnt(%d)" % (T0, T3, F_STRDY, T0, L, SBM - 1))
            if stamps: a("s_add_u32 s59, s59, 1")
            a(L + ":")
        elif st.get("post") and n == SB:
            need(n - Tn)
            lwait(F_STRDY, "1", T3, T0)
        elif WA and WN <= n < WN + 4:
            L = a.label("wa")
            need(n - Tn - 1)
            a("s_cmp_ge_u32 s48, %d\ns_cbranch_scc1 %s\ns_waitcnt vmcnt(%d)" % (WA % 10, L, Tn - 1))
            if n < WN + (WA // 100): a("s_cmp_ge_u32 s48, %d\ns_cbranch_scc1 %s\ns_waitcnt vmcnt(%d)" % (WA // 10 % 10, L, Tn - 2))
            a(L + ":")
        elif TMX and TM0 <= n < TM1:
            L = a.label("tm")
            need(n - Tn)
            a("s_bitcmp1_b64 s[60:61], %d\ns_cbranch_scc1 %s\ns_waitcnt vmcnt(%d)\n%s:" % (n, L, Tn - 2, L))
        elif throttle and n >= Tn: need(n - Tn)
        r = KV + 4 * i
        a("buffer_load_dwordx4 v[%d:%d], v%d, s[%d:%d], s%d offen offset:%d%s" % (r, r + 3, VOFF, 4 if n < 24 else 8, 7 if n < 24 else 11, 28 + t // 2, 3072 * (t & 1) + 128 * ln, NT))
        st["n"] += 1
        n = st["n"]
        if n in (G1, G2, G3, GUD, WDL):
            a("s_mov_b64 exec, 1\nv_mov_b32 v%d, 0\nv_mov_b32 v%d, %d\nds_max_u32 v%d, v%d offset:%d\ns_mov_b64 exec, -1" % (OP, OP + 1, n, OP, OP + 1, F_PROG))
        if n == 24 + PW:
            a("s_mov_b64 exec, 1\nv_mov_b32 v%d, 0\nv_mov_b32 v%d, 1\nds_add_u32 v%d, v%d offset:%d\ns_mov_b64 exec, -1" % (OP, OP + 1, OP, OP + 1, F_WOGO))
    for _ in range(T - (1 if T0N else 0)): kvload()
    a("s_load_dword s26, s[86:87], 0")
    srd(8, 68, 50331648); srd(12, 86, 268435456); srd(16, 64, 1280); srd(20, 82, 1280)
    if pd: a("s_mov_b32 s94, s84\ns_mov_b32 s95, s85")
    zero_stamps()
    masks()
    a("v_mov_b32 v3, 0xffff\nv_lshlrev_b32 v2, v2, v3")
    a("v_lshlrev_b32 v6, 4, v5")
    if TMX:
        p = str(TMX); m = sum((p[i % len(p)] == "3") << i for i in range(64))
        a("s_mov_b32 s60, 0x%x\ns_mov_b32 s61, 0x%x\ns_mul_i32 s49, s48, %d\ns_lshr_b32 s49, s49, 3\ns_lshr_b64 s[60:61], s[60:61], s49" % (m & 0xffffffff, m >> 32, len(p)))
    a(".Ltouch_b:\ns_branch .Lbulk2\n.Lbulk2:")
    a("s_barrier")
    while st["n"] < P1: kvload()
    nonce()
    stamp(1)
    lwait(F_QRDY, "3", 6, T0, ["ds_read_b128 v[%d:%d], v6 offset:%d" % (Q + 4 * ln, Q + 4 * ln + 3, L_Q + 128 * ln) for ln in range(3)])
    stamp(2)
    def qk(t):
        if abl & 1: return
        acc = [T0, T1, T2]
        for j in range(4):
            for ln in range(3):
                a("v_dot2_f32_bf16 v%d, v%d, v%d, %s" % (acc[ln], KV + 12 * t + 4 * ln + j, Q + 4 * ln + j, "0" if j == 0 else "v%d" % acc[ln]))
        a("v_add_f32 v%d, v%d, v%d\nv_add_f32 v%d, v%d, v%d" % (T0, T0, T1, T0, T0, T2))
        red8("v_add_f32", [T0])
        rbf(T0, T0)
        a("v_mul_f32 v%d, %s, v%d" % (T0, SCALE, T0))
        rbf(SC + t, T0)
    tq = 0
    while tq < 8:
        did = 0
        while tq < 8 and did < (1 if tq < Q1 else QPL) and 3 * tq + 2 < st["landed"]:
            qk(tq); tq += 1; did += 1
        if tq < 8:
            if st["n"] >= 24 and (st["n"] - 24) // 3 >= tq:
                need(3 * tq + 2)
            else:
                kvload()
    if SSP & 1: kvload()
    a("v_max3_f32 v%d, v%d, v%d, v%d" % (TM, SC, SC + 1, SC + 2))
    a("v_max3_f32 v%d, v%d, v%d, v%d" % (T0, SC + 3, SC + 4, SC + 5))
    a("v_max3_f32 v%d, v%d, v%d, v%d" % (TM, TM, SC + 6, SC + 7))
    a("v_max_f32 v%d, v%d, v%d" % (TM, TM, T0))
    redhi("v_max_f32", [(TM, T0)])
    a("v_mul_f32 v%d, %s, v%d" % (T1, LOG2E, TM))
    a("s_mov_b32 s49, %s" % LOG2E)
    for t in range(8): a("v_fma_f32 v%d, v%d, s49, -v%d" % (SC + t, SC + t, T1))
    for t in range(8): a("v_exp_f32 v%d, v%d" % (SC + t, SC + t))
    if SSP & 2: kvload()
    a("v_add_f32 v%d, v%d, v%d\nv_add_f32 v%d, v%d, v%d" % (T2, SC, SC + 1, T3, SC + 2, SC + 3))
    a("v_add_f32 v%d, v%d, v%d\nv_add_f32 v%d, v%d, v%d" % (T2, T2, SC + 4, T3, T3, SC + 5))
    a("v_add_f32 v%d, v%d, v%d\nv_add_f32 v%d, v%d, v%d" % (T2, T2, SC + 6, T3, T3, SC + 7))
    S4 = Q
    a("v_add_f32 v%d, v%d, v%d" % (S4 + 1, T2, T3))
    redhi("v_add_f32", [(S4 + 1, T0)])
    a("v_mov_b32 v%d, v%d\nv_mov_b32 v%d, 0\nv_mov_b32 v%d, 1\ns_lshl_b32 s50, s48, 3\nv_mov_b32 v%d, s50" % (S4, TM, T3, S4 + 2, S4 + 3))
    a("s_mov_b64 exec, 1\nds_write_b64 v%d, v[%d:%d] offset:%d\nds_add_u32 v%d, v%d offset:%d\ns_mov_b64 exec, -1" % (S4 + 3, S4, S4 + 1, L_WST, T3, S4 + 2, F_STC))
    stamp(3)
    st["post"] = 1; assert SB >= st["n"] and SB >= G2, st["n"]; sys.stderr.write('n at stats %d\n' % st['n'])
    if GO:
        while st["n"] < GN: kvload()
        sv = dict(st)
        while st["n"] < 48:
            a("ds_read_b32 v%d, v%d offset:%d\ns_waitcnt lgkmcnt(0)\nv_readfirstlane_b32 s40, v%d\ns_cmp_lg_u32 s40, 0\ns_cbranch_scc1 .Lfast_%d" % (T0, T3, F_MODE, T0, st["n"]))
            kvload()
        a("s_branch .Lfast_48")
        st.update(sv)
        while st["n"] < 48:
            a(".Lfast_%d:" % st["n"])
            if stamps: a("s_add_u32 s59, s59, 1")
            if GT < 99: a("s_waitcnt vmcnt(%d)" % (GT - 1))
            kvload(False)
        a(".Lfast_48:")
    while st["n"] < 48: kvload()
    a("""
    v_and_b32 v1, 7, v0
    v_lshlrev_b32 v1, 3, v1
    v_bfe_u32 v5, v0, 4, 1
    v_lshl_add_u32 v1, v5, 2, v1
    v_bfe_u32 v5, v0, 3, 1
    v_lshl_add_u32 v1, v5, 1, v1
    v_bfe_u32 v5, v0, 5, 1
    v_add_u32 v1, v5, v1
    s_lshl_b32 s49, s48, 8
    """)
    PA = [28, 29, 30]
    stamp(4)
    lwait(F_STRDY, "1", T3, T0, ["ds_read_b64 v[%d:%d], v%d offset:%d" % (T1, T2, T3, L_ST)])
    a("s_mov_b32 s52, s40")
    stamp(5)
    a("v_sub_f32 v%d, v%d, v%d\nv_mul_f32 v%d, %s, v%d\nv_exp_f32 v%d, v%d\nv_mul_f32 v%d, v%d, v%d" % (T0, TM, T1, T0, LOG2E, T0, T0, T0, TM, T0, T2))
    for t in range(8):
        a("v_mul_f32 v%d, v%d, v%d" % (T0, SC + t, TM))
        operand(OP, T0, H, T1)
        for ln in range(3):
            need(24 + 3 * t + ln)
            mfma(Q + 4 * ln, OP, KV + 12 * t + 4 * ln, t == 0)
        if t == 6:
            PA[:] = [SC + 3, SC + 4, SC + 5]
            for ln in range(3):
                a("v_add_u32 v%d, %d, v1\nv_mul_u32_u24 v5, 171, v%d\nv_lshrrev_b32 v5, 9, v5\nv_add3_u32 v%d, v%d, v5, s49\nv_lshlrev_b32 v%d, 2, v%d" % (PA[ln], 64 * ln, PA[ln], PA[ln], PA[ln], PA[ln], PA[ln]))
            a("v_lshlrev_b32 v6, 4, v0\nv_lshlrev_b32 v5, %d, v0\ns_lshl_b32 s50, s24, 13\ns_lshl_b32 s51, s25, %d\ns_add_u32 s50, s50, s51\ns_add_u32 s50, s50, %d" % (4 if OD else 7, 10 if OD else 4, WS_O))
    stamp(6)
    for ln in range(3): fold1(Q + 4 * ln, SC + ln)
    if AE: a("s_branch .Lbulk_end")
    for ln in range(3): a("ds_write_b32 v%d, v%d offset:%d" % (PA[ln], SC + ln, L_PART))
    a("v_mov_b32 v11, s26\ns_waitcnt lgkmcnt(0)")
    a("s_barrier")
    a("s_cmp_ge_u32 s48, 1\ns_cbranch_scc1 .Lbulk_opub")
    for k in range(8): a("ds_read_b128 v[%d:%d], v6 offset:%d" % (32 + 4 * k, 35 + 4 * k, L_PART + 1024 * k))
    for st_, wv in ((4, 4), (8, 0), (16, 0)):
        for k in range(0, 32, 2 * st_):
            if st_ == 4: a("s_waitcnt lgkmcnt(%d)" % (6 - k // 4))
            d = 8 if st_ == 16 else 32 + k
            a("v_pk_add_f32 v[%d:%d], v[%d:%d], v[%d:%d]\nv_add_f32 v%d, v%d, v%d" % (d, d + 1, 32 + k, 33 + k, 32 + k + st_, 33 + k + st_, d + 2, 34 + k, 34 + k + st_))
    if oack: stamp(5)
    OST = ["buffer_store_dwordx4 v[8:11], v5, s[12:15], s50 offen", "buffer_atomic_swap_x2 v[8:9], v5, s[12:15], s50 offen\nbuffer_atomic_swap_x2 v[10:11], v5, s[12:15], s50 offen offset:8",
           "buffer_store_dwordx4 v[8:11], v5, s[12:15], s50 offen sc0", "buffer_store_dwordx4 v[8:11], v5, s[12:15], s50 offen sc1", "buffer_store_dwordx4 v[8:11], v5, s[12:15], s50 offen\nbuffer_load_dword v12, v5, s[12:15], s50 offen sc1"][OS]
    a("s_cmp_eq_u32 s52, 1\ns_cbranch_scc0 .Lbulk_opy\n%s\ns_branch .Lbulk_opub" % OST)
    a(".Lbulk_opy:\nbuffer_store_dwordx4 v[8:11], v5, s[12:15], s50 offen sc1")
    a(".Lbulk_opub:")
    if OQ:
        a("s_cmp_ge_u32 s48, 1\ns_cbranch_scc1 .Lbulk_oq")
        if OQ == 2: a("s_waitcnt vmcnt(0)")
        a("v_mov_b32 v12, 0\nv_mov_b32 v13, 2\nds_write_b32 v12, v13 offset:%d\n.Lbulk_oq:" % F_MODE)
    if oack: a("s_waitcnt vmcnt(0)")
    stamp(7)
    a("s_cmp_ge_u32 s2, %d\ns_cbranch_scc1 .Lbulk_end" % NRED)
    a("""
    v_and_b32 v31, 3, v0
    v_lshlrev_b32 v31, 4, v31
    s_lshr_b32 s49, s2, 3
    s_lshl_b32 s49, s49, 7
    s_and_b32 s50, s2, 1
    s_lshl_b32 s50, s50, 6
    s_add_u32 s49, s49, s50
    s_and_b32 s50, s2, 6
    s_lshl_b32 s50, s50, 1
    s_add_u32 s49, s49, s50
    buffer_load_dword v30, v31, s[16:19], s49 offen
    """)
    a("v_lshlrev_b32 v1, 4, v0\ns_lshl_b32 s50, s2, 14\ns_lshl_b32 s51, s48, 11\ns_add_u32 s50, s50, s51\ns_add_u32 s50, s50, %d" % WS_A)
    a("v_lshlrev_b32 v3, 3, v0\ns_lshl_b32 s51, s48, 5\nv_add_u32 v3, s51, v3")
    a("s_lshl_b32 s51, s2, 12\ns_lshl_b32 s52, s48, 9\ns_add_u32 s51, s51, s52\ns_add_u32 s51, s51, %d" % WS_B)
    a("v_mov_b32 v8, 0\nv_mov_b32 v9, 0\nv_mov_b32 v12, 0\nv_mov_b32 v13, 0\ns_mov_b64 s[44:45], -1\ns_mov_b64 s[46:47], -1\ns_mov_b32 s52, -1\ns_mov_b32 s53, 0")
    MS = (52, 44, 46)
    def aissue(k, X=""):
        R = 32 + 12 * k
        if stamps: stamp(11); a("s_add_u32 s59, s59, %d" % (1 << 20))
        a("s_or_b64 exec, s[52:53], 1\nbuffer_load_dwordx4 v[%d:%d], v1, s[12:15], s51 offen sc1" % (R, R + 3) + X)
        a("s_or_b64 exec, s[44:45], 1\nbuffer_load_dwordx4 v[%d:%d], v1, s[12:15], s50 offen sc1" % (R + 4, R + 7) + X)
        a("s_or_b64 exec, s[46:47], 1\nbuffer_load_dwordx4 v[%d:%d], v1, s[12:15], s50 offen offset:1024 sc1" % (R + 8, R + 11) + X)
    def acheck(k, w, br=True):
        for j in range(3):
            R, M, AC = 32 + 12 * k + 4 * j, MS[j], 12 if j == 0 else 8
            a("s_mov_b64 exec, s[%d:%d]\ns_waitcnt vmcnt(%d)" % (M, M + 1, w + 2 - j))
            a("v_cmp_eq_u32 vcc, s26, v%d\nv_cmp_eq_u32 s[42:43], s26, v%d\ns_and_b64 exec, vcc, s[42:43]" % (R + 1, R + 3))
            a("v_add_f32 v%d, v%d, v%d\nv_add_f32 v%d, v%d, v%d\ns_andn2_b64 s[%d:%d], s[%d:%d], exec" % (AC, AC, R, AC + 1, AC + 1, R + 2, M, M + 1, M, M + 1))
        if br: a("s_or_b64 s[40:41], s[44:45], s[46:47]\ns_or_b64 s[40:41], s[40:41], s[52:53]\ns_cbranch_scc0 .Lag_done")
    if early:
        aissue(0); acheck(0, 0, False)
    a("s_barrier")
    stamp(8)
    a("s_mov_b32 s27, %d" % SPIN)
    if early: a("s_branch .Lag_0")
    a(".Lag_1:")
    aissue(0, " nt" if AN else ""); acheck(0, 0)
    a(".Lag_0:")
    if NS > 1:
        a("s_bcnt1_i32_b64 s40, s[44:45]\ns_bcnt1_i32_b64 s41, s[46:47]\ns_add_u32 s40, s40, s41\ns_cmp_le_u32 s40, %d\ns_cbranch_scc1 .Lag_2" % TH)
    a("s_sub_u32 s27, s27, 1\ns_cbranch_scc0 .Lag_1")
    if NS > 1:
        a("s_branch .Lag_fail\n.Lag_2:")
        for k in range(NS - 1): aissue(k)
        a(".Lag_3:")
        for k in range(NS):
            aissue((k + NS - 1) % NS)
            acheck(k, 3 * (NS - 1))
        a("s_sub_u32 s27, s27, 1\ns_cbranch_scc0 .Lag_3\n.Lag_fail:")
    if stamps: a("s_or_b32 s58, s58, 16")
    a(".Lag_done:\ns_mov_b64 exec, -1")
    stamp(9)
    for r in (8, 9, 12, 13): dpp("v_add_f32", r, r, r, "row_ror:4")
    redhi("v_add_f32", [(8, 10), (9, 11), (12, 14), (13, 15)])
    a("s_mov_b64 exec, 15\nds_write_b64 v3, v[8:9] offset:%d\nds_write_b64 v3, v[12:13] offset:%d\ns_mov_b64 exec, -1\ns_waitcnt lgkmcnt(0)" % (L_RED, L_REDB))
    a("s_barrier")
    a("s_cmp_lg_u32 s48, 0\ns_cbranch_scc1 .Lbulk_end")
    a("v_lshlrev_b32 v3, 3, v0\nds_read_b64 v[8:9], v3 offset:%d" % L_RED)
    a("v_lshlrev_b32 v14, 16, v30\nv_and_b32 v15, 0xffff0000, v30\ns_waitcnt lgkmcnt(0)")
    for ctl in ("row_ror:4", "row_ror:8"):
        for r in (8, 9): dpp("v_add_f32", r, r, r, ctl)
    a("v_mov_b32 v10, v8\nv_mov_b32 v11, v9\nv_permlane16_swap_b32 v8, v10\nv_permlane16_swap_b32 v9, v11\nv_add_f32 v8, v8, v10\nv_add_f32 v9, v9, v11")
    a("v_cvt_pk_bf16_f32 v8, v8, v9\nv_mov_b32 v12, v8\nv_permlane32_swap_b32 v8, v12")
    a("v_and_b32 v9, 0xffff0000, v8\nv_lshlrev_b32 v8, 16, v8\nv_add_f32 v8, v8, v14\nv_add_f32 v9, v9, v15")
    a("v_and_b32 v13, 0xffff0000, v12\nv_lshlrev_b32 v12, 16, v12")
    a("v_cvt_pk_bf16_f32 v8, v8, v9\nv_and_b32 v9, 0xffff0000, v8\nv_lshlrev_b32 v8, 16, v8\nv_add_f32 v8, v8, v12\nv_add_f32 v9, v9, v13")
    a("v_cvt_pk_bf16_f32 v8, v8, v9")
    a("s_mov_b64 exec, 15\nbuffer_store_dword v8, v31, s[20:23], s49 offen")
    a("s_cmp_lg_u32 s2, 0\ns_cbranch_scc1 .Lbulk_end")
    a("s_mov_b64 exec, 1\nv_mov_b32 v9, s26\nv_mov_b32 v1, 0\nbuffer_store_dword v9, v1, s[12:15], 0 offen")
    a(".Lbulk_end:")
    stamp(10)
    flush_stamps(range(1, 12))
    a("s_endpgm")

    a(".Laux:\ns_setprio %d" % (0 if abl & 4 else 3))
    W1 = 32
    W2 = 76
    XF = 8
    C = 13
    G = 100
    AOP = 24
    ACC = 116
    Z = 124
    ONE = 127
    SH = 2
    a("v_mov_b32 v%d, 0\nv_mov_b32 v%d, 0\nv_mov_b32 v%d, 0\nv_mov_b32 v%d, 1\nv_lshlrev_b32 v1, 2, v0\nv_and_b32 v3, 60, v1" % (Z, Z + 1, Z + 2, ONE))
    a("ds_write_b32 v3, v%d offset:%d\nds_write_b32 v3, v%d offset:%d" % (Z, L_FLAG, Z, L_XN + 1280))
    a("""
    s_cmp_lt_u32 s3, 3
    s_cbranch_scc1 .Laux_q
    s_and_b32 s52, s24, 3
    s_lshl_b32 s52, s52, 1
    s_sub_u32 s53, s3, 3
    s_add_u32 s52, s52, s53
    s_mul_i32 s48, s52, 80
    s_lshr_b32 s53, s24, 2
    s_mul_i32 s53, s53, 3
    s_add_u32 s53, s53, s25
    s_sub_u32 s54, s53, 3
    s_cmp_ge_u32 s25, 3
    s_cselect_b32 s53, s54, s53
    s_cselect_b32 s54, 98304, 0
    s_lshl_b32 s49, s53, 7
    s_movk_i32 s50, 3072
    s_mul_i32 s51, s52, 12288
    s_lshl_b32 s53, s53, 9
    s_add_u32 s51, s51, s53
    s_mov_b32 s53, s54
    s_add_u32 s51, s51, s54
    s_add_u32 s51, s51, %d
    s_add_u32 s6, s48, 80
    s_waitcnt lgkmcnt(0)
    s_cmp_eq_u32 s53, 0
    s_cselect_b32 s4, s76, s78
    s_cselect_b32 s5, s77, s79
    s_branch .Laux_p
    .Laux_q:
    s_mul_i32 s48, s25, %d
    s_add_u32 s6, s48, %d
    s_mul_i32 s52, s25, %d
    s_add_u32 s52, s52, %d
    s_add_u32 s53, s52, %d
    s_cmp_ge_u32 s25, 6
    s_cselect_b32 s48, s52, s48
    s_cselect_b32 s6, s53, s6
    s_mul_i32 s49, s24, 384
    s_lshl_b32 s53, s3, 7
    s_add_u32 s49, s49, s53
    s_movk_i32 s50, 12288
    s_mul_i32 s51, s24, 12288
    s_mul_i32 s52, s25, 1536
    s_add_u32 s51, s51, s52
    s_lshl_b32 s53, s3, 9
    s_add_u32 s51, s51, s53
    s_add_u32 s51, s51, %d
    s_waitcnt lgkmcnt(0)
    s_mov_b32 s4, s70
    s_mov_b32 s5, s71
    .Laux_p:
    s_mul_i32 s6, s6, s50
    s_mov_b32 s7, 0x00020000
    """ % (WS_GU, QA, QA, QB, 6 * QA - 6 * QB, QB, WS_Q))
    srd(16, 64, 1280)
    if GO: a("s_mov_b32 s94, s84\ns_mov_b32 s95, s85")
    if pd or GO:
        a("s_or_b32 s52, s2, s3\ns_cbranch_scc1 .Lnp")
        srd(28, 84, 256)
        a("v_mov_b32 v3, s88\nbuffer_store_dword v3, v%d, s[28:31], 0 offen sc1\ns_waitcnt vmcnt(0)\n.Lnp:" % Z)
    a("s_cmp_lt_u32 s3, 3\ns_cbranch_scc1 .Laux_s1\ns_cmp_ge_u32 s25, 6\ns_cbranch_scc1 .Laux_s1skip")
    a(".Laux_s1:")
    for j in range(5): a("buffer_load_dword v%d, v1, s[16:19], 0 offen offset:%d" % (XF + j, 256 * j))
    a("v_mul_lo_u32 v6, v4, s50\nv_lshl_add_u32 v6, v5, 4, v6\ns_mul_i32 s52, s48, s50\ns_add_u32 s52, s52, s49\ns_lshl_b32 s50, s50, 3")
    if abl & 2: a("s_mov_b32 s6, 0")
    if abl & 64: a("s_cmp_lt_u32 s3, 3\ns_cselect_b32 s6, s6, 0")
    A1 = min(A1, NT1); A2 = min(A2, NT1 - A1)
    def w1load(t):
        a("buffer_load_dwordx4 v[%d:%d], v6, s[4:7], s52 offen%s" % (W1 + 4 * t, W1 + 4 * t + 3, NT))
        if t < NT1 - 1: a("s_add_u32 s52, s52, s50")
    if GUD: a("s_cmp_ge_u32 s3, 3\ns_cbranch_scc1 .Laux_s1skip")
    for t in range(A1): w1load(t)
    a(".Laux_s1skip:\n.Ltouch_a:\n.Laux2:")
    a("s_barrier")
    a("s_load_dword s26, s[86:87], 0")
    if abl & 32: a("s_endpgm")
    if AE == 1: a("s_endpgm")
    srd(8, 72, 0 if abl & 16 else 7864320); srd(12, 86, 268435456); srd(20, 80, 0 if abl & 8 else 1966080)
    if tlb: srd(44, 68, 50331648); srd(28, 82, 1280)
    if DG == 6: srd(44, 66, 50331648)
    if abl & 128: a("s_cmp_eq_u32 s3, 0\ns_cselect_b32 s44, s76, s78\ns_cselect_b32 s45, s77, s79\ns_cmp_eq_u32 s3, 2\ns_cselect_b32 s44, s80, s44\ns_cselect_b32 s45, s81, s45\ns_mov_b32 s46, 1966080\ns_mov_b32 s47, 0x00020000")
    zero_stamps()
    masks()
    if CL & 2: a("s_mov_b32 s63, %d" % WS_ST)
    a("s_lshl_b32 s55, s24, 1\ns_add_u32 s55, s55, s25\ns_sub_u32 s55, s55, 6")
    a("s_cmp_lt_u32 s3, 3\ns_cbranch_scc1 .Laux_ln\ns_cmp_ge_u32 s25, 6\ns_cbranch_scc1 .Laux_pub_skip")
    a(".Laux_ln:")
    if GUD: a("s_cmp_lt_u32 s3, 3\ns_cbranch_scc1 .Laux_l1\ns_waitcnt vmcnt(0)\ns_branch .Laux_l2\n.Laux_l1:")
    if PQ: a("v_lshlrev_b32 v7, 6, v0\ns_mov_b64 exec, 0xff\nbuffer_load_dword v%d, v7, s[12:15], s51 offen nt\ns_mov_b64 exec, -1" % (G + 12))
    a("s_waitcnt vmcnt(%d)" % (A1 + (1 if PQ else 0)))
    for t in range(A1, A1 + A2): w1load(t)
    if GUD: a(".Laux_l2:")
    stamp(1)
    U = G
    for j in range(5): a("v_lshlrev_b32 v%d, 16, v%d\nv_and_b32 v%d, 0xffff0000, v%d" % (U + 2 * j, XF + j, U + 2 * j + 1, XF + j))
    a("v_add_f32 v13, v%d, v%d" % (U, U + 1))
    for j in range(2, 10): a("v_add_f32 v13, v13, v%d" % (U + j))
    redall("v_add_f32", [(13, 14)])
    a("v_mul_f32 v13, 0x3acccccd, v13")
    a("v_sub_f32 v15, v%d, v13\nv_mul_f32 v14, v15, v15" % U)
    for j in range(1, 10): a("v_sub_f32 v15, v%d, v13\nv_fma_f32 v14, v15, v15, v14" % (U + j))
    redall("v_add_f32", [(14, 15)])
    a("v_mul_f32 v14, 0x3acccccd, v14")
    rbf(14, 14); a("v_add_f32 v14, 0x3727c5ac, v14"); rbf(14, 14)
    a("v_sqrt_f32 v14, v14"); rbf(14, 14); a("v_rcp_f32 v14, v14")
    rbf(13, 13)
    for j in range(10): a("v_sub_f32 v%d, v%d, v13" % (U + j, U + j))
    for j in range(5):
        a("v_cvt_pk_bf16_f32 v%d, v%d, v%d" % (XF + j, U + 2 * j, U + 2 * j + 1))
        a("v_lshlrev_b32 v%d, 16, v%d\nv_and_b32 v%d, 0xffff0000, v%d" % (U + 2 * j, XF + j, U + 2 * j + 1, XF + j))
        a("v_mul_f32 v%d, v%d, v14\nv_mul_f32 v%d, v%d, v14" % (U + 2 * j, U + 2 * j, U + 2 * j + 1, U + 2 * j + 1))
        a("v_cvt_pk_bf16_f32 v%d, v%d, v%d" % (XF + j, U + 2 * j, U + 2 * j + 1))
        a("ds_write_b32 v1, v%d offset:%d" % (XF + j, L_XN + 256 * j))
    a("v_add_lshl_u32 v3, v4, s48, 1")
    for t in range(NT1): a("ds_read_u16 v%d, v3 offset:%d" % (C + t, L_XN + 16 * t))
    nonce()
    stamp(2)
    if GUD:
        a("s_cmp_lt_u32 s3, 3\ns_cbranch_scc1 .Laux_l3")
        if GUD > 1: lwait(F_PROG, str(GUD), Z, 3)
        for t in range(A1 + A2):
            if t >= GA: a("s_waitcnt vmcnt(%d)" % (GA - 1))
            w1load(t)
        a(".Laux_l3:")
    iss = A1 + A2
    while iss < min(AT, NT1): w1load(iss); iss += 1
    for t in range(NT1):
        op = AOP + 4 * (t & 1)
        operand16(op, C + t, SH)
        a("s_waitcnt vmcnt(%d)" % (iss - 1 - t + (1 if PQ == 1 or (PQ and t < NT1 - 1) else 0)))
        while iss < min(t + 1 + AT, NT1): w1load(iss); iss += 1
        mfma(ACC, op, W1 + 4 * t, t == 0)
    a("v_lshlrev_b32 v1, 4, v0")
    fold1(ACC, 36)
    a("v_mov_b32 v37, s26\nv_mov_b32 v39, s26\nv_permlane32_swap_b32 v36, v38")
    if AE == 2: a("s_endpgm")
    a("s_mov_b32 exec_hi, 0\nbuffer_store_dwordx4 v[36:39], v1, s[12:15], s51 offen")
    a("s_mov_b64 exec, -1")
    stamp(3)
    a("s_branch .Laux_pub_done\n.Laux_pub_skip:")
    nonce()
    a(".Laux_pub_done:")
    if AE in (2, 3): a("s_endpgm")
    if AE == 7: lwait(F_WOGO, "8", Z, 3); a("s_endpgm")
    if tlb:
        a("s_cmp_lg_u32 s3, 3\ns_cbranch_scc1 .Laux_notlb\ns_mov_b64 exec, 1")
        if tlb & 1:
            a("s_mul_i32 s52, s24, 1572864\ns_mul_i32 s53, s25, 196608\ns_add_u32 s52, s52, s53\ns_add_u32 s53, s52, 196480")
            a("buffer_load_dword v44, v%d, s[44:47], s52 offen\nbuffer_load_dword v45, v%d, s[44:47], s53 offen" % (Z, Z))
        if tlb & 2:
            a("s_mul_i32 s52, s24, 192\ns_mul_i32 s53, s25, 24\ns_add_u32 s52, s52, s53\ns_mul_i32 s52, s52, 1280\ns_add_u32 s53, s52, 30592")
            a("buffer_load_dword v46, v%d, s[8:11], s52 offen\nbuffer_load_dword v47, v%d, s[8:11], s53 offen" % (Z, Z))
        if tlb & 4:
            a("s_mov_b32 s52, %d\nbuffer_load_dword v48, v%d, s[12:15], s52 offen" % (WS_A + 0x180000, Z))
        if tlb & 8:
            a("buffer_load_dword v49, v%d, s[28:31], 0 offen" % Z)
        a("s_mov_b64 exec, -1\n.Laux_notlb:")
    def stage2_loads(srdb, voffs, step):
        for t in range(3):
            for ln in range(2):
                r = W2 + 8 * t + 4 * ln
                a("buffer_load_dwordx4 v[%d:%d], v%d, s[%d:%d], s52 offen offset:%d%s" % (r, r + 3, voffs[t], srdb, srdb + 3, 128 * ln, NT))
            if t < 2 and step: a("s_add_u32 s52, s52, %d" % step)
    def wdl():
        a("s_cmp_lt_u32 s25, 6\ns_cbranch_scc1 .Laux_nowdl")
        a("s_mul_i32 s56, s55, 24")
        for t in range(3):
            r = 16 + t
            a("v_add_u32 v3, s56, v4\nv_and_b32 v%d, 0xffffffc1, v3\nv_bfe_u32 v6, v3, 1, 3\nv_lshl_or_b32 v%d, v6, 3, v%d\nv_bfe_u32 v6, v3, 4, 2\nv_lshl_or_b32 v%d, v6, 1, v%d" % (r, r, r, r, r))
            a("v_mul_u32_u24 v%d, 1280, v%d\nv_lshl_add_u32 v%d, v5, 4, v%d" % (r, r, r, r))
            if t < 2: a("s_add_u32 s56, s56, 8")
        a("s_lshl_b32 s52, s3, 8")
        if WDL: lwait(F_PROG, str(WDL), Z, 3)
        stage2_loads(20, [16, 17, 18], 0)
        a(".Laux_nowdl:")
    if not WDL: wdl()
    a("v_lshrrev_b32 v3, 2, v0\nv_and_b32 v6, 3, v0\nv_lshlrev_b32 v6, 4, v6\nv_lshl_add_u32 v19, v3, 12, v6\nv_lshl_add_u32 v20, v3, 14, v6\nv_lshlrev_b32 v12, 1, v4")
    a("v_and_b32 v13, 15, v0\nv_lshrrev_b32 v14, 4, v0")
    a("s_cmp_ge_u32 s3, 3\ns_cbranch_scc1 .Laux_qdone")
    a("v_and_b32 v1, 31, v0\nv_lshlrev_b32 v1, 4, v1\nv_lshrrev_b32 v3, 5, v0\nv_mul_u32_u24 v3, 1536, v3\nv_add_u32 v1, v1, v3")
    a("s_mul_i32 s52, s24, 12288\ns_lshl_b32 s53, s3, 9\ns_add_u32 s52, s52, s53\ns_add_u32 s52, s52, %d\ns_add_u32 s53, s52, 6144" % WS_Q)
    a("v_lshlrev_b32 v6, 4, v5\nv_bfe_u32 v3, v0, 4, 1\nv_lshl_add_u32 v6, v3, 3, v6\nv_bfe_u32 v3, v0, 3, 1\nv_lshl_add_u32 v6, v3, 2, v6\ns_lshl_b32 s54, s3, 7\nv_add_u32 v6, s54, v6")
    lwait(F_PROG, str(G1), Z, 3)
    poll(["buffer_load_dwordx4 v[%d:%d], v1, s[12:15], s%d offen offset:%d sc1" % (G + 4 * i, G + 4 * i + 3, 52 + i // 2, 3072 * (i & 1)) for i in range(4)], [G + 2 * i + 1 for i in range(8)], 0, NXQ)
    for e in (0, 2): a("v_add_f32 v%d, v%d, v%d\nv_add_f32 v%d, v%d, v%d" % (G + e, G + e, G + 4 + e, G + 8 + e, G + 8 + e, G + 12 + e))
    for e in (0, 2): a("v_add_f32 v%d, v%d, v%d" % (G + e, G + e, G + 8 + e))
    redsw("v_add_f32", [(G, G + 1), (G + 2, G + 3)], ("v_permlane32_swap_b32",))
    a("v_cvt_pk_bf16_f32 v%d, v%d, v%d\nds_write_b32 v6, v%d offset:%d" % (G, G, G + 2, G, L_Q))
    a("s_waitcnt lgkmcnt(0)\ns_mov_b64 exec, 1\nds_add_u32 v%d, v%d offset:%d\ns_mov_b64 exec, -1" % (Z, ONE, F_QRDY))
    stamp(4)
    a(".Laux_qdone:")
    if AE == 4: a("s_endpgm")
    if WDL: wdl()
    a("s_cmp_lt_u32 s25, 6\ns_cbranch_scc1 .Laux_wddone")
    a("s_cmp_lg_u32 s3, 3\ns_cbranch_scc1 .Laux_hwait")
    a("v_mul_u32_u24 v1, 12288, v14\nv_lshl_add_u32 v1, v13, 4, v1\ns_mul_i32 s52, s55, 192\ns_add_u32 s52, s52, %d\ns_add_u32 s53, s52, 49152\ns_add_u32 s54, s52, 98304\ns_add_u32 s57, s52, 147456\nv_lshlrev_b32 v6, 2, v13" % WS_GU)
    lwait(F_PROG, str(G3), Z, 3)
    a("s_mov_b32 exec_lo, %s\ns_mov_b32 exec_hi, %s" % (M12, M12))
    poll(["buffer_load_dwordx4 v[%d:%d], v1, s[12:15], s%d offen sc1" % (G + 4 * i, G + 4 * i + 3, [52, 53, 54, 57][i]) for i in range(4)], [G + 2 * i + 1 for i in range(8)], 1)
    for e in (0, 2): a("v_add_f32 v%d, v%d, v%d\nv_add_f32 v%d, v%d, v%d" % (G + e, G + e, G + 4 + e, G + 8 + e, G + 8 + e, G + 12 + e))
    redrows("v_add_f32", [(G, G + 1), (G + 2, G + 3), (G + 8, G + 9), (G + 10, G + 11)])
    for r in (G, G + 2, G + 8, G + 10): rbf(r, r)
    for e in (0, 2):
        g, u = G + e, G + 8 + e
        a("v_mul_f32 v%d, 0xbfb8aa3b, v%d\nv_exp_f32 v%d, v%d\nv_add_f32 v%d, 1.0, v%d\nv_rcp_f32 v%d, v%d" % (g, g, g, g, g, g, g, g))
        rbf(g, g)
        a("v_mul_f32 v%d, v%d, v%d" % (g, g, u))
    a("v_cvt_pk_bf16_f32 v%d, v%d, v%d\nds_write_b32 v6, v%d offset:%d" % (G, G, G + 2, G, L_H))
    a("s_waitcnt lgkmcnt(0)\ns_mov_b64 exec, 1\nds_write_b32 v%d, v%d offset:%d\ns_mov_b64 exec, -1" % (Z, ONE, F_HRDY))
    a(".Laux_hwait:")
    def stage2(R, f32=False):
        for t in range(3):
            op = AOP + 4 * t
            if f32: operand(op, G + t, 22, G + t)
            else: operand16(op, G + t, SH)
            mfma(ACC, op, W2 + 8 * t, t == 0)
            mfma(ACC + 4, op, W2 + 8 * t + 4, t == 0)
        for r in range(4): a("v_permlane32_swap_b32 v%d, v%d" % (ACC + r, ACC + 4 + r))
        X, Y = ACC, ACC + 4
        dpp("v_add_f32", R, Y + 0, X + 0, "row_ror:8", "0x3")
        dpp("v_add_f32", R + 2, Y + 1, X + 1, "row_ror:8", "0x3")
        dpp("v_add_f32", R, X + 2, Y + 2, "row_ror:8", "0xc")
        dpp("v_add_f32", R + 2, X + 3, Y + 3, "row_ror:8", "0xc")
    BST = "buffer_store_dwordx4 v[40:43], v19, s[12:15], s56 offen sc1"
    a("s_lshl_b32 s56, s3, 16\ns_lshl_b32 s53, s55, 6\ns_add_u32 s56, s56, s53\ns_add_u32 s56, s56, %d\nv_mov_b32 v41, s26\nv_mov_b32 v43, s26" % WS_B)
    lwait(F_HRDY, "1", Z, 3, ["ds_read_u16 v%d, v12 offset:%d" % (G + t, L_H + 16 * t) for t in range(3)])
    a("s_waitcnt vmcnt(0)")
    stage2(40)
    if not bdef: a(BST)
    stamp(5)
    a(".Laux_wddone:")
    if AE == 5: a("s_endpgm")
    a("s_cmp_lg_u32 s3, 4\ns_cbranch_scc1 .Laux_s2")
    a("v_lshlrev_b32 v1, 4, v0\nv_lshlrev_b32 v6, 3, v0\ns_lshl_b32 s52, s24, 10\ns_add_u32 s52, s52, %d\ns_lshl_b32 s53, s25, 7\ns_add_u32 s53, s53, s52\ns_getreg_b32 s57, hwreg(HW_REG_XCC_ID, 0, 4)\nv_mov_b32 v%d, s57\nv_mov_b32 v%d, s26" % (WS_ST, G + 6, G + 7))
    if PQ & 4: lwait(F_STC, "1", Z, 3); a("s_mov_b64 exec, 0xff\nbuffer_load_dwordx4 v[%d:%d], v1, s[12:15], s53 offen nt\ns_mov_b64 exec, -1" % (G + 8, G + 11))
    lwait(F_STC, "8", Z, 3, ["ds_read_b64 v[%d:%d], v6 offset:%d" % (G + 4, G + 5, L_WST)])
    a("s_mov_b64 exec, 0xff\nbuffer_store_dwordx4 v[%d:%d], v1, s[12:15], s53 offen" % (G + 4, G + 7))
    if CL & 2: a("s_mov_b32 s63, s53")
    a("s_mov_b64 exec, -1")
    stamp(4)
    lwait(F_PROG, str(G2), Z, 3)
    stamp(6)
    poll(["buffer_load_dwordx4 v[%d:%d], v1, s[12:15], s52 offen sc1" % (G, G + 3)], [G + 3], 3, NXQ)
    a("v_cmp_ne_u32 s[40:41], s57, v%d\nv_mov_b32 v21, 1\ns_cmp_eq_u64 s[40:41], 0\ns_cbranch_scc1 .Laux_same\nbuffer_wbl2 sc1\nv_mov_b32 v21, 2\ns_waitcnt vmcnt(0)\n.Laux_same:" % (G + 2))
    a("v_mov_b32 v16, v%d" % G)
    redall("v_max_f32", [(16, 18)])
    a("v_sub_f32 v17, v%d, v16\nv_mul_f32 v17, %s, v17\nv_exp_f32 v17, v17\nv_mul_f32 v17, v17, v%d" % (G, LOG2E, G + 1))
    redall("v_add_f32", [(17, 18)])
    a("v_rcp_f32 v17, v17\ns_mov_b64 exec, 1\nds_write_b64 v%d, v[16:17] offset:%d\ns_waitcnt lgkmcnt(0)\nds_write_b32 v%d, v21 offset:%d\ns_mov_b64 exec, -1" % (Z, L_ST, Z, F_STRDY))
    a(".Laux_s2:")
    if AE == 6: a("s_endpgm")
    stamp(7)
    a("v_mul_u32_u24 v7, 3840, v4\nv_lshl_add_u32 v7, v5, 4, v7")
    a("s_mul_i32 s52, s24, 192\ns_mul_i32 s53, s25, 24\ns_add_u32 s52, s52, s53\ns_mul_i32 s52, s52, 1280\ns_lshl_b32 s53, s3, 8\ns_add_u32 s52, s52, s53")
    a("v_lshlrev_b32 v17, 4, v0\ns_lshl_b32 s54, s24, 13\ns_lshl_b32 s53, s25, %d\ns_add_u32 s54, s54, s53\ns_add_u32 s54, s54, %d" % (7 if OD else 10, WS_O))
    if OD == 1: a("v_lshlrev_b32 v18, 10, v5\nv_lshl_add_u32 v18, v4, 4, v18")
    if OD == 2: a("v_lshlrev_b32 v18, 10, v4\nv_lshl_add_u32 v18, v5, 4, v18\nv_lshlrev_b32 v23, 2, v4\nv_lshl_add_u32 v23, v5, 5, v23")
    if PT:
        PL = "buffer_load_dwordx4 v[%d:%d], v%d, s[12:15], s54 offen" % (G + 4, G + 7, 18 if OD else 17)
        a("s_cmp_lg_u32 s3, %d\ns_cbranch_scc1 .Laux_npt\n%s\n.Laux_npt:" % (PT % 10, [PL + " sc1", PL + " nt", PL + " nt\ns_waitcnt vmcnt(0)\n" + PL + " sc1"][PT // 10]))
    if DG:
        a("s_cmp_lg_u32 s3, 1\ns_cbranch_scc1 .Laux_ndg\ns_lshl_b32 s28, s2, 13\ns_add_u32 s28, s28, 0x400000")
        if DG == 6: a("s_mul_i32 s28, s24, 1572864\ns_mul_i32 s29, s25, 196608\ns_add_u32 s28, s28, s29\ns_add_u32 s28, s28, 98304")
        if DG == 5: a("s_add_u32 s30, s12, s28\ns_addc_u32 s31, s13, 0")
        for k in range(DN):
            if DG == 5:
                for j in range(8): a("s_load_dword s29, s[30:31], %d" % (1024 * k + 128 * j))
                a("s_waitcnt lgkmcnt(0)")
            else:
                a("buffer_load_dwordx4 v[%d:%d], v17, s[%s], s28 offen%s\ns_waitcnt vmcnt(0)" % (G + 4, G + 7, "44:47" if DG == 6 else "12:15", {1: " sc1", 2: "", 3: " nt", 4: " sc1", 6: " nt"}[DG]))
                if DG != 4: a("s_add_u32 s28, s28, 1024")
        stamp(6)
        a(".Laux_ndg:")
    if XD:
        a("s_lshl_b32 s28, s2, 13\ns_lshl_b32 s29, s3, 10\ns_add_u32 s28, s28, s29\ns_add_u32 s28, s28, 0x400000")
        for k in range(XD): a("buffer_store_dwordx4 v[36:39], v17, s[12:15], s28 offen\ns_add_u32 s28, s28, 0x200000")
    a("v_mov_b32 v9, s26\nv_mov_b32 v11, s26\nv_mov_b32 v22, 0xffff\nv_lshlrev_b32 v22, v%d, v22" % SH)
    if aslot == 0: a("s_lshl_b32 s60, s3, 18\ns_lshl_b32 s53, s24, 9\ns_add_u32 s60, s60, s53\ns_lshl_b32 s53, s25, 6\ns_add_u32 s60, s60, s53\ns_add_u32 s60, s60, %d" % WS_A)
    if aslot == 1: a("s_lshl_b32 s60, s3, 18\ns_and_b32 s53, s24, 15\ns_lshl_b32 s53, s53, 10\ns_add_u32 s60, s60, s53\ns_lshl_b32 s53, s25, 7\ns_add_u32 s60, s60, s53\ns_lshr_b32 s53, s24, 4\ns_lshl_b32 s53, s53, 6\ns_add_u32 s60, s60, s53\ns_add_u32 s60, s60, %d" % WS_A)
    if aslot == 2: a("s_lshl_b32 s60, s3, 18\ns_lshl_b32 s53, s2, 6\ns_add_u32 s60, s60, s53\ns_add_u32 s60, s60, %d" % WS_A)
    cw = [int(c) for c in "%05d" % CW]
    a("s_lshl_b32 s53, s3, 2\ns_lshr_b32 s61, 0x%x, s53\ns_and_b32 s61, s61, 15" % sum(c << (4 * i) for i, c in enumerate(cw)))
    if GO:
        a("s_cmp_lg_u32 s3, 1\ns_cbranch_scc1 .Lgo_done\ns_load_dword s92, s[94:95], 0\ns_mov_b32 s27, 100000\nv_mov_b32 v16, 8")
        a(".Lgo_l:\ns_memrealtime s[90:91]\nds_read_b32 v3, v%d offset:%d\ns_waitcnt lgkmcnt(0)\nv_readfirstlane_b32 s40, v3\ns_cmp_ge_u32 s40, 8\ns_cbranch_scc1 .Lgo_done" % (Z, F_WOGO))
        a("s_sub_u32 s27, s27, 1\ns_cbranch_scc1 .Lgo_done\ns_sub_u32 s90, s90, s92\ns_cmp_lt_i32 s90, %d\ns_cbranch_scc1 .Lgo_l" % GO)
        a("s_mov_b64 exec, 1\nds_write_b32 v%d, v%d offset:%d" % (Z, ONE, F_MODE))
        if GW: a("ds_add_u32 v%d, v16 offset:%d" % (Z, F_WOGO))
        a("s_mov_b64 exec, -1\n.Lgo_done:")
    if PW <= 24:
        lwait(F_WOGO, "s61", Z, 3)
        def dummy():
            a("s_cmp_ge_u32 s3, 3\ns_cbranch_scc1 .Lnodum\ns_cmp_lt_u32 s3, %d\ns_cbranch_scc1 .Lnodum\ns_mul_i32 s28, s2, 7680\ns_add_u32 s29, s28, 4096" % (0 if abl & 64 else 2))
            for t in range(8): a("buffer_load_dwordx4 v[%d:%d], v17, s[44:47], s%d offen offset:%d%s" % (44 + 4 * t, 47 + 4 * t, 28 + t // 4, 1024 * (t & 3), NT))
            if abl & 512: a("s_waitcnt vmcnt(2)")
            a(".Lnodum:")
        if abl & 128 and abl & 256: dummy()
        stage2_loads(8, [7, 7, 7], 1280)
        if abl & 128 and not abl & 256: dummy()
    stamp(8)
    a("s_barrier")
    if PW > 24: stage2_loads(8, [7, 7, 7], 1280)
    if OQ: lwait(F_MODE, "2", Z, 3)
    if OW: a("s_waitcnt vmcnt(0)")
    stamp(9)
    GOI = G + 8 if CL & 4 else G
    poll(["buffer_load_dwordx4 v[%d:%d], v%d, s[12:15], s54 offen sc1" % (GOI, GOI + 3, 18 if OD else 17)], [GOI + 3], 5)
    if OD == 2:
        for t in range(3): a("ds_bpermute_b32 v%d, v23, v%d" % (G + t, G + t))
    stamp(10)
    if bdef: a("s_cmp_lt_u32 s25, 6\ns_cbranch_scc1 .Laux_nob\n%s\n.Laux_nob:" % BST)
    if OD == 2: a("s_waitcnt lgkmcnt(0)")
    assert not (OD == 2 and CL & 4)
    for i, ctl in enumerate(("quad_perm:[1,0,3,2]", "quad_perm:[2,3,0,1]", "row_half_mirror")):
        for t in range(3): dpp("v_add_f32", G + t, (G if i else GOI) + t, (G if i else GOI) + t, ctl)
    stage2(8, True)
    a("buffer_store_dwordx4 v[8:11], v20, s[12:15], s60 offen sc1")
    stamp(11)
    if CL & 4: a("s_cmp_lg_u32 s3, 2\ns_cbranch_scc1 .Laux_nco\nbuffer_store_dwordx4 v[%d:%d], v17, s[12:15], s54 offen sc1\n.Laux_nco:" % (GOI, GOI + 3))
    if CL & 2: a("s_cmp_lg_u32 s3, 4\ns_cbranch_scc1 .Laux_ncs\ns_mov_b64 exec, 0xff\nbuffer_store_dwordx4 v[%d:%d], v17, s[12:15], s63 offen sc1\ns_mov_b64 exec, -1\n.Laux_ncs:" % (G + 4, G + 7))
    if gue: a("s_cmp_lt_u32 s3, 3\ns_cbranch_scc1 %s\ns_cmp_ge_u32 s25, 6\ns_cbranch_scc1 .Laux_nogu\n.Laux_gu:\ns_mov_b32 exec_hi, 0\nbuffer_store_dwordx4 v[36:39], v17, s[12:15], s51 offen sc1\n.Laux_nogu:" % (".Laux_gu" if CL & 1 else ".Laux_nogu"))
    if ack: a("s_waitcnt vmcnt(0)"); stamp(12)
    a("s_cmp_ge_u32 s2, %d\ns_cbranch_scc1 .Laux_end\ns_barrier" % NRED)
    a(".Laux_end:")
    flush_stamps(range(1, 13))
    a(".Lend:\ns_endpgm")
    i0, i1 = a.l.index(".Lbulk2:"), a.l.index(".Laux:")
    a.l = a.l[:i0] + a.l[i1:] + a.l[i0:i1]
    base = a.l
    def build(np_):
        l = list(base)
        tb, ta = [], []
        for k in range(np_):
            wv = 5 + k if k < 8 else 12 - k
            (tb if k < 8 else ta).extend(["    s_cmp_eq_u32 s3, %d" % wv, "    s_cbranch_scc1 .Lpad_%d" % k])
        i = l.index(".Ltouch_b:"); l[i:i + 1] = tb
        i = l.index(".Ltouch_a:"); l[i:i + 1] = ta
        l += [".Lpad_%d:" % k for k in range(np_)]
        l, n = hazard.fix(l)
        return l[:len(l) - np_]
    np_ = 0
    while True:
        l = build(np_)
        if not warm: break
        l, k = pads.add(l, [".Lbulk2"] * 8 + [".Laux2"] * 5, WIN)
        if k == np_: break
        assert k > np_
        np_ = k
    a.l, n = hazard.fix(l)
    assert n == 0
    return a.text(256, 832, LDS_BYTES, 128)

if __name__ == "__main__":
    out = sys.argv[1]
    kw = dict(x.split("=") for x in sys.argv[2:])
    kw = {k: int(v) for k, v in kw.items()}
    open(out, "w").write(gen(**kw))
```

```python
import sys
from asmlib import *
import hazard, pads

WS_Q, WS_GU, WS_ST, WS_O, WS_B, WS_A = 0x10000, 0x80000, 0xC0000, 0x100000, 0x180000, 0x200000
L_Q, L_ST, L_FLAG, L_PART, L_RED, L_REDB = 0, 384, 448, 512, 8704, 8960
L_XN, L_H, L_WST = 9216, 10560, 10624
F_PROG, F_QRDY, F_STRDY, F_WOGO, F_HRDY, F_STC, F_MODE = [L_FLAG + 4 * i for i in range(7)]
LDS_BYTES = 11136
SPIN = 40000
LOG2E = "0x3fb8aa3b"
SCALE = "0x3d93cd3a"
M12 = "0x0fff0fff"

def gen(T=3, P1=24, PW=24, CW=88888, G1=12, G3=16, G2=36, stamps=0, NRED=80, SLP=0, dbgst=0, pol=0, QA=88, QB=56, TT=48, TTT=24, nodep=0, ack=0, pre=0, abl=0, NS=4, TH=32, NXQ=24, NXR=3, gue=1, early=0, bdef=1, aslot=0, warm=1, WIN=1280, tlb=0, rlo=0, pd=0, pa=0, lag=9999, pk=0, TP=0, SB=99, SBM=0, SBN=1, WA=0, WN=30, pat=0, A1=99, A2=0, AT=99, GUD=0, WDL=0, T0N=0, GA=99, QPL=2, SSP=0, Q4=0, Q1=0, TM=0, TM0=6, TM1=48, AE=0, GO=0, GN=38, GW=1, GT=99, oack=0, OD=0, OS=0, OQ=0, OW=0, PT=0, DG=0, DN=6, PQ=0, AN=0, XD=0):
    a = Asm()
    NT = [" nt", "", " sc1 nt", " sc0 sc1 nt", " sc1", " sc0 sc1", " sc0 nt"][pol]
    assert 6 * QA + 2 * QB == 640 and QA % 8 == 0 and QB % 8 == 0
    NT1 = max(QA, QB, 80) // 8
    def stamp(k):
        if stamps: a("s_memrealtime s[%d:%d]" % (64 + 2 * k - 2, 64 + 2 * k - 1))
    def flush_stamps(ks):
        if dbgst >= 2 and len(ks) == 11:
            a("s_cmp_lg_u32 s3, 5\ns_cbranch_scc1 .Lend\ns_add_u32 s88, s88, %d\ns_mov_b32 s9, 100000" % dbgst)
            if pre == 1: a("s_waitcnt vmcnt(0)\nbuffer_wbl2 sc1\ns_waitcnt vmcnt(0)")
            if pre == 2: a("s_cmp_lg_u32 s2, 0\ns_cbranch_scc1 .Lend")
            a(".Lsp:\ns_memrealtime s[6:7]\ns_waitcnt lgkmcnt(0)\ns_sub_u32 s9, s9, 1\ns_cbranch_scc1 .Lend\ns_sub_u32 s7, s6, s88\ns_cmp_lt_i32 s7, 0\ns_cbranch_scc1 .Lsp")
        if dbgst == 1 and len(ks) == 11:
            a("s_cmp_lg_u32 s3, 5\ns_cbranch_scc1 .Lend")
            a("s_memrealtime s[90:91]\ns_memtime s[92:93]\ns_mov_b32 s40, s84\ns_mov_b32 s41, s85\ns_mov_b32 s42, 256\ns_mov_b32 s43, 0x00020000\ns_waitcnt lgkmcnt(0)\ns_mov_b64 exec, 1\nv_mov_b32 v2, 0\ns_sub_u32 s92, s92, s94\ns_sub_u32 s93, s90, s88\ns_not_b32 s88, s88\nv_mov_b32 v3, s88\nv_mov_b32 v4, s90\nv_mov_b32 v5, s92\nv_mov_b32 v6, s93")
            a("buffer_atomic_umax v3, v2, s[40:43], 0 offen sc1\nbuffer_atomic_umax v4, v2, s[40:43], 0 offen offset:4 sc1\nbuffer_atomic_umax v5, v2, s[40:43], 0 offen offset:8 sc1\nbuffer_atomic_umax v6, v2, s[40:43], 0 offen offset:12 sc1")
        if not stamps: return
        a("s_waitcnt lgkmcnt(0)\ns_mov_b64 exec, 1\nv_mov_b32 v2, 0\ns_lshl_b32 s40, s2, 10\ns_lshl_b32 s41, s3, 6\ns_add_u32 s40, s40, s41\ns_add_u32 s40, s40, %d" % STAMP_OFF)
        for k in [0] + list(ks):
            r = 88 if k == 0 else 64 + 2 * k - 2
            a("v_mov_b32 v3, s%d\nbuffer_store_dword v3, v2, s[12:15], s40 offen offset:%d" % (r, 4 * k))
        a("v_mov_b32 v3, s58\nbuffer_store_dword v3, v2, s[12:15], s40 offen offset:60")
        a("v_mov_b32 v3, s59\nbuffer_store_dword v3, v2, s[12:15], s40 offen offset:56")
    def zero_stamps():
        if stamps:
            a("s_mov_b32 s58, 0\ns_mov_b32 s59, 0")
            for k in range(1, 12): a("s_mov_b32 s%d, 0" % (64 + 2 * k - 2))
    def dpp(op, d, s0, s1, ctl, bank="0xf"):
        a("%s_dpp v%d, v%d, v%d %s row_mask:0xf bank_mask:%s" % (op, d, s0, s1, ctl, bank))
    def red8(op, regs_):
        for ctl in ("quad_perm:[1,0,3,2]", "quad_perm:[2,3,0,1]", "row_half_mirror"):
            for r in regs_: dpp(op, r, r, r, ctl)
    def redsw(op, pairs, sws):
        for sw in sws:
            for r, t in pairs: a("v_mov_b32 v%d, v%d" % (t, r))
            for r, t in pairs: a("%s v%d, v%d" % (sw, r, t))
            for r, t in pairs: a("%s v%d, v%d, v%d" % (op, r, r, t))
    def redrows(op, pairs):
        redsw(op, pairs, ("v_permlane16_swap_b32", "v_permlane32_swap_b32"))
    def redhi(op, pairs):
        for r, t in pairs: dpp(op, r, r, r, "row_ror:8")
        redrows(op, pairs)
    def redall(op, pairs):
        red8(op, [r for r, t in pairs]); redhi(op, pairs)
    def rbf(d, s):
        a("v_cvt_pk_bf16_f32 v%d, v%d, v%d\nv_lshlrev_b32 v%d, 16, v%d" % (d, s, s, d, d))
    def onehot(dst, tmp):
        for j in range(4): a("v_cndmask_b32 v%d, 0, v%d, s[%d:%d]" % (dst + j, tmp, 32 + 2 * j, 33 + 2 * j))
    def operand(dst, c, H, tmp):
        a("v_cvt_pk_bf16_f32 v%d, v%d, v%d\nv_and_b32 v%d, v%d, v%d" % (tmp, c, c, tmp, tmp, H))
        onehot(dst, tmp)
    def operand16(dst, c, SH):
        a("v_lshlrev_b32 v%d, v%d, v%d" % (c, SH, c))
        onehot(dst, c)
    def mfma(d, A, B, first):
        a("v_mfma_f32_16x16x32_bf16 v[%d:%d], v[%d:%d], v[%d:%d], %s" % (d, d + 3, A, A + 3, B, B + 3, "0" if first else "v[%d:%d]" % (d, d + 3)))
    def fold1(D, out):
        a("v_permlane32_swap_b32 v%d, v%d\nv_permlane32_swap_b32 v%d, v%d" % (D, D + 1, D + 2, D + 3))
        dpp("v_add_f32", out, D + 1, D, "row_ror:8", "0x3")
        dpp("v_add_f32", out, D + 2, D + 3, "row_ror:8", "0xc")
    def poll(loads, tags, errslot, nx=0):
        L, D = a.label("poll"), a.label("polld")
        a("s_mov_b32 s27, %d" % (SPIN // 4 if nx else SPIN))
        if nx: a("s_mov_b32 s62, %d" % (nx - 1))
        a(L + ":")
        if stamps and errslot == 5 and not ack: stamp(12)
        for l in loads: a(l)
        if stamps: a("s_add_u32 s59, s59, %d" % (1 << (5 * errslot)))
        a("s_waitcnt vmcnt(0)")
        a("v_cmp_ne_u32 s[40:41], s26, v%d" % tags[0])
        for t in tags[1:]:
            a("v_cmp_ne_u32 s[42:43], s26, v%d\ns_or_b64 s[40:41], s[40:41], s[42:43]" % t)
        if not (nodep >> errslot) & 1:
            a("s_cmp_eq_u64 s[40:41], 0\ns_cbranch_scc1 %s" % D)
            if nx:
                a("s_sub_u32 s62, s62, 1\ns_cbranch_scc0 %s\ns_mov_b32 s62, %d\nbuffer_wbl2 sc1\ns_waitcnt vmcnt(0)" % (L, NXR - 1))
                if stamps: a("s_or_b32 s58, s58, 512")
            a("s_sub_u32 s27, s27, 1\ns_cbranch_scc0 %s" % L)
        if stamps: a("s_or_b32 s58, s58, %d" % (1 << errslot))
        a(D + ":")
    def lwait(flag, thr, vaddr, vtmp, extra=()):
        L, D = a.label("lw"), a.label("lwd")
        if nodep & 64 and flag in (F_QRDY, F_STRDY, F_HRDY): thr = "0"
        a("s_mov_b32 s27, %d" % (SPIN * 8))
        a(L + ":")
        a("ds_read_b32 v%d, v%d offset:%d" % (vtmp, vaddr, flag))
        for l in extra: a(l)
        a("s_waitcnt lgkmcnt(0)\nv_readfirstlane_b32 s40, v%d\ns_cmp_ge_u32 s40, %s\ns_cbranch_scc1 %s" % (vtmp, thr, D))
        if SLP: a("s_sleep %d" % SLP)
        a("s_sub_u32 s27, s27, 1\ns_cbranch_scc0 %s" % L)
        if stamps: a("s_or_b32 s58, s58, 256")
        a(D + ":")
    def srd(base, ptr, size):
        a("s_mov_b32 s%d, s%d\ns_mov_b32 s%d, s%d\ns_mov_b32 s%d, %d\ns_mov_b32 s%d, 0x00020000" % (base, ptr, base + 1, ptr + 1, base + 2, size, base + 3))
    def nonce():
        a("s_waitcnt lgkmcnt(0)\ns_mul_i32 s26, s26, 0x19660d\ns_add_u32 s26, s26, 0x3c6ef35f")
    def masks():
        for j, m in enumerate(("0x03030303", "0x0c0c0c0c", "0x30303030", "0xc0c0c0c0")):
            a("s_mov_b32 s%d, %s\ns_mov_b32 s%d, %s" % (32 + 2 * j, m, 33 + 2 * j, m))
        a("v_and_b32 v2, 1, v0\nv_lshlrev_b32 v2, 4, v2")
    a("s_cmp_ge_u32 s2, 256\ns_cbranch_scc1 .Lend")
    a("s_load_dwordx16 s[64:79], s[0:1], 0\ns_load_dwordx8 s[80:87], s[0:1], 64")
    if stamps or dbgst: a("s_memrealtime s[88:89]")
    if dbgst == 1: a("s_memtime s[94:95]")
    a("""
    v_lshrrev_b32 v1, 6, v0
    v_and_b32 v0, 63, v0
    v_readfirstlane_b32 s3, v1
    s_and_b32 s24, s2, 7
    s_lshl_b32 s24, s24, 2
    s_bfe_u32 s25, s2, 0x20003
    s_or_b32 s24, s24, s25
    s_lshr_b32 s25, s2, 5
    v_lshrrev_b32 v4, 3, v0
    v_and_b32 v5, 7, v0
    s_cmp_lt_u32 s3, 5
    s_cbranch_scc1 .Laux
    """)
    KV = 32
    Q = 8
    SC = 20
    VOFF, H = 1, 2
    OP = 28
    T0, T1, T2, T3 = 3, 4, 5, 6
    TMX = TM; TM = 7
    a("""
    v_mul_u32_u24 v1, 384, v4
    v_lshl_add_u32 v1, v5, 4, v1
    s_sub_u32 s48, s3, 5
    s_mul_i32 s28, s24, 1572864
    s_mul_i32 s29, s25, 196608
    s_add_u32 s28, s28, s29
    s_mul_i32 s29, s48, 24576
    s_add_u32 s28, s28, s29
    s_add_u32 s29, s28, 6144
    s_add_u32 s30, s28, 12288
    s_add_u32 s31, s28, 18432
    """)
    if pat == 8: a("s_and_b32 s28, s2, 7\ns_mul_i32 s28, s28, 1572864\ns_lshr_b32 s29, s2, 3\ns_mul_i32 s29, s29, 49152\ns_add_u32 s28, s28, s29\ns_mul_i32 s29, s48, 6144\ns_add_u32 s28, s28, s29\ns_add_u32 s29, s28, 12582912\ns_add_u32 s30, s29, 12582912\ns_add_u32 s31, s30, 12582912")
    if pat == 9: a("s_and_b32 s28, s2, 15\ns_mul_i32 s28, s28, 1572864\ns_lshr_b32 s29, s2, 4\ns_mul_i32 s29, s29, 98304\ns_add_u32 s28, s28, s29\ns_mul_i32 s29, s48, 12288\ns_add_u32 s28, s28, s29\ns_add_u32 s29, s28, 6144\ns_add_u32 s30, s28, 25165824\ns_add_u32 s31, s30, 6144")
    a("s_waitcnt lgkmcnt(0)")
    srd(4, 66, 50331648)
    st = dict(n=0, landed=0)
    def need(idx):
        if idx >= st["landed"]:
            a("s_waitcnt vmcnt(%d)" % (st["n"] - 1 - idx)); st["landed"] = idx + 1
    def kvload(throttle=True):
        n = st["n"]; i = n % 24; t, ln = i // 3, i % 3
        Tn = T if n < TT else TTT
        if n < T0N: Tn = T - 1
        if 24 <= n < 24 + Q4: Tn = T + 1
        if TP and n >= 6: Tn = int(str(TP)[n % len(str(TP))])
        if pd and n == 5: a("s_load_dword s92, s[94:95], 0")
        if pd and n == 8: a("s_waitcnt lgkmcnt(0)\ns_cmp_eq_u32 s92, 0\ns_cselect_b32 s92, s88, s92")
        if pd and n >= 8:
            L = a.label("pc"); thr = (pa * 10 + min(n, 24) * (pk or pd) + max(n - 24, 0) * pd) // 10
            CK = "s_memrealtime s[90:91]\ns_waitcnt lgkmcnt(0)\ns_sub_u32 s90, s90, s92\ns_cmp_ge_i32 s90, %d\ns_cbranch_scc1 %s"
            if lag < 9999:
                need(n - Tn - 1); a(CK % (thr + lag, L)); a("s_waitcnt vmcnt(%d)" % (Tn - 1))
            else: need(n - Tn)
            a(CK % (thr, L)); a("s_waitcnt vmcnt(%d)\n%s:" % (Tn - 2, L))
        elif st.get("post") and SBM and SB <= n < SB + SBN:
            L = a.label("sb")
            need(n - Tn)
            a("ds_read_b32 v%d, v%d offset:%d\ns_waitcnt lgkmcnt(0)\nv_readfirstlane_b32 s40, v%d\ns_cmp_lg_u32 s40, 0\ns_cbranch_scc1 %s\ns_waitcnt vmcnt(%d)" % (T0, T3, F_STRDY, T0, L, SBM - 1))
            if stamps: a("s_add_u32 s59, s59, 1")
            a(L + ":")
        elif st.get("post") and n == SB:
            need(n - Tn)
            lwait(F_STRDY, "1", T3, T0)
        elif WA and WN <= n < WN + 4:
            L = a.label("wa")
            need(n - Tn - 1)
            a("s_cmp_ge_u32 s48, %d\ns_cbranch_scc1 %s\ns_waitcnt vmcnt(%d)" % (WA % 10, L, Tn - 1))
            if n < WN + (WA // 100): a("s_cmp_ge_u32 s48, %d\ns_cbranch_scc1 %s\ns_waitcnt vmcnt(%d)" % (WA // 10 % 10, L, Tn - 2))
            a(L + ":")
        elif TMX and TM0 <= n < TM1:
            L = a.label("tm")
            need(n - Tn)
            a("s_bitcmp1_b64 s[60:61], %d\ns_cbranch_scc1 %s\ns_waitcnt vmcnt(%d)\n%s:" % (n, L, Tn - 2, L))
        elif throttle and n >= Tn: need(n - Tn)
        r = KV + 4 * i
        a("buffer_load_dwordx4 v[%d:%d], v%d, s[%d:%d], s%d offen offset:%d%s" % (r, r + 3, VOFF, 4 if n < 24 else 8, 7 if n < 24 else 11, 28 + t // 2, 3072 * (t & 1) + 128 * ln, NT))
        st["n"] += 1
        n = st["n"]
        if n in (G1, G2, G3, GUD, WDL):
            a("s_mov_b64 exec, 1\nv_mov_b32 v%d, 0\nv_mov_b32 v%d, %d\nds_max_u32 v%d, v%d offset:%d\ns_mov_b64 exec, -1" % (OP, OP + 1, n, OP, OP + 1, F_PROG))
        if n == 24 + PW:
            a("s_mov_b64 exec, 1\nv_mov_b32 v%d, 0\nv_mov_b32 v%d, 1\nds_add_u32 v%d, v%d offset:%d\ns_mov_b64 exec, -1" % (OP, OP + 1, OP, OP + 1, F_WOGO))
    for _ in range(T - (1 if T0N else 0)): kvload()
    a("s_load_dword s26, s[86:87], 0")
    srd(8, 68, 50331648); srd(12, 86, 268435456); srd(16, 64, 1280); srd(20, 82, 1280)
    if pd: a("s_mov_b32 s94, s84\ns_mov_b32 s95, s85")
    zero_stamps()
    masks()
    a("v_mov_b32 v3, 0xffff\nv_lshlrev_b32 v2, v2, v3")
    a("v_lshlrev_b32 v6, 4, v5")
    if TMX:
        p = str(TMX); m = sum((p[i % len(p)] == "3") << i for i in range(64))
        a("s_mov_b32 s60, 0x%x\ns_mov_b32 s61, 0x%x\ns_mul_i32 s49, s48, %d\ns_lshr_b32 s49, s49, 3\ns_lshr_b64 s[60:61], s[60:61], s49" % (m & 0xffffffff, m >> 32, len(p)))
    a(".Ltouch_b:\ns_branch .Lbulk2\n.Lbulk2:")
    a("s_barrier")
    while st["n"] < P1: kvload()
    nonce()
    stamp(1)
    lwait(F_QRDY, "3", 6, T0, ["ds_read_b128 v[%d:%d], v6 offset:%d" % (Q + 4 * ln, Q + 4 * ln + 3, L_Q + 128 * ln) for ln in range(3)])
    stamp(2)
    def qk(t):
        if abl & 1: return
        acc = [T0, T1, T2]
        for j in range(4):
            for ln in range(3):
                a("v_dot2_f32_bf16 v%d, v%d, v%d, %s" % (acc[ln], KV + 12 * t + 4 * ln + j, Q + 4 * ln + j, "0" if j == 0 else "v%d" % acc[ln]))
        a("v_add_f32 v%d, v%d, v%d\nv_add_f32 v%d, v%d, v%d" % (T0, T0, T1, T0, T0, T2))
        red8("v_add_f32", [T0])
        rbf(T0, T0)
        a("v_mul_f32 v%d, %s, v%d" % (T0, SCALE, T0))
        rbf(SC + t, T0)
    tq = 0
    while tq < 8:
        did = 0
        while tq < 8 and did < (1 if tq < Q1 else QPL) and 3 * tq + 2 < st["landed"]:
            qk(tq); tq += 1; did += 1
        if tq < 8:
            if st["n"] >= 24 and (st["n"] - 24) // 3 >= tq:
                need(3 * tq + 2)
            else:
                kvload()
    if SSP & 1: kvload()
    a("v_max3_f32 v%d, v%d, v%d, v%d" % (TM, SC, SC + 1, SC + 2))
    a("v_max3_f32 v%d, v%d, v%d, v%d" % (T0, SC + 3, SC + 4, SC + 5))
    a("v_max3_f32 v%d, v%d, v%d, v%d" % (TM, TM, SC + 6, SC + 7))
    a("v_max_f32 v%d, v%d, v%d" % (TM, TM, T0))
    redhi("v_max_f32", [(TM, T0)])
    a("v_mul_f32 v%d, %s, v%d" % (T1, LOG2E, TM))
    a("s_mov_b32 s49, %s" % LOG2E)
    for t in range(8): a("v_fma_f32 v%d, v%d, s49, -v%d" % (SC + t, SC + t, T1))
    for t in range(8): a("v_exp_f32 v%d, v%d" % (SC + t, SC + t))
    if SSP & 2: kvload()
    a("v_add_f32 v%d, v%d, v%d\nv_add_f32 v%d, v%d, v%d" % (T2, SC, SC + 1, T3, SC + 2, SC + 3))
    a("v_add_f32 v%d, v%d, v%d\nv_add_f32 v%d, v%d, v%d" % (T2, T2, SC + 4, T3, T3, SC + 5))
    a("v_add_f32 v%d, v%d, v%d\nv_add_f32 v%d, v%d, v%d" % (T2, T2, SC + 6, T3, T3, SC + 7))
    S4 = Q
    a("v_add_f32 v%d, v%d, v%d" % (S4 + 1, T2, T3))
    redhi("v_add_f32", [(S4 + 1, T0)])
    a("v_mov_b32 v%d, v%d\nv_mov_b32 v%d, 0\nv_mov_b32 v%d, 1\ns_lshl_b32 s50, s48, 3\nv_mov_b32 v%d, s50" % (S4, TM, T3, S4 + 2, S4 + 3))
    a("s_mov_b64 exec, 1\nds_write_b64 v%d, v[%d:%d] offset:%d\nds_add_u32 v%d, v%d offset:%d\ns_mov_b64 exec, -1" % (S4 + 3, S4, S4 + 1, L_WST, T3, S4 + 2, F_STC))
    stamp(3)
    st["post"] = 1; assert SB >= st["n"] and SB >= G2, st["n"]; sys.stderr.write('n at stats %d\n' % st['n'])
    if GO:
        while st["n"] < GN: kvload()
        sv = dict(st)
        while st["n"] < 48:
            a("ds_read_b32 v%d, v%d offset:%d\ns_waitcnt lgkmcnt(0)\nv_readfirstlane_b32 s40, v%d\ns_cmp_lg_u32 s40, 0\ns_cbranch_scc1 .Lfast_%d" % (T0, T3, F_MODE, T0, st["n"]))
            kvload()
        a("s_branch .Lfast_48")
        st.update(sv)
        while st["n"] < 48:
            a(".Lfast_%d:" % st["n"])
            if stamps: a("s_add_u32 s59, s59, 1")
            if GT < 99: a("s_waitcnt vmcnt(%d)" % (GT - 1))
            kvload(False)
        a(".Lfast_48:")
    while st["n"] < 48: kvload()
    a("""
    v_and_b32 v1, 7, v0
    v_lshlrev_b32 v1, 3, v1
    v_bfe_u32 v5, v0, 4, 1
    v_lshl_add_u32 v1, v5, 2, v1
    v_bfe_u32 v5, v0, 3, 1
    v_lshl_add_u32 v1, v5, 1, v1
    v_bfe_u32 v5, v0, 5, 1
    v_add_u32 v1, v5, v1
    s_lshl_b32 s49, s48, 8
    """)
    PA = [28, 29, 30]
    stamp(4)
    lwait(F_STRDY, "1", T3, T0, ["ds_read_b64 v[%d:%d], v%d offset:%d" % (T1, T2, T3, L_ST)])
    a("s_mov_b32 s52, s40")
    stamp(5)
    a("v_sub_f32 v%d, v%d, v%d\nv_mul_f32 v%d, %s, v%d\nv_exp_f32 v%d, v%d\nv_mul_f32 v%d, v%d, v%d" % (T0, TM, T1, T0, LOG2E, T0, T0, T0, TM, T0, T2))
    for t in range(8):
        a("v_mul_f32 v%d, v%d, v%d" % (T0, SC + t, TM))
        operand(OP, T0, H, T1)
        for ln in range(3):
            need(24 + 3 * t + ln)
            mfma(Q + 4 * ln, OP, KV + 12 * t + 4 * ln, t == 0)
        if t == 6:
            PA[:] = [SC + 3, SC + 4, SC + 5]
            for ln in range(3):
                a("v_add_u32 v%d, %d, v1\nv_mul_u32_u24 v5, 171, v%d\nv_lshrrev_b32 v5, 9, v5\nv_add3_u32 v%d, v%d, v5, s49\nv_lshlrev_b32 v%d, 2, v%d" % (PA[ln], 64 * ln, PA[ln], PA[ln], PA[ln], PA[ln], PA[ln]))
            a("v_lshlrev_b32 v6, 4, v0\nv_lshlrev_b32 v5, %d, v0\ns_lshl_b32 s50, s24, 13\ns_lshl_b32 s51, s25, %d\ns_add_u32 s50, s50, s51\ns_add_u32 s50, s50, %d" % (4 if OD else 7, 10 if OD else 4, WS_O))
    stamp(6)
    for ln in range(3): fold1(Q + 4 * ln, SC + ln)
    if AE: a("s_branch .Lbulk_end")
    for ln in range(3): a("ds_write_b32 v%d, v%d offset:%d" % (PA[ln], SC + ln, L_PART))
    a("v_mov_b32 v11, s26\ns_waitcnt lgkmcnt(0)")
    a("s_barrier")
    a("s_cmp_ge_u32 s48, 1\ns_cbranch_scc1 .Lbulk_opub")
    for k in range(8): a("ds_read_b128 v[%d:%d], v6 offset:%d" % (32 + 4 * k, 35 + 4 * k, L_PART + 1024 * k))
    for st_, wv in ((4, 4), (8, 0), (16, 0)):
        for k in range(0, 32, 2 * st_):
            if st_ == 4: a("s_waitcnt lgkmcnt(%d)" % (6 - k // 4))
            d = 8 if st_ == 16 else 32 + k
            a("v_pk_add_f32 v[%d:%d], v[%d:%d], v[%d:%d]\nv_add_f32 v%d, v%d, v%d" % (d, d + 1, 32 + k, 33 + k, 32 + k + st_, 33 + k + st_, d + 2, 34 + k, 34 + k + st_))
    if oack: stamp(5)
    OST = ["buffer_store_dwordx4 v[8:11], v5, s[12:15], s50 offen", "buffer_atomic_swap_x2 v[8:9], v5, s[12:15], s50 offen\nbuffer_atomic_swap_x2 v[10:11], v5, s[12:15], s50 offen offset:8",
           "buffer_store_dwordx4 v[8:11], v5, s[12:15], s50 offen sc0", "buffer_store_dwordx4 v[8:11], v5, s[12:15], s50 offen sc1", "buffer_store_dwordx4 v[8:11], v5, s[12:15], s50 offen\nbuffer_load_dword v12, v5, s[12:15], s50 offen sc1"][OS]
    a("s_cmp_eq_u32 s52, 1\ns_cbranch_scc0 .Lbulk_opy\n%s\ns_branch .Lbulk_opub" % OST)
    a(".Lbulk_opy:\nbuffer_store_dwordx4 v[8:11], v5, s[12:15], s50 offen sc1")
    a(".Lbulk_opub:")
    if OQ:
        a("s_cmp_ge_u32 s48, 1\ns_cbranch_scc1 .Lbulk_oq")
        if OQ == 2: a("s_waitcnt vmcnt(0)")
        a("v_mov_b32 v12, 0\nv_mov_b32 v13, 2\nds_write_b32 v12, v13 offset:%d\n.Lbulk_oq:" % F_MODE)
    if oack: a("s_waitcnt vmcnt(0)")
    stamp(7)
    a("s_cmp_ge_u32 s2, %d\ns_cbranch_scc1 .Lbulk_end" % NRED)
    a("""
    v_and_b32 v31, 3, v0
    v_lshlrev_b32 v31, 4, v31
    s_lshr_b32 s49, s2, 3
    s_lshl_b32 s49, s49, 7
    s_and_b32 s50, s2, 1
    s_lshl_b32 s50, s50, 6
    s_add_u32 s49, s49, s50
    s_and_b32 s50, s2, 6
    s_lshl_b32 s50, s50, 1
    s_add_u32 s49, s49, s50
    buffer_load_dword v30, v31, s[16:19], s49 offen
    """)
    a("v_lshlrev_b32 v1, 4, v0\ns_lshl_b32 s50, s2, 14\ns_lshl_b32 s51, s48, 11\ns_add_u32 s50, s50, s51\ns_add_u32 s50, s50, %d" % WS_A)
    a("v_lshlrev_b32 v3, 3, v0\ns_lshl_b32 s51, s48, 5\nv_add_u32 v3, s51, v3")
    a("s_lshl_b32 s51, s2, 12\ns_lshl_b32 s52, s48, 9\ns_add_u32 s51, s51, s52\ns_add_u32 s51, s51, %d" % WS_B)
    a("v_mov_b32 v8, 0\nv_mov_b32 v9, 0\nv_mov_b32 v12, 0\nv_mov_b32 v13, 0\ns_mov_b64 s[44:45], -1\ns_mov_b64 s[46:47], -1\ns_mov_b32 s52, -1\ns_mov_b32 s53, 0")
    MS = (52, 44, 46)
    def aissue(k, X=""):
        R = 32 + 12 * k
        if stamps: stamp(11); a("s_add_u32 s59, s59, %d" % (1 << 20))
        a("s_or_b64 exec, s[52:53], 1\nbuffer_load_dwordx4 v[%d:%d], v1, s[12:15], s51 offen sc1" % (R, R + 3) + X)
        a("s_or_b64 exec, s[44:45], 1\nbuffer_load_dwordx4 v[%d:%d], v1, s[12:15], s50 offen sc1" % (R + 4, R + 7) + X)
        a("s_or_b64 exec, s[46:47], 1\nbuffer_load_dwordx4 v[%d:%d], v1, s[12:15], s50 offen offset:1024 sc1" % (R + 8, R + 11) + X)
    def acheck(k, w, br=True):
        for j in range(3):
            R, M, AC = 32 + 12 * k + 4 * j, MS[j], 12 if j == 0 else 8
            a("s_mov_b64 exec, s[%d:%d]\ns_waitcnt vmcnt(%d)" % (M, M + 1, w + 2 - j))
            a("v_cmp_eq_u32 vcc, s26, v%d\nv_cmp_eq_u32 s[42:43], s26, v%d\ns_and_b64 exec, vcc, s[42:43]" % (R + 1, R + 3))
            a("v_add_f32 v%d, v%d, v%d\nv_add_f32 v%d, v%d, v%d\ns_andn2_b64 s[%d:%d], s[%d:%d], exec" % (AC, AC, R, AC + 1, AC + 1, R + 2, M, M + 1, M, M + 1))
        if br: a("s_or_b64 s[40:41], s[44:45], s[46:47]\ns_or_b64 s[40:41], s[40:41], s[52:53]\ns_cbranch_scc0 .Lag_done")
    if early:
        aissue(0); acheck(0, 0, False)
    a("s_barrier")
    stamp(8)
    a("s_mov_b32 s27, %d" % SPIN)
    if early: a("s_branch .Lag_0")
    a(".Lag_1:")
    aissue(0, " nt" if AN else ""); acheck(0, 0)
    a(".Lag_0:")
    if NS > 1:
        a("s_bcnt1_i32_b64 s40, s[44:45]\ns_bcnt1_i32_b64 s41, s[46:47]\ns_add_u32 s40, s40, s41\ns_cmp_le_u32 s40, %d\ns_cbranch_scc1 .Lag_2" % TH)
    a("s_sub_u32 s27, s27, 1\ns_cbranch_scc0 .Lag_1")
    if NS > 1:
        a("s_branch .Lag_fail\n.Lag_2:")
        for k in range(NS - 1): aissue(k)
        a(".Lag_3:")
        for k in range(NS):
            aissue((k + NS - 1) % NS)
            acheck(k, 3 * (NS - 1))
        a("s_sub_u32 s27, s27, 1\ns_cbranch_scc0 .Lag_3\n.Lag_fail:")
    if stamps: a("s_or_b32 s58, s58, 16")
    a(".Lag_done:\ns_mov_b64 exec, -1")
    stamp(9)
    for r in (8, 9, 12, 13): dpp("v_add_f32", r, r, r, "row_ror:4")
    redhi("v_add_f32", [(8, 10), (9, 11), (12, 14), (13, 15)])
    a("s_mov_b64 exec, 15\nds_write_b64 v3, v[8:9] offset:%d\nds_write_b64 v3, v[12:13] offset:%d\ns_mov_b64 exec, -1\ns_waitcnt lgkmcnt(0)" % (L_RED, L_REDB))
    a("s_barrier")
    a("s_cmp_lg_u32 s48, 0\ns_cbranch_scc1 .Lbulk_end")
    a("v_lshlrev_b32 v3, 3, v0\nds_read_b64 v[8:9], v3 offset:%d" % L_RED)
    a("v_lshlrev_b32 v14, 16, v30\nv_and_b32 v15, 0xffff0000, v30\ns_waitcnt lgkmcnt(0)")
    for ctl in ("row_ror:4", "row_ror:8"):
        for r in (8, 9): dpp("v_add_f32", r, r, r, ctl)
    a("v_mov_b32 v10, v8\nv_mov_b32 v11, v9\nv_permlane16_swap_b32 v8, v10\nv_permlane16_swap_b32 v9, v11\nv_add_f32 v8, v8, v10\nv_add_f32 v9, v9, v11")
    a("v_cvt_pk_bf16_f32 v8, v8, v9\nv_mov_b32 v12, v8\nv_permlane32_swap_b32 v8, v12")
    a("v_and_b32 v9, 0xffff0000, v8\nv_lshlrev_b32 v8, 16, v8\nv_add_f32 v8, v8, v14\nv_add_f32 v9, v9, v15")
    a("v_and_b32 v13, 0xffff0000, v12\nv_lshlrev_b32 v12, 16, v12")
    a("v_cvt_pk_bf16_f32 v8, v8, v9\nv_and_b32 v9, 0xffff0000, v8\nv_lshlrev_b32 v8, 16, v8\nv_add_f32 v8, v8, v12\nv_add_f32 v9, v9, v13")
    a("v_cvt_pk_bf16_f32 v8, v8, v9")
    a("s_mov_b64 exec, 15\nbuffer_store_dword v8, v31, s[20:23], s49 offen")
    a("s_cmp_lg_u32 s2, 0\ns_cbranch_scc1 .Lbulk_end")
    a("s_mov_b64 exec, 1\nv_mov_b32 v9, s26\nv_mov_b32 v1, 0\nbuffer_store_dword v9, v1, s[12:15], 0 offen")
    a(".Lbulk_end:")
    stamp(10)
    flush_stamps(range(1, 12))
    a("s_endpgm")

    a(".Laux:\ns_setprio %d" % (0 if abl & 4 else 3))
    W1 = 32
    W2 = 76
    XF = 8
    C = 13
    G = 100
    AOP = 24
    ACC = 116
    Z = 124
    ONE = 127
    SH = 2
    a("v_mov_b32 v%d, 0\nv_mov_b32 v%d, 0\nv_mov_b32 v%d, 0\nv_mov_b32 v%d, 1\nv_lshlrev_b32 v1, 2, v0\nv_and_b32 v3, 60, v1" % (Z, Z + 1, Z + 2, ONE))
    a("ds_write_b32 v3, v%d offset:%d\nds_write_b32 v3, v%d offset:%d" % (Z, L_FLAG, Z, L_XN + 1280))
    a("""
    s_cmp_lt_u32 s3, 3
    s_cbranch_scc1 .Laux_q
    s_and_b32 s52, s24, 3
    s_lshl_b32 s52, s52, 1
    s_sub_u32 s53, s3, 3
    s_add_u32 s52, s52, s53
    s_mul_i32 s48, s52, 80
    s_lshr_b32 s53, s24, 2
    s_mul_i32 s53, s53, 3
    s_add_u32 s53, s53, s25
    s_sub_u32 s54, s53, 3
    s_cmp_ge_u32 s25, 3
    s_cselect_b32 s53, s54, s53
    s_cselect_b32 s54, 98304, 0
    s_lshl_b32 s49, s53, 7
    s_movk_i32 s50, 3072
    s_mul_i32 s51, s52, 12288
    s_lshl_b32 s53, s53, 9
    s_add_u32 s51, s51, s53
    s_mov_b32 s53, s54
    s_add_u32 s51, s51, s54
    s_add_u32 s51, s51, %d
    s_add_u32 s6, s48, 80
    s_waitcnt lgkmcnt(0)
    s_cmp_eq_u32 s53, 0
    s_cselect_b32 s4, s76, s78
    s_cselect_b32 s5, s77, s79
    s_branch .Laux_p
    .Laux_q:
    s_mul_i32 s48, s25, %d
    s_add_u32 s6, s48, %d
    s_mul_i32 s52, s25, %d
    s_add_u32 s52, s52, %d
    s_add_u32 s53, s52, %d
    s_cmp_ge_u32 s25, 6
    s_cselect_b32 s48, s52, s48
    s_cselect_b32 s6, s53, s6
    s_mul_i32 s49, s24, 384
    s_lshl_b32 s53, s3, 7
    s_add_u32 s49, s49, s53
    s_movk_i32 s50, 12288
    s_mul_i32 s51, s24, 12288
    s_mul_i32 s52, s25, 1536
    s_add_u32 s51, s51, s52
    s_lshl_b32 s53, s3, 9
    s_add_u32 s51, s51, s53
    s_add_u32 s51, s51, %d
    s_waitcnt lgkmcnt(0)
    s_mov_b32 s4, s70
    s_mov_b32 s5, s71
    .Laux_p:
    s_mul_i32 s6, s6, s50
    s_mov_b32 s7, 0x00020000
    """ % (WS_GU, QA, QA, QB, 6 * QA - 6 * QB, QB, WS_Q))
    srd(16, 64, 1280)
    if GO: a("s_mov_b32 s94, s84\ns_mov_b32 s95, s85")
    if pd or GO:
        a("s_or_b32 s52, s2, s3\ns_cbranch_scc1 .Lnp")
        srd(28, 84, 256)
        a("v_mov_b32 v3, s88\nbuffer_store_dword v3, v%d, s[28:31], 0 offen sc1\ns_waitcnt vmcnt(0)\n.Lnp:" % Z)
    a("s_cmp_lt_u32 s3, 3\ns_cbranch_scc1 .Laux_s1\ns_cmp_ge_u32 s25, 6\ns_cbranch_scc1 .Laux_s1skip")
    a(".Laux_s1:")
    for j in range(5): a("buffer_load_dword v%d, v1, s[16:19], 0 offen offset:%d" % (XF + j, 256 * j))
    a("v_mul_lo_u32 v6, v4, s50\nv_lshl_add_u32 v6, v5, 4, v6\ns_mul_i32 s52, s48, s50\ns_add_u32 s52, s52, s49\ns_lshl_b32 s50, s50, 3")
    if abl & 2: a("s_mov_b32 s6, 0")
    if abl & 64: a("s_cmp_lt_u32 s3, 3\ns_cselect_b32 s6, s6, 0")
    A1 = min(A1, NT1); A2 = min(A2, NT1 - A1)
    def w1load(t):
        a("buffer_load_dwordx4 v[%d:%d], v6, s[4:7], s52 offen%s" % (W1 + 4 * t, W1 + 4 * t + 3, NT))
        if t < NT1 - 1: a("s_add_u32 s52, s52, s50")
    if GUD: a("s_cmp_ge_u32 s3, 3\ns_cbranch_scc1 .Laux_s1skip")
    for t in range(A1): w1load(t)
    a(".Laux_s1skip:\n.Ltouch_a:\n.Laux2:")
    a("s_barrier")
    a("s_load_dword s26, s[86:87], 0")
    if abl & 32: a("s_endpgm")
    if AE == 1: a("s_endpgm")
    srd(8, 72, 0 if abl & 16 else 7864320); srd(12, 86, 268435456); srd(20, 80, 0 if abl & 8 else 1966080)
    if tlb: srd(44, 68, 50331648); srd(28, 82, 1280)
    if DG == 6: srd(44, 66, 50331648)
    if abl & 128: a("s_cmp_eq_u32 s3, 0\ns_cselect_b32 s44, s76, s78\ns_cselect_b32 s45, s77, s79\ns_cmp_eq_u32 s3, 2\ns_cselect_b32 s44, s80, s44\ns_cselect_b32 s45, s81, s45\ns_mov_b32 s46, 1966080\ns_mov_b32 s47, 0x00020000")
    zero_stamps()
    masks()
    a("s_lshl_b32 s55, s24, 1\ns_add_u32 s55, s55, s25\ns_sub_u32 s55, s55, 6")
    a("s_cmp_lt_u32 s3, 3\ns_cbranch_scc1 .Laux_ln\ns_cmp_ge_u32 s25, 6\ns_cbranch_scc1 .Laux_pub_skip")
    a(".Laux_ln:")
    if GUD: a("s_cmp_lt_u32 s3, 3\ns_cbranch_scc1 .Laux_l1\ns_waitcnt vmcnt(0)\ns_branch .Laux_l2\n.Laux_l1:")
    if PQ: a("v_lshlrev_b32 v7, 6, v0\ns_mov_b64 exec, 0xff\nbuffer_load_dword v%d, v7, s[12:15], s51 offen nt\ns_mov_b64 exec, -1" % (G + 12))
    a("s_waitcnt vmcnt(%d)" % (A1 + (1 if PQ else 0)))
    for t in range(A1, A1 + A2): w1load(t)
    if GUD: a(".Laux_l2:")
    stamp(1)
    U = G
    for j in range(5): a("v_lshlrev_b32 v%d, 16, v%d\nv_and_b32 v%d, 0xffff0000, v%d" % (U + 2 * j, XF + j, U + 2 * j + 1, XF + j))
    a("v_add_f32 v13, v%d, v%d" % (U, U + 1))
    for j in range(2, 10): a("v_add_f32 v13, v13, v%d" % (U + j))
    redall("v_add_f32", [(13, 14)])
    a("v_mul_f32 v13, 0x3acccccd, v13")
    a("v_sub_f32 v15, v%d, v13\nv_mul_f32 v14, v15, v15" % U)
    for j in range(1, 10): a("v_sub_f32 v15, v%d, v13\nv_fma_f32 v14, v15, v15, v14" % (U + j))
    redall("v_add_f32", [(14, 15)])
    a("v_mul_f32 v14, 0x3acccccd, v14")
    rbf(14, 14); a("v_add_f32 v14, 0x3727c5ac, v14"); rbf(14, 14)
    a("v_sqrt_f32 v14, v14"); rbf(14, 14); a("v_rcp_f32 v14, v14")
    rbf(13, 13)
    for j in range(10): a("v_sub_f32 v%d, v%d, v13" % (U + j, U + j))
    for j in range(5):
        a("v_cvt_pk_bf16_f32 v%d, v%d, v%d" % (XF + j, U + 2 * j, U + 2 * j + 1))
        a("v_lshlrev_b32 v%d, 16, v%d\nv_and_b32 v%d, 0xffff0000, v%d" % (U + 2 * j, XF + j, U + 2 * j + 1, XF + j))
        a("v_mul_f32 v%d, v%d, v14\nv_mul_f32 v%d, v%d, v14" % (U + 2 * j, U + 2 * j, U + 2 * j + 1, U + 2 * j + 1))
        a("v_cvt_pk_bf16_f32 v%d, v%d, v%d" % (XF + j, U + 2 * j, U + 2 * j + 1))
        a("ds_write_b32 v1, v%d offset:%d" % (XF + j, L_XN + 256 * j))
    a("v_add_lshl_u32 v3, v4, s48, 1")
    for t in range(NT1): a("ds_read_u16 v%d, v3 offset:%d" % (C + t, L_XN + 16 * t))
    nonce()
    stamp(2)
    if GUD:
        a("s_cmp_lt_u32 s3, 3\ns_cbranch_scc1 .Laux_l3")
        if GUD > 1: lwait(F_PROG, str(GUD), Z, 3)
        for t in range(A1 + A2):
            if t >= GA: a("s_waitcnt vmcnt(%d)" % (GA - 1))
            w1load(t)
        a(".Laux_l3:")
    iss = A1 + A2
    while iss < min(AT, NT1): w1load(iss); iss += 1
    for t in range(NT1):
        op = AOP + 4 * (t & 1)
        operand16(op, C + t, SH)
        a("s_waitcnt vmcnt(%d)" % (iss - 1 - t + (1 if PQ == 1 or (PQ and t < NT1 - 1) else 0)))
        while iss < min(t + 1 + AT, NT1): w1load(iss); iss += 1
        mfma(ACC, op, W1 + 4 * t, t == 0)
    a("v_lshlrev_b32 v1, 4, v0")
    fold1(ACC, 36)
    a("v_mov_b32 v37, s26\nv_mov_b32 v39, s26\nv_permlane32_swap_b32 v36, v38")
    if AE == 2: a("s_endpgm")
    a("s_mov_b32 exec_hi, 0\nbuffer_store_dwordx4 v[36:39], v1, s[12:15], s51 offen")
    a("s_mov_b64 exec, -1")
    stamp(3)
    a("s_branch .Laux_pub_done\n.Laux_pub_skip:")
    nonce()
    a(".Laux_pub_done:")
    if AE in (2, 3): a("s_endpgm")
    if AE == 7: lwait(F_WOGO, "8", Z, 3); a("s_endpgm")
    if tlb:
        a("s_cmp_lg_u32 s3, 3\ns_cbranch_scc1 .Laux_notlb\ns_mov_b64 exec, 1")
        if tlb & 1:
            a("s_mul_i32 s52, s24, 1572864\ns_mul_i32 s53, s25, 196608\ns_add_u32 s52, s52, s53\ns_add_u32 s53, s52, 196480")
            a("buffer_load_dword v44, v%d, s[44:47], s52 offen\nbuffer_load_dword v45, v%d, s[44:47], s53 offen" % (Z, Z))
        if tlb & 2:
            a("s_mul_i32 s52, s24, 192\ns_mul_i32 s53, s25, 24\ns_add_u32 s52, s52, s53\ns_mul_i32 s52, s52, 1280\ns_add_u32 s53, s52, 30592")
            a("buffer_load_dword v46, v%d, s[8:11], s52 offen\nbuffer_load_dword v47, v%d, s[8:11], s53 offen" % (Z, Z))
        if tlb & 4:
            a("s_mov_b32 s52, %d\nbuffer_load_dword v48, v%d, s[12:15], s52 offen" % (WS_A + 0x180000, Z))
        if tlb & 8:
            a("buffer_load_dword v49, v%d, s[28:31], 0 offen" % Z)
        a("s_mov_b64 exec, -1\n.Laux_notlb:")
    def stage2_loads(srdb, voffs, step):
        for t in range(3):
            for ln in range(2):
                r = W2 + 8 * t + 4 * ln
                a("buffer_load_dwordx4 v[%d:%d], v%d, s[%d:%d], s52 offen offset:%d%s" % (r, r + 3, voffs[t], srdb, srdb + 3, 128 * ln, NT))
            if t < 2 and step: a("s_add_u32 s52, s52, %d" % step)
    def wdl():
        a("s_cmp_lt_u32 s25, 6\ns_cbranch_scc1 .Laux_nowdl")
        a("s_mul_i32 s56, s55, 24")
        for t in range(3):
            r = 16 + t
            a("v_add_u32 v3, s56, v4\nv_and_b32 v%d, 0xffffffc1, v3\nv_bfe_u32 v6, v3, 1, 3\nv_lshl_or_b32 v%d, v6, 3, v%d\nv_bfe_u32 v6, v3, 4, 2\nv_lshl_or_b32 v%d, v6, 1, v%d" % (r, r, r, r, r))
            a("v_mul_u32_u24 v%d, 1280, v%d\nv_lshl_add_u32 v%d, v5, 4, v%d" % (r, r, r, r))
            if t < 2: a("s_add_u32 s56, s56, 8")
        a("s_lshl_b32 s52, s3, 8")
        if WDL: lwait(F_PROG, str(WDL), Z, 3)
        stage2_loads(20, [16, 17, 18], 0)
        a(".Laux_nowdl:")
    if not WDL: wdl()
    a("v_lshrrev_b32 v3, 2, v0\nv_and_b32 v6, 3, v0\nv_lshlrev_b32 v6, 4, v6\nv_lshl_add_u32 v19, v3, 12, v6\nv_lshl_add_u32 v20, v3, 14, v6\nv_lshlrev_b32 v12, 1, v4")
    a("v_and_b32 v13, 15, v0\nv_lshrrev_b32 v14, 4, v0")
    a("s_cmp_ge_u32 s3, 3\ns_cbranch_scc1 .Laux_qdone")
    a("v_and_b32 v1, 31, v0\nv_lshlrev_b32 v1, 4, v1\nv_lshrrev_b32 v3, 5, v0\nv_mul_u32_u24 v3, 1536, v3\nv_add_u32 v1, v1, v3")
    a("s_mul_i32 s52, s24, 12288\ns_lshl_b32 s53, s3, 9\ns_add_u32 s52, s52, s53\ns_add_u32 s52, s52, %d\ns_add_u32 s53, s52, 6144" % WS_Q)
    a("v_lshlrev_b32 v6, 4, v5\nv_bfe_u32 v3, v0, 4, 1\nv_lshl_add_u32 v6, v3, 3, v6\nv_bfe_u32 v3, v0, 3, 1\nv_lshl_add_u32 v6, v3, 2, v6\ns_lshl_b32 s54, s3, 7\nv_add_u32 v6, s54, v6")
    lwait(F_PROG, str(G1), Z, 3)
    poll(["buffer_load_dwordx4 v[%d:%d], v1, s[12:15], s%d offen offset:%d sc1" % (G + 4 * i, G + 4 * i + 3, 52 + i // 2, 3072 * (i & 1)) for i in range(4)], [G + 2 * i + 1 for i in range(8)], 0, NXQ)
    for e in (0, 2): a("v_add_f32 v%d, v%d, v%d\nv_add_f32 v%d, v%d, v%d" % (G + e, G + e, G + 4 + e, G + 8 + e, G + 8 + e, G + 12 + e))
    for e in (0, 2): a("v_add_f32 v%d, v%d, v%d" % (G + e, G + e, G + 8 + e))
    redsw("v_add_f32", [(G, G + 1), (G + 2, G + 3)], ("v_permlane32_swap_b32",))
    a("v_cvt_pk_bf16_f32 v%d, v%d, v%d\nds_write_b32 v6, v%d offset:%d" % (G, G, G + 2, G, L_Q))
    a("s_waitcnt lgkmcnt(0)\ns_mov_b64 exec, 1\nds_add_u32 v%d, v%d offset:%d\ns_mov_b64 exec, -1" % (Z, ONE, F_QRDY))
    stamp(4)
    a(".Laux_qdone:")
    if AE == 4: a("s_endpgm")
    if WDL: wdl()
    a("s_cmp_lt_u32 s25, 6\ns_cbranch_scc1 .Laux_wddone")
    a("s_cmp_lg_u32 s3, 3\ns_cbranch_scc1 .Laux_hwait")
    a("v_mul_u32_u24 v1, 12288, v14\nv_lshl_add_u32 v1, v13, 4, v1\ns_mul_i32 s52, s55, 192\ns_add_u32 s52, s52, %d\ns_add_u32 s53, s52, 49152\ns_add_u32 s54, s52, 98304\ns_add_u32 s57, s52, 147456\nv_lshlrev_b32 v6, 2, v13" % WS_GU)
    lwait(F_PROG, str(G3), Z, 3)
    a("s_mov_b32 exec_lo, %s\ns_mov_b32 exec_hi, %s" % (M12, M12))
    poll(["buffer_load_dwordx4 v[%d:%d], v1, s[12:15], s%d offen sc1" % (G + 4 * i, G + 4 * i + 3, [52, 53, 54, 57][i]) for i in range(4)], [G + 2 * i + 1 for i in range(8)], 1)
    for e in (0, 2): a("v_add_f32 v%d, v%d, v%d\nv_add_f32 v%d, v%d, v%d" % (G + e, G + e, G + 4 + e, G + 8 + e, G + 8 + e, G + 12 + e))
    redrows("v_add_f32", [(G, G + 1), (G + 2, G + 3), (G + 8, G + 9), (G + 10, G + 11)])
    for r in (G, G + 2, G + 8, G + 10): rbf(r, r)
    for e in (0, 2):
        g, u = G + e, G + 8 + e
        a("v_mul_f32 v%d, 0xbfb8aa3b, v%d\nv_exp_f32 v%d, v%d\nv_add_f32 v%d, 1.0, v%d\nv_rcp_f32 v%d, v%d" % (g, g, g, g, g, g, g, g))
        rbf(g, g)
        a("v_mul_f32 v%d, v%d, v%d" % (g, g, u))
    a("v_cvt_pk_bf16_f32 v%d, v%d, v%d\nds_write_b32 v6, v%d offset:%d" % (G, G, G + 2, G, L_H))
    a("s_waitcnt lgkmcnt(0)\ns_mov_b64 exec, 1\nds_write_b32 v%d, v%d offset:%d\ns_mov_b64 exec, -1" % (Z, ONE, F_HRDY))
    a(".Laux_hwait:")
    def stage2(R, f32=False):
        for t in range(3):
            op = AOP + 4 * t
            if f32: operand(op, G + t, 22, G + t)
            else: operand16(op, G + t, SH)
            mfma(ACC, op, W2 + 8 * t, t == 0)
            mfma(ACC + 4, op, W2 + 8 * t + 4, t == 0)
        for r in range(4): a("v_permlane32_swap_b32 v%d, v%d" % (ACC + r, ACC + 4 + r))
        X, Y = ACC, ACC + 4
        dpp("v_add_f32", R, Y + 0, X + 0, "row_ror:8", "0x3")
        dpp("v_add_f32", R + 2, Y + 1, X + 1, "row_ror:8", "0x3")
        dpp("v_add_f32", R, X + 2, Y + 2, "row_ror:8", "0xc")
        dpp("v_add_f32", R + 2, X + 3, Y + 3, "row_ror:8", "0xc")
    BST = "buffer_store_dwordx4 v[40:43], v19, s[12:15], s56 offen sc1"
    a("s_lshl_b32 s56, s3, 16\ns_lshl_b32 s53, s55, 6\ns_add_u32 s56, s56, s53\ns_add_u32 s56, s56, %d\nv_mov_b32 v41, s26\nv_mov_b32 v43, s26" % WS_B)
    lwait(F_HRDY, "1", Z, 3, ["ds_read_u16 v%d, v12 offset:%d" % (G + t, L_H + 16 * t) for t in range(3)])
    a("s_waitcnt vmcnt(0)")
    stage2(40)
    if not bdef: a(BST)
    stamp(5)
    a(".Laux_wddone:")
    if AE == 5: a("s_endpgm")
    a("s_cmp_lg_u32 s3, 4\ns_cbranch_scc1 .Laux_s2")
    a("v_lshlrev_b32 v1, 4, v0\nv_lshlrev_b32 v6, 3, v0\ns_lshl_b32 s52, s24, 10\ns_add_u32 s52, s52, %d\ns_lshl_b32 s53, s25, 7\ns_add_u32 s53, s53, s52\ns_getreg_b32 s57, hwreg(HW_REG_XCC_ID, 0, 4)\nv_mov_b32 v%d, s57\nv_mov_b32 v%d, s26" % (WS_ST, G + 6, G + 7))
    if PQ & 4: lwait(F_STC, "1", Z, 3); a("s_mov_b64 exec, 0xff\nbuffer_load_dwordx4 v[%d:%d], v1, s[12:15], s53 offen nt\ns_mov_b64 exec, -1" % (G + 8, G + 11))
    lwait(F_STC, "8", Z, 3, ["ds_read_b64 v[%d:%d], v6 offset:%d" % (G + 4, G + 5, L_WST)])
    a("s_mov_b64 exec, 0xff\nbuffer_store_dwordx4 v[%d:%d], v1, s[12:15], s53 offen" % (G + 4, G + 7))
    a("s_mov_b64 exec, -1")
    stamp(4)
    lwait(F_PROG, str(G2), Z, 3)
    stamp(6)
    poll(["buffer_load_dwordx4 v[%d:%d], v1, s[12:15], s52 offen sc1" % (G, G + 3)], [G + 3], 3, NXQ)
    a("v_cmp_ne_u32 s[40:41], s57, v%d\nv_mov_b32 v21, 1\ns_cmp_eq_u64 s[40:41], 0\ns_cbranch_scc1 .Laux_same\nbuffer_wbl2 sc1\nv_mov_b32 v21, 2\ns_waitcnt vmcnt(0)\n.Laux_same:" % (G + 2))
    a("v_mov_b32 v16, v%d" % G)
    redall("v_max_f32", [(16, 18)])
    a("v_sub_f32 v17, v%d, v16\nv_mul_f32 v17, %s, v17\nv_exp_f32 v17, v17\nv_mul_f32 v17, v17, v%d" % (G, LOG2E, G + 1))
    redall("v_add_f32", [(17, 18)])
    a("v_rcp_f32 v17, v17\ns_mov_b64 exec, 1\nds_write_b64 v%d, v[16:17] offset:%d\ns_waitcnt lgkmcnt(0)\nds_write_b32 v%d, v21 offset:%d\ns_mov_b64 exec, -1" % (Z, L_ST, Z, F_STRDY))
    a(".Laux_s2:")
    if AE == 6: a("s_endpgm")
    stamp(7)
    a("v_mul_u32_u24 v7, 3840, v4\nv_lshl_add_u32 v7, v5, 4, v7")
    a("s_mul_i32 s52, s24, 192\ns_mul_i32 s53, s25, 24\ns_add_u32 s52, s52, s53\ns_mul_i32 s52, s52, 1280\ns_lshl_b32 s53, s3, 8\ns_add_u32 s52, s52, s53")
    a("v_lshlrev_b32 v17, 4, v0\ns_lshl_b32 s54, s24, 13\ns_lshl_b32 s53, s25, %d\ns_add_u32 s54, s54, s53\ns_add_u32 s54, s54, %d" % (7 if OD else 10, WS_O))
    if OD == 1: a("v_lshlrev_b32 v18, 10, v5\nv_lshl_add_u32 v18, v4, 4, v18")
    if OD == 2: a("v_lshlrev_b32 v18, 10, v4\nv_lshl_add_u32 v18, v5, 4, v18\nv_lshlrev_b32 v23, 2, v4\nv_lshl_add_u32 v23, v5, 5, v23")
    if PT:
        PL = "buffer_load_dwordx4 v[%d:%d], v%d, s[12:15], s54 offen" % (G + 4, G + 7, 18 if OD else 17)
        a("s_cmp_lg_u32 s3, %d\ns_cbranch_scc1 .Laux_npt\n%s\n.Laux_npt:" % (PT % 10, [PL + " sc1", PL + " nt", PL + " nt\ns_waitcnt vmcnt(0)\n" + PL + " sc1"][PT // 10]))
    if DG:
        a("s_cmp_lg_u32 s3, 1\ns_cbranch_scc1 .Laux_ndg\ns_lshl_b32 s28, s2, 13\ns_add_u32 s28, s28, 0x400000")
        if DG == 6: a("s_mul_i32 s28, s24, 1572864\ns_mul_i32 s29, s25, 196608\ns_add_u32 s28, s28, s29\ns_add_u32 s28, s28, 98304")
        if DG == 5: a("s_add_u32 s30, s12, s28\ns_addc_u32 s31, s13, 0")
        for k in range(DN):
            if DG == 5:
                for j in range(8): a("s_load_dword s29, s[30:31], %d" % (1024 * k + 128 * j))
                a("s_waitcnt lgkmcnt(0)")
            else:
                a("buffer_load_dwordx4 v[%d:%d], v17, s[%s], s28 offen%s\ns_waitcnt vmcnt(0)" % (G + 4, G + 7, "44:47" if DG == 6 else "12:15", {1: " sc1", 2: "", 3: " nt", 4: " sc1", 6: " nt"}[DG]))
                if DG != 4: a("s_add_u32 s28, s28, 1024")
        stamp(6)
        a(".Laux_ndg:")
    if XD:
        a("s_lshl_b32 s28, s2, 13\ns_lshl_b32 s29, s3, 10\ns_add_u32 s28, s28, s29\ns_add_u32 s28, s28, 0x400000")
        for k in range(XD): a("buffer_store_dwordx4 v[36:39], v17, s[12:15], s28 offen\ns_add_u32 s28, s28, 0x200000")
    a("v_mov_b32 v9, s26\nv_mov_b32 v11, s26\nv_mov_b32 v22, 0xffff\nv_lshlrev_b32 v22, v%d, v22" % SH)
    if aslot == 0: a("s_lshl_b32 s60, s3, 18\ns_lshl_b32 s53, s24, 9\ns_add_u32 s60, s60, s53\ns_lshl_b32 s53, s25, 6\ns_add_u32 s60, s60, s53\ns_add_u32 s60, s60, %d" % WS_A)
    if aslot == 1: a("s_lshl_b32 s60, s3, 18\ns_and_b32 s53, s24, 15\ns_lshl_b32 s53, s53, 10\ns_add_u32 s60, s60, s53\ns_lshl_b32 s53, s25, 7\ns_add_u32 s60, s60, s53\ns_lshr_b32 s53, s24, 4\ns_lshl_b32 s53, s53, 6\ns_add_u32 s60, s60, s53\ns_add_u32 s60, s60, %d" % WS_A)
    if aslot == 2: a("s_lshl_b32 s60, s3, 18\ns_lshl_b32 s53, s2, 6\ns_add_u32 s60, s60, s53\ns_add_u32 s60, s60, %d" % WS_A)
    cw = [int(c) for c in "%05d" % CW]
    a("s_lshl_b32 s53, s3, 2\ns_lshr_b32 s61, 0x%x, s53\ns_and_b32 s61, s61, 15" % sum(c << (4 * i) for i, c in enumerate(cw)))
    if GO:
        a("s_cmp_lg_u32 s3, 1\ns_cbranch_scc1 .Lgo_done\ns_load_dword s92, s[94:95], 0\ns_mov_b32 s27, 100000\nv_mov_b32 v16, 8")
        a(".Lgo_l:\ns_memrealtime s[90:91]\nds_read_b32 v3, v%d offset:%d\ns_waitcnt lgkmcnt(0)\nv_readfirstlane_b32 s40, v3\ns_cmp_ge_u32 s40, 8\ns_cbranch_scc1 .Lgo_done" % (Z, F_WOGO))
        a("s_sub_u32 s27, s27, 1\ns_cbranch_scc1 .Lgo_done\ns_sub_u32 s90, s90, s92\ns_cmp_lt_i32 s90, %d\ns_cbranch_scc1 .Lgo_l" % GO)
        a("s_mov_b64 exec, 1\nds_write_b32 v%d, v%d offset:%d" % (Z, ONE, F_MODE))
        if GW: a("ds_add_u32 v%d, v16 offset:%d" % (Z, F_WOGO))
        a("s_mov_b64 exec, -1\n.Lgo_done:")
    if PW <= 24:
        lwait(F_WOGO, "s61", Z, 3)
        def dummy():
            a("s_cmp_ge_u32 s3, 3\ns_cbranch_scc1 .Lnodum\ns_cmp_lt_u32 s3, %d\ns_cbranch_scc1 .Lnodum\ns_mul_i32 s28, s2, 7680\ns_add_u32 s29, s28, 4096" % (0 if abl & 64 else 2))
            for t in range(8): a("buffer_load_dwordx4 v[%d:%d], v17, s[44:47], s%d offen offset:%d%s" % (44 + 4 * t, 47 + 4 * t, 28 + t // 4, 1024 * (t & 3), NT))
            if abl & 512: a("s_waitcnt vmcnt(2)")
            a(".Lnodum:")
        if abl & 128 and abl & 256: dummy()
        stage2_loads(8, [7, 7, 7], 1280)
        if abl & 128 and not abl & 256: dummy()
    stamp(8)
    a("s_barrier")
    if PW > 24: stage2_loads(8, [7, 7, 7], 1280)
    if OQ: lwait(F_MODE, "2", Z, 3)
    if OW: a("s_waitcnt vmcnt(0)")
    stamp(9)
    poll(["buffer_load_dwordx4 v[%d:%d], v%d, s[12:15], s54 offen sc1" % (G, G + 3, 18 if OD else 17)], [G + 3], 5)
    if OD == 2:
        for t in range(3): a("ds_bpermute_b32 v%d, v23, v%d" % (G + t, G + t))
    stamp(10)
    if bdef: a("s_cmp_lt_u32 s25, 6\ns_cbranch_scc1 .Laux_nob\n%s\n.Laux_nob:" % BST)
    if OD == 2: a("s_waitcnt lgkmcnt(0)")
    red8("v_add_f32", [G, G + 1, G + 2])
    stage2(8, True)
    a("buffer_store_dwordx4 v[8:11], v20, s[12:15], s60 offen sc1")
    stamp(11)
    if gue: a("s_cmp_lt_u32 s3, 3\ns_cbranch_scc1 .Laux_nogu\ns_cmp_ge_u32 s25, 6\ns_cbranch_scc1 .Laux_nogu\ns_mov_b32 exec_hi, 0\nbuffer_store_dwordx4 v[36:39], v17, s[12:15], s51 offen sc1\n.Laux_nogu:")
    if ack: a("s_waitcnt vmcnt(0)"); stamp(12)
    a("s_cmp_ge_u32 s2, %d\ns_cbranch_scc1 .Laux_end\ns_barrier" % NRED)
    a(".Laux_end:")
    flush_stamps(range(1, 13))
    a(".Lend:\ns_endpgm")
    i0, i1 = a.l.index(".Lbulk2:"), a.l.index(".Laux:")
    a.l = a.l[:i0] + a.l[i1:] + a.l[i0:i1]
    base = a.l
    def build(np_):
        l = list(base)
        tb, ta = [], []
        for k in range(np_):
            wv = 5 + k if k < 8 else 12 - k
            (tb if k < 8 else ta).extend(["    s_cmp_eq_u32 s3, %d" % wv, "    s_cbranch_scc1 .Lpad_%d" % k])
        i = l.index(".Ltouch_b:"); l[i:i + 1] = tb
        i = l.index(".Ltouch_a:"); l[i:i + 1] = ta
        l += [".Lpad_%d:" % k for k in range(np_)]
        l, n = hazard.fix(l)
        return l[:len(l) - np_]
    np_ = 0
    while True:
        l = build(np_)
        if not warm: break
        l, k = pads.add(l, [".Lbulk2"] * 8 + [".Laux2"] * 5, WIN)
        if k == np_: break
        assert k > np_
        np_ = k
    a.l, n = hazard.fix(l)
    assert n == 0
    return a.text(256, 832, LDS_BYTES, 128)

if __name__ == "__main__":
    out = sys.argv[1]
    kw = dict(x.split("=") for x in sys.argv[2:])
    kw = {k: int(v) for k, v in kw.items()}
    open(out, "w").write(gen(**kw))
```

```python
import sys
from asmlib import *
import hazard, pads

WS_F = 0xD0000
WS_Q, WS_GU, WS_ST, WS_O, WS_B, WS_A = 0x10000, 0x80000, 0xC0000, 0x100000, 0x180000, 0x200000
L_Q, L_ST, L_FLAG, L_PART, L_RED, L_REDB = 0, 384, 448, 512, 8704, 8960
L_XN, L_H, L_WST = 9216, 10560, 10624
F_PROG, F_QRDY, F_STRDY, F_WOGO, F_HRDY, F_STC, F_MODE = [L_FLAG + 4 * i for i in range(7)]
LDS_BYTES = 11136
SPIN = 40000
LOG2E = "0x3fb8aa3b"
SCALE = "0x3d93cd3a"
M12 = "0x0fff0fff"

def gen(T=3, P1=24, PW=24, CW=88888, G1=12, G3=16, G2=36, stamps=0, NRED=80, SLP=0, dbgst=0, pol=0, QA=88, QB=56, TT=48, TTT=24, nodep=0, ack=0, pre=0, abl=0, NS=4, TH=32, NXQ=24, NXR=3, gue=1, early=0, bdef=1, aslot=0, warm=1, WIN=1280, tlb=0, rlo=0, pd=0, pa=0, lag=9999, pk=0, TP=0, SB=99, SBM=0, SBN=1, WA=0, WN=30, pat=0, A1=99, A2=0, AT=99, GUD=0, WDL=0, T0N=0, GA=99, QPL=2, SSP=0, Q4=0, Q1=0, TM=0, TM0=6, TM1=48, AE=0, GO=0, GN=38, GW=1, GT=99, oack=0, OD=0, OS=0, OQ=0, OW=0, PT=0, DG=0, DN=6, PQ=0, AN=0, XD=0, CL=0, XT=0, XI=1, ST2=0, AS=0, fl=1, FG=0, FW=1, FGO=5):
    a = Asm()
    NT = [" nt", "", " sc1 nt", " sc0 sc1 nt", " sc1", " sc0 sc1", " sc0 nt"][pol]
    assert 6 * QA + 2 * QB == 640 and QA % 8 == 0 and QB % 8 == 0
    NT1 = max(QA, QB, 80) // 8
    def stamp(k):
        if stamps: a("s_memrealtime s[%d:%d]" % (64 + 2 * k - 2, 64 + 2 * k - 1))
    def flush_stamps(ks):
        if dbgst >= 2 and len(ks) == 11:
            a("s_cmp_lg_u32 s3, 5\ns_cbranch_scc1 .Lend\ns_add_u32 s88, s88, %d\ns_mov_b32 s9, 100000" % dbgst)
            if pre == 1: a("s_waitcnt vmcnt(0)\nbuffer_wbl2 sc1\ns_waitcnt vmcnt(0)")
            if pre == 2: a("s_cmp_lg_u32 s2, 0\ns_cbranch_scc1 .Lend")
            a(".Lsp:\ns_memrealtime s[6:7]\ns_waitcnt lgkmcnt(0)\ns_sub_u32 s9, s9, 1\ns_cbranch_scc1 .Lend\ns_sub_u32 s7, s6, s88\ns_cmp_lt_i32 s7, 0\ns_cbranch_scc1 .Lsp")
        if dbgst == 1 and len(ks) == 11:
            a("s_cmp_lg_u32 s3, 5\ns_cbranch_scc1 .Lend")
            a("s_memrealtime s[90:91]\ns_memtime s[92:93]\ns_mov_b32 s40, s84\ns_mov_b32 s41, s85\ns_mov_b32 s42, 256\ns_mov_b32 s43, 0x00020000\ns_waitcnt lgkmcnt(0)\ns_mov_b64 exec, 1\nv_mov_b32 v2, 0\ns_sub_u32 s92, s92, s94\ns_sub_u32 s93, s90, s88\ns_not_b32 s88, s88\nv_mov_b32 v3, s88\nv_mov_b32 v4, s90\nv_mov_b32 v5, s92\nv_mov_b32 v6, s93")
            a("buffer_atomic_umax v3, v2, s[40:43], 0 offen sc1\nbuffer_atomic_umax v4, v2, s[40:43], 0 offen offset:4 sc1\nbuffer_atomic_umax v5, v2, s[40:43], 0 offen offset:8 sc1\nbuffer_atomic_umax v6, v2, s[40:43], 0 offen offset:12 sc1")
        if not stamps: return
        a("s_waitcnt lgkmcnt(0)\ns_mov_b64 exec, 1\nv_mov_b32 v2, 0\ns_lshl_b32 s40, s2, 10\ns_lshl_b32 s41, s3, 6\ns_add_u32 s40, s40, s41\ns_add_u32 s40, s40, %d" % STAMP_OFF)
        if fl:
            a("s_mov_b64 exec, 0xffff\nv_mov_b32 v3, 0\nv_lshlrev_b32 v2, 2, v0")
            for k in [0] + list(ks): a("v_writelane_b32 v3, s%d, %d" % (88 if k == 0 else 64 + 2 * k - 2, k))
            a("v_writelane_b32 v3, s58, 15\nv_writelane_b32 v3, s59, 14\nbuffer_store_dword v3, v2, s[12:15], s40 offen")
            return
        for k in [0] + list(ks):
            r = 88 if k == 0 else 64 + 2 * k - 2
            a("v_mov_b32 v3, s%d\nbuffer_store_dword v3, v2, s[12:15], s40 offen offset:%d" % (r, 4 * k))
        a("v_mov_b32 v3, s58\nbuffer_store_dword v3, v2, s[12:15], s40 offen offset:60")
        a("v_mov_b32 v3, s59\nbuffer_store_dword v3, v2, s[12:15], s40 offen offset:56")
    def zero_stamps():
        if stamps:
            a("s_mov_b32 s58, 0\ns_mov_b32 s59, 0")
            for k in range(1, 12): a("s_mov_b32 s%d, 0" % (64 + 2 * k - 2))
    def dpp(op, d, s0, s1, ctl, bank="0xf"):
        a("%s_dpp v%d, v%d, v%d %s row_mask:0xf bank_mask:%s" % (op, d, s0, s1, ctl, bank))
    def red8(op, regs_):
        for ctl in ("quad_perm:[1,0,3,2]", "quad_perm:[2,3,0,1]", "row_half_mirror"):
            for r in regs_: dpp(op, r, r, r, ctl)
    def redsw(op, pairs, sws):
        for sw in sws:
            for r, t in pairs: a("v_mov_b32 v%d, v%d" % (t, r))
            for r, t in pairs: a("%s v%d, v%d" % (sw, r, t))
            for r, t in pairs: a("%s v%d, v%d, v%d" % (op, r, r, t))
    def redrows(op, pairs):
        redsw(op, pairs, ("v_permlane16_swap_b32", "v_permlane32_swap_b32"))
    def redhi(op, pairs):
        for r, t in pairs: dpp(op, r, r, r, "row_ror:8")
        redrows(op, pairs)
    def redall(op, pairs):
        red8(op, [r for r, t in pairs]); redhi(op, pairs)
    def rbf(d, s):
        a("v_cvt_pk_bf16_f32 v%d, v%d, v%d\nv_lshlrev_b32 v%d, 16, v%d" % (d, s, s, d, d))
    def onehot(dst, tmp):
        for j in range(4): a("v_cndmask_b32 v%d, 0, v%d, s[%d:%d]" % (dst + j, tmp, 32 + 2 * j, 33 + 2 * j))
    def operand(dst, c, H, tmp):
        a("v_cvt_pk_bf16_f32 v%d, v%d, v%d\nv_and_b32 v%d, v%d, v%d" % (tmp, c, c, tmp, tmp, H))
        onehot(dst, tmp)
    def operand16(dst, c, SH):
        a("v_lshlrev_b32 v%d, v%d, v%d" % (c, SH, c))
        onehot(dst, c)
    def mfma(d, A, B, first):
        a("v_mfma_f32_16x16x32_bf16 v[%d:%d], v[%d:%d], v[%d:%d], %s" % (d, d + 3, A, A + 3, B, B + 3, "0" if first else "v[%d:%d]" % (d, d + 3)))
    def fold1(D, out):
        a("v_permlane32_swap_b32 v%d, v%d\nv_permlane32_swap_b32 v%d, v%d" % (D, D + 1, D + 2, D + 3))
        dpp("v_add_f32", out, D + 1, D, "row_ror:8", "0x3")
        dpp("v_add_f32", out, D + 2, D + 3, "row_ror:8", "0xc")
    def poll(loads, tags, errslot, nx=0):
        L, D = a.label("poll"), a.label("polld")
        a("s_mov_b32 s27, %d" % (SPIN // 4 if nx else SPIN))
        if nx: a("s_mov_b32 s62, %d" % (nx - 1))
        a(L + ":")
        if stamps and errslot == 5 and not ack: stamp(12)
        for l in loads: a(l)
        if stamps: a("s_add_u32 s59, s59, %d" % (1 << (5 * errslot)))
        a("s_waitcnt vmcnt(0)")
        a("v_cmp_ne_u32 s[40:41], s26, v%d" % tags[0])
        for t in tags[1:]:
            a("v_cmp_ne_u32 s[42:43], s26, v%d\ns_or_b64 s[40:41], s[40:41], s[42:43]" % t)
        if not (nodep >> errslot) & 1:
            a("s_cmp_eq_u64 s[40:41], 0\ns_cbranch_scc1 %s" % D)
            if nx:
                a("s_sub_u32 s62, s62, 1\ns_cbranch_scc0 %s\ns_mov_b32 s62, %d\nbuffer_wbl2 sc1\ns_waitcnt vmcnt(0)" % (L, NXR - 1))
                if stamps: a("s_or_b32 s58, s58, 512")
            a("s_sub_u32 s27, s27, 1\ns_cbranch_scc0 %s" % L)
        if stamps: a("s_or_b32 s58, s58, %d" % (1 << errslot))
        a(D + ":")
    def lwait(flag, thr, vaddr, vtmp, extra=()):
        L, D = a.label("lw"), a.label("lwd")
        if nodep & 64 and flag in (F_QRDY, F_STRDY, F_HRDY): thr = "0"
        a("s_mov_b32 s27, %d" % (SPIN * 8))
        a(L + ":")
        a("ds_read_b32 v%d, v%d offset:%d" % (vtmp, vaddr, flag))
        for l in extra: a(l)
        a("s_waitcnt lgkmcnt(0)\nv_readfirstlane_b32 s40, v%d\ns_cmp_ge_u32 s40, %s\ns_cbranch_scc1 %s" % (vtmp, thr, D))
        if SLP: a("s_sleep %d" % SLP)
        a("s_sub_u32 s27, s27, 1\ns_cbranch_scc0 %s" % L)
        if stamps: a("s_or_b32 s58, s58, 256")
        a(D + ":")
    def srd(base, ptr, size):
        a("s_mov_b32 s%d, s%d\ns_mov_b32 s%d, s%d\ns_mov_b32 s%d, %d\ns_mov_b32 s%d, 0x00020000" % (base, ptr, base + 1, ptr + 1, base + 2, size, base + 3))
    def nonce():
        a("s_waitcnt lgkmcnt(0)\ns_mul_i32 s26, s26, 0x19660d\ns_add_u32 s26, s26, 0x3c6ef35f")
    def masks():
        for j, m in enumerate(("0x03030303", "0x0c0c0c0c", "0x30303030", "0xc0c0c0c0")):
            a("s_mov_b32 s%d, %s\ns_mov_b32 s%d, %s" % (32 + 2 * j, m, 33 + 2 * j, m))
        a("v_and_b32 v2, 1, v0\nv_lshlrev_b32 v2, 4, v2")
    a("s_cmp_ge_u32 s2, 256\ns_cbranch_scc1 .Lend")
    a("s_load_dwordx16 s[64:79], s[0:1], 0\ns_load_dwordx8 s[80:87], s[0:1], 64")
    if stamps or dbgst: a("s_memrealtime s[88:89]")
    if dbgst == 1: a("s_memtime s[94:95]")
    a("""
    v_lshrrev_b32 v1, 6, v0
    v_and_b32 v0, 63, v0
    v_readfirstlane_b32 s3, v1
    s_and_b32 s24, s2, 7
    s_lshl_b32 s24, s24, 2
    s_bfe_u32 s25, s2, 0x20003
    s_or_b32 s24, s24, s25
    s_lshr_b32 s25, s2, 5
    v_lshrrev_b32 v4, 3, v0
    v_and_b32 v5, 7, v0
    s_cmp_lt_u32 s3, 5
    s_cbranch_scc1 .Laux
    """)
    KV = 32
    Q = 8
    SC = 20
    VOFF, H = 1, 2
    OP = 28
    T0, T1, T2, T3 = 3, 4, 5, 6
    TMX = TM; TM = 7
    a("""
    v_mul_u32_u24 v1, 384, v4
    v_lshl_add_u32 v1, v5, 4, v1
    s_sub_u32 s48, s3, 5
    s_mul_i32 s28, s24, 1572864
    s_mul_i32 s29, s25, 196608
    s_add_u32 s28, s28, s29
    s_mul_i32 s29, s48, 24576
    s_add_u32 s28, s28, s29
    s_add_u32 s29, s28, 6144
    s_add_u32 s30, s28, 12288
    s_add_u32 s31, s28, 18432
    """)
    if pat == 8: a("s_and_b32 s28, s2, 7\ns_mul_i32 s28, s28, 1572864\ns_lshr_b32 s29, s2, 3\ns_mul_i32 s29, s29, 49152\ns_add_u32 s28, s28, s29\ns_mul_i32 s29, s48, 6144\ns_add_u32 s28, s28, s29\ns_add_u32 s29, s28, 12582912\ns_add_u32 s30, s29, 12582912\ns_add_u32 s31, s30, 12582912")
    if pat == 9: a("s_and_b32 s28, s2, 15\ns_mul_i32 s28, s28, 1572864\ns_lshr_b32 s29, s2, 4\ns_mul_i32 s29, s29, 98304\ns_add_u32 s28, s28, s29\ns_mul_i32 s29, s48, 12288\ns_add_u32 s28, s28, s29\ns_add_u32 s29, s28, 6144\ns_add_u32 s30, s28, 25165824\ns_add_u32 s31, s30, 6144")
    a("s_waitcnt lgkmcnt(0)")
    srd(4, 66, 50331648)
    st = dict(n=0, landed=0)
    def need(idx):
        if idx >= st["landed"]:
            a("s_waitcnt vmcnt(%d)" % (st["n"] - 1 - idx)); st["landed"] = idx + 1
    def kvload(throttle=True):
        n = st["n"]; i = n % 24; t, ln = i // 3, i % 3
        Tn = T if n < TT else TTT
        if n < T0N: Tn = T - 1
        if 24 <= n < 24 + Q4: Tn = T + 1
        if TP and n >= 6: Tn = int(str(TP)[n % len(str(TP))])
        if pd and n == 5: a("s_load_dword s92, s[94:95], 0")
        if pd and n == 8: a("s_waitcnt lgkmcnt(0)\ns_cmp_eq_u32 s92, 0\ns_cselect_b32 s92, s88, s92")
        if pd and n >= 8:
            L = a.label("pc"); thr = (pa * 10 + min(n, 24) * (pk or pd) + max(n - 24, 0) * pd) // 10
            CK = "s_memrealtime s[90:91]\ns_waitcnt lgkmcnt(0)\ns_sub_u32 s90, s90, s92\ns_cmp_ge_i32 s90, %d\ns_cbranch_scc1 %s"
            if lag < 9999:
                need(n - Tn - 1); a(CK % (thr + lag, L)); a("s_waitcnt vmcnt(%d)" % (Tn - 1))
            else: need(n - Tn)
            a(CK % (thr, L)); a("s_waitcnt vmcnt(%d)\n%s:" % (Tn - 2, L))
        elif st.get("post") and SBM and SB <= n < SB + SBN:
            L = a.label("sb")
            need(n - Tn)
            a("ds_read_b32 v%d, v%d offset:%d\ns_waitcnt lgkmcnt(0)\nv_readfirstlane_b32 s40, v%d\ns_cmp_lg_u32 s40, 0\ns_cbranch_scc1 %s\ns_waitcnt vmcnt(%d)" % (T0, T3, F_STRDY, T0, L, SBM - 1))
            if stamps: a("s_add_u32 s59, s59, 1")
            a(L + ":")
        elif st.get("post") and n == SB:
            need(n - Tn)
            lwait(F_STRDY, "1", T3, T0)
        elif WA and WN <= n < WN + 4:
            L = a.label("wa")
            need(n - Tn - 1)
            a("s_cmp_ge_u32 s48, %d\ns_cbranch_scc1 %s\ns_waitcnt vmcnt(%d)" % (WA % 10, L, Tn - 1))
            if n < WN + (WA // 100): a("s_cmp_ge_u32 s48, %d\ns_cbranch_scc1 %s\ns_waitcnt vmcnt(%d)" % (WA // 10 % 10, L, Tn - 2))
            a(L + ":")
        elif XT and throttle and TM0 <= n < TM1:
            L = a.label("xt")
            need(n - Tn - 1)
            a("s_bitcmp1_b64 s[60:61], %d\ns_cbranch_scc1 %s\ns_waitcnt vmcnt(%d)\n%s:" % (n, L, Tn - 1, L))
        elif TMX and TM0 <= n < TM1:
            L = a.label("tm")
            need(n - Tn)
            a("s_bitcmp1_b64 s[60:61], %d\ns_cbranch_scc1 %s\ns_waitcnt vmcnt(%d)\n%s:" % (n, L, Tn - 2, L))
        elif throttle and n >= Tn: need(n - Tn)
        r = KV + 4 * i
        a("buffer_load_dwordx4 v[%d:%d], v%d, s[%d:%d], s%d offen offset:%d%s" % (r, r + 3, VOFF, 4 if n < 24 else 8, 7 if n < 24 else 11, 28 + t // 2, 3072 * (t & 1) + 128 * ln, NT))
        st["n"] += 1
        n = st["n"]
        if n in (G1, G2, G3, GUD, WDL):
            a("s_mov_b64 exec, 1\nv_mov_b32 v%d, 0\nv_mov_b32 v%d, %d\nds_max_u32 v%d, v%d offset:%d\ns_mov_b64 exec, -1" % (OP, OP + 1, n, OP, OP + 1, F_PROG))
        if n == 24 + PW:
            a("s_mov_b64 exec, 1\nv_mov_b32 v%d, 0\nv_mov_b32 v%d, 1\nds_add_u32 v%d, v%d offset:%d\ns_mov_b64 exec, -1" % (OP, OP + 1, OP, OP + 1, F_WOGO))
    for _ in range(T - (1 if T0N else 0)): kvload()
    a("s_load_dword s26, s[86:87], 0")
    srd(8, 68, 50331648); srd(12, 86, 268435456); srd(16, 64, 1280); srd(20, 82, 1280)
    if pd: a("s_mov_b32 s94, s84\ns_mov_b32 s95, s85")
    zero_stamps()
    masks()
    a("v_mov_b32 v3, 0xffff\nv_lshlrev_b32 v2, v2, v3")
    a("v_lshlrev_b32 v6, 4, v5")
    if TMX:
        p = str(TMX); m = sum((p[i % len(p)] == "3") << i for i in range(64))
        a("s_mov_b32 s60, 0x%x\ns_mov_b32 s61, 0x%x\ns_mul_i32 s49, s48, %d\ns_lshr_b32 s49, s49, 3\ns_lshr_b64 s[60:61], s[60:61], s49" % (m & 0xffffffff, m >> 32, len(p)))
    if XT:
        BP = [0x00, 0x01, 0x11, 0x25, 0x55, 0x5b, 0x77, 0x7f, 0xff]
        m = sum(BP[int(c)] << (8 * i) for i, c in enumerate(("%09d" % XT)[1:]))
        a("s_getreg_b32 s49, hwreg(HW_REG_XCC_ID, 0, 3)" if XI else "s_and_b32 s49, s2, 7")
        a("s_lshl_b32 s49, s49, 3\ns_mov_b32 s60, 0x%x\ns_mov_b32 s61, 0x%x\ns_lshr_b64 s[60:61], s[60:61], s49\ns_and_b32 s60, s60, 0xff\ns_mul_i32 s60, s60, 0x01010101\ns_mov_b32 s61, s60\ns_lshr_b64 s[60:61], s[60:61], s48" % (m & 0xffffffff, m >> 32))
    a(".Ltouch_b:\ns_branch .Lbulk2\n.Lbulk2:")
    a("s_barrier")
    while st["n"] < P1: kvload()
    nonce()
    stamp(1)
    lwait(F_QRDY, "3", 6, T0, ["ds_read_b128 v[%d:%d], v6 offset:%d" % (Q + 4 * ln, Q + 4 * ln + 3, L_Q + 128 * ln) for ln in range(3)])
    stamp(2)
    def qk(t):
        if abl & 1: return
        acc = [T0, T1, T2]
        for j in range(4):
            for ln in range(3):
                a("v_dot2_f32_bf16 v%d, v%d, v%d, %s" % (acc[ln], KV + 12 * t + 4 * ln + j, Q + 4 * ln + j, "0" if j == 0 else "v%d" % acc[ln]))
        a("v_add_f32 v%d, v%d, v%d\nv_add_f32 v%d, v%d, v%d" % (T0, T0, T1, T0, T0, T2))
        red8("v_add_f32", [T0])
        rbf(T0, T0)
        a("v_mul_f32 v%d, %s, v%d" % (T0, SCALE, T0))
        rbf(SC + t, T0)
    tq = 0
    while tq < 8:
        did = 0
        while tq < 8 and did < (1 if tq < Q1 else QPL) and 3 * tq + 2 < st["landed"]:
            qk(tq); tq += 1; did += 1
        if tq < 8:
            if st["n"] >= 24 and (st["n"] - 24) // 3 >= tq:
                need(3 * tq + 2)
            else:
                kvload()
    if SSP & 1: kvload()
    a("v_max3_f32 v%d, v%d, v%d, v%d" % (TM, SC, SC + 1, SC + 2))
    a("v_max3_f32 v%d, v%d, v%d, v%d" % (T0, SC + 3, SC + 4, SC + 5))
    a("v_max3_f32 v%d, v%d, v%d, v%d" % (TM, TM, SC + 6, SC + 7))
    a("v_max_f32 v%d, v%d, v%d" % (TM, TM, T0))
    redhi("v_max_f32", [(TM, T0)])
    a("v_mul_f32 v%d, %s, v%d" % (T1, LOG2E, TM))
    a("s_mov_b32 s49, %s" % LOG2E)
    for t in range(8): a("v_fma_f32 v%d, v%d, s49, -v%d" % (SC + t, SC + t, T1))
    for t in range(8): a("v_exp_f32 v%d, v%d" % (SC + t, SC + t))
    if SSP & 2: kvload()
    a("v_add_f32 v%d, v%d, v%d\nv_add_f32 v%d, v%d, v%d" % (T2, SC, SC + 1, T3, SC + 2, SC + 3))
    a("v_add_f32 v%d, v%d, v%d\nv_add_f32 v%d, v%d, v%d" % (T2, T2, SC + 4, T3, T3, SC + 5))
    a("v_add_f32 v%d, v%d, v%d\nv_add_f32 v%d, v%d, v%d" % (T2, T2, SC + 6, T3, T3, SC + 7))
    S4 = Q
    a("v_add_f32 v%d, v%d, v%d" % (S4 + 1, T2, T3))
    redhi("v_add_f32", [(S4 + 1, T0)])
    a("v_mov_b32 v%d, v%d\nv_mov_b32 v%d, 0\nv_mov_b32 v%d, 1\ns_lshl_b32 s50, s48, 3\nv_mov_b32 v%d, s50" % (S4, TM, T3, S4 + 2, S4 + 3))
    a("s_mov_b64 exec, 1\nds_write_b64 v%d, v[%d:%d] offset:%d\nds_add_u32 v%d, v%d offset:%d\ns_mov_b64 exec, -1" % (S4 + 3, S4, S4 + 1, L_WST, T3, S4 + 2, F_STC))
    stamp(3)
    st["post"] = 1; assert SB >= st["n"] and SB >= G2, st["n"]; sys.stderr.write('n at stats %d\n' % st['n'])
    if GO:
        while st["n"] < GN: kvload()
        sv = dict(st)
        while st["n"] < 48:
            a("ds_read_b32 v%d, v%d offset:%d\ns_waitcnt lgkmcnt(0)\nv_readfirstlane_b32 s40, v%d\ns_cmp_lg_u32 s40, 0\ns_cbranch_scc1 .Lfast_%d" % (T0, T3, F_MODE, T0, st["n"]))
            kvload()
        a("s_branch .Lfast_48")
        st.update(sv)
        while st["n"] < 48:
            a(".Lfast_%d:" % st["n"])
            if stamps: a("s_add_u32 s59, s59, 1")
            if GT < 99: a("s_waitcnt vmcnt(%d)" % (GT - 1))
            kvload(False)
        a(".Lfast_48:")
    while st["n"] < 48: kvload()
    a("""
    v_and_b32 v1, 7, v0
    v_lshlrev_b32 v1, 3, v1
    v_bfe_u32 v5, v0, 4, 1
    v_lshl_add_u32 v1, v5, 2, v1
    v_bfe_u32 v5, v0, 3, 1
    v_lshl_add_u32 v1, v5, 1, v1
    v_bfe_u32 v5, v0, 5, 1
    v_add_u32 v1, v5, v1
    s_lshl_b32 s49, s48, 8
    """)
    PA = [28, 29, 30]
    stamp(4)
    lwait(F_STRDY, "1", T3, T0, ["ds_read_b64 v[%d:%d], v%d offset:%d" % (T1, T2, T3, L_ST)])
    a("s_mov_b32 s52, s40")
    stamp(5)
    a("v_sub_f32 v%d, v%d, v%d\nv_mul_f32 v%d, %s, v%d\nv_exp_f32 v%d, v%d\nv_mul_f32 v%d, v%d, v%d" % (T0, TM, T1, T0, LOG2E, T0, T0, T0, TM, T0, T2))
    for t in range(8):
        a("v_mul_f32 v%d, v%d, v%d" % (T0, SC + t, TM))
        operand(OP, T0, H, T1)
        for ln in range(3):
            need(24 + 3 * t + ln)
            mfma(Q + 4 * ln, OP, KV + 12 * t + 4 * ln, t == 0)
        if t == 6:
            PA[:] = [SC + 3, SC + 4, SC + 5]
            for ln in range(3):
                a("v_add_u32 v%d, %d, v1\nv_mul_u32_u24 v5, 171, v%d\nv_lshrrev_b32 v5, 9, v5\nv_add3_u32 v%d, v%d, v5, s49\nv_lshlrev_b32 v%d, 2, v%d" % (PA[ln], 64 * ln, PA[ln], PA[ln], PA[ln], PA[ln], PA[ln]))
            a("v_lshlrev_b32 v6, 4, v0\nv_lshlrev_b32 v5, %d, v0\ns_lshl_b32 s50, s24, 13\ns_lshl_b32 s51, s25, %d\ns_add_u32 s50, s50, s51\ns_add_u32 s50, s50, %d" % (4 if OD else 7, 10 if OD else 4, WS_O))
    stamp(6)
    for ln in range(3): fold1(Q + 4 * ln, SC + ln)
    if AE: a("s_branch .Lbulk_end")
    for ln in range(3): a("ds_write_b32 v%d, v%d offset:%d" % (PA[ln], SC + ln, L_PART))
    a("v_mov_b32 v11, s26\ns_waitcnt lgkmcnt(0)")
    a("s_barrier")
    a("s_cmp_ge_u32 s48, 1\ns_cbranch_scc1 .Lbulk_opub")
    for k in range(8): a("ds_read_b128 v[%d:%d], v6 offset:%d" % (32 + 4 * k, 35 + 4 * k, L_PART + 1024 * k))
    for st_, wv in ((4, 4), (8, 0), (16, 0)):
        for k in range(0, 32, 2 * st_):
            if st_ == 4: a("s_waitcnt lgkmcnt(%d)" % (6 - k // 4))
            d = 8 if st_ == 16 else 32 + k
            a("v_pk_add_f32 v[%d:%d], v[%d:%d], v[%d:%d]\nv_add_f32 v%d, v%d, v%d" % (d, d + 1, 32 + k, 33 + k, 32 + k + st_, 33 + k + st_, d + 2, 34 + k, 34 + k + st_))
    if oack: stamp(5)
    OST = ["buffer_store_dwordx4 v[8:11], v5, s[12:15], s50 offen", "buffer_atomic_swap_x2 v[8:9], v5, s[12:15], s50 offen\nbuffer_atomic_swap_x2 v[10:11], v5, s[12:15], s50 offen offset:8",
           "buffer_store_dwordx4 v[8:11], v5, s[12:15], s50 offen sc0", "buffer_store_dwordx4 v[8:11], v5, s[12:15], s50 offen sc1", "buffer_store_dwordx4 v[8:11], v5, s[12:15], s50 offen\nbuffer_load_dword v12, v5, s[12:15], s50 offen sc1"][OS]
    a("s_cmp_eq_u32 s52, 1\ns_cbranch_scc0 .Lbulk_opy\n%s\ns_branch .Lbulk_opub" % OST)
    a(".Lbulk_opy:\nbuffer_store_dwordx4 v[8:11], v5, s[12:15], s50 offen sc1")
    a(".Lbulk_opub:")
    if OQ:
        a("s_cmp_ge_u32 s48, 1\ns_cbranch_scc1 .Lbulk_oq")
        if OQ == 2: a("s_waitcnt vmcnt(0)")
        a("v_mov_b32 v12, 0\nv_mov_b32 v13, 2\nds_write_b32 v12, v13 offset:%d\n.Lbulk_oq:" % F_MODE)
    if oack: a("s_waitcnt vmcnt(0)")
    stamp(7)
    if stamps and fl: a("s_cmp_lt_u32 s2, %d\ns_cbranch_scc1 .Lbulk_red\ns_barrier\ns_branch .Lbulk_end\n.Lbulk_red:" % NRED)
    else: a("s_cmp_ge_u32 s2, %d\ns_cbranch_scc1 .Lbulk_end" % NRED)
    a("""
    v_and_b32 v31, 3, v0
    v_lshlrev_b32 v31, 4, v31
    s_lshr_b32 s49, s2, 3
    s_lshl_b32 s49, s49, 7
    s_and_b32 s50, s2, 1
    s_lshl_b32 s50, s50, 6
    s_add_u32 s49, s49, s50
    s_and_b32 s50, s2, 6
    s_lshl_b32 s50, s50, 1
    s_add_u32 s49, s49, s50
    buffer_load_dword v30, v31, s[16:19], s49 offen
    """)
    a("v_lshlrev_b32 v1, 4, v0\ns_lshl_b32 s50, s2, 14\ns_lshl_b32 s51, s48, 11\ns_add_u32 s50, s50, s51\ns_add_u32 s50, s50, %d" % WS_A)
    a("v_lshlrev_b32 v3, 3, v0\ns_lshl_b32 s51, s48, 5\nv_add_u32 v3, s51, v3")
    a("s_lshl_b32 s51, s2, 12\ns_lshl_b32 s52, s48, 9\ns_add_u32 s51, s51, s52\ns_add_u32 s51, s51, %d" % WS_B)
    a("v_mov_b32 v8, 0\nv_mov_b32 v9, 0\nv_mov_b32 v12, 0\nv_mov_b32 v13, 0\ns_mov_b64 s[44:45], -1\ns_mov_b64 s[46:47], -1\ns_mov_b32 s52, -1\ns_mov_b32 s53, 0")
    MS = (52, 44, 46)
    def aissue(k, X=""):
        R = 32 + 12 * k
        if AS & 1: X += " sc0"
        if stamps: stamp(11); a("s_add_u32 s59, s59, %d" % (1 << 20))
        a("s_or_b64 exec, s[52:53], 1\nbuffer_load_dwordx4 v[%d:%d], v1, s[12:15], s51 offen sc1" % (R, R + 3) + X)
        a("s_or_b64 exec, s[44:45], 1\nbuffer_load_dwordx4 v[%d:%d], v1, s[12:15], s50 offen sc1" % (R + 4, R + 7) + X)
        a("s_or_b64 exec, s[46:47], 1\nbuffer_load_dwordx4 v[%d:%d], v1, s[12:15], s50 offen offset:1024 sc1" % (R + 8, R + 11) + X)
    def acheck(k, w, br=True):
        for j in range(3):
            R, M, AC = 32 + 12 * k + 4 * j, MS[j], 12 if j == 0 else 8
            a("s_mov_b64 exec, s[%d:%d]\ns_waitcnt vmcnt(%d)" % (M, M + 1, w + 2 - j))
            a("v_cmp_eq_u32 vcc, s26, v%d\nv_cmp_eq_u32 s[42:43], s26, v%d\ns_and_b64 exec, vcc, s[42:43]" % (R + 1, R + 3))
            a("v_add_f32 v%d, v%d, v%d\nv_add_f32 v%d, v%d, v%d\ns_andn2_b64 s[%d:%d], s[%d:%d], exec" % (AC, AC, R, AC + 1, AC + 1, R + 2, M, M + 1, M, M + 1))
        if br: a("s_or_b64 s[40:41], s[44:45], s[46:47]\ns_or_b64 s[40:41], s[40:41], s[52:53]\ns_cbranch_scc0 .Lag_done")
    if FG:
        a("v_lshrrev_b32 v4, 3, v0\nv_lshlrev_b32 v4, 7, v4\nv_mov_b32 v5, 0\ns_lshl_b32 s62, s48, 9\ns_add_u32 s62, s62, %d" % WS_F)
        a("s_mov_b64 s[54:55], 0\ns_mov_b64 s[56:57], 0\ns_mov_b64 s[60:61], 0\ns_mov_b32 s27, %d" % SPIN)
        if FG == 2: a("s_barrier")
        stamp(8)
        RD = (60, 54, 56)
        a(".Lag_1:")
        a("s_cmp_eq_u32 s60, -1\ns_cbranch_scc1 .Lag_nf\ns_mov_b64 exec, 0xffffffff\nbuffer_load_dword v6, v4, s[12:15], s62 offen sc1")
        if FG == 1: a("ds_read_b32 v7, v5 offset:%d" % F_MODE)
        a(".Lag_nf:")
        if stamps: a("s_add_u32 s59, s59, 1")
        for j, (so, off) in enumerate(((51, 0), (50, 0), (50, 1024))):
            a("s_and_b64 exec, s[%d:%d], s[%d:%d]\ns_cbranch_scc0 .Lag_s%d" % (MS[j], MS[j] + 1, RD[j], RD[j] + 1, j))
            if stamps: stamp(11); a("s_add_u32 s59, s59, %d" % (1 << 20))
            a("buffer_load_dwordx4 v[%d:%d], v1, s[12:15], s%d offen offset:%d sc1\n.Lag_s%d:" % (32 + 4 * j, 35 + 4 * j, so, off, j))
        a("s_waitcnt vmcnt(0) lgkmcnt(0)")
        for j in range(3):
            R, M, AC = 32 + 4 * j, MS[j], 12 if j == 0 else 8
            a("s_and_b64 exec, s[%d:%d], s[%d:%d]" % (M, M + 1, RD[j], RD[j] + 1))
            a("v_cmp_eq_u32 vcc, s26, v%d\nv_cmp_eq_u32 s[42:43], s26, v%d\ns_and_b64 exec, vcc, s[42:43]" % (R + 1, R + 3))
            a("v_add_f32 v%d, v%d, v%d\nv_add_f32 v%d, v%d, v%d\ns_andn2_b64 s[%d:%d], s[%d:%d], exec" % (AC, AC, R, AC + 1, AC + 1, R + 2, M, M + 1, M, M + 1))
        a("s_or_b64 s[40:41], s[44:45], s[46:47]\ns_or_b64 s[40:41], s[40:41], s[52:53]\ns_cbranch_scc0 .Lag_done")
        a("s_mov_b64 exec, 0xffffffff\nv_cmp_eq_u32 vcc, s26, v6")
        if FG == 1: a("v_readfirstlane_b32 s40, v7\ns_cmp_ge_u32 s40, %d\ns_cselect_b32 s60, vcc_lo, 0" % FGO)
        else: a("s_mov_b32 s60, vcc_lo")
        for k, r in enumerate((54, 55, 56, 57)): a("s_bfe_i32 s%d, s60, 0x%x" % (r, 0x10000 | (8 * k)))
        a("s_sub_u32 s27, s27, 1\ns_cbranch_scc0 .Lag_1")
    else:
        if early:
            aissue(0); acheck(0, 0, False)
        a("s_barrier")
        stamp(8)
        a("s_mov_b32 s27, %d" % SPIN)
        if early: a("s_branch .Lag_0")
        a(".Lag_1:")
        aissue(0, " nt" if AN else ""); acheck(0, 0)
        a(".Lag_0:")
        if NS > 1:
            a("s_bcnt1_i32_b64 s40, s[44:45]\ns_bcnt1_i32_b64 s41, s[46:47]\ns_add_u32 s40, s40, s41\ns_cmp_le_u32 s40, %d\ns_cbranch_scc1 .Lag_2" % TH)
        a("s_sub_u32 s27, s27, 1\ns_cbranch_scc0 .Lag_1")
        if NS > 1:
            a("s_branch .Lag_fail\n.Lag_2:")
            for k in range(NS - 1): aissue(k)
            a(".Lag_3:")
            for k in range(NS):
                aissue((k + NS - 1) % NS)
                acheck(k, 3 * (NS - 1))
            a("s_sub_u32 s27, s27, 1\ns_cbranch_scc0 .Lag_3\n.Lag_fail:")
    if stamps: a("s_or_b32 s58, s58, 16")
    a(".Lag_done:\ns_mov_b64 exec, -1")
    stamp(9)
    for r in (8, 9, 12, 13): dpp("v_add_f32", r, r, r, "row_ror:4")
    redhi("v_add_f32", [(8, 10), (9, 11), (12, 14), (13, 15)])
    a("s_mov_b64 exec, 15\nds_write_b64 v3, v[8:9] offset:%d\nds_write_b64 v3, v[12:13] offset:%d\ns_mov_b64 exec, -1\ns_waitcnt lgkmcnt(0)" % (L_RED, L_REDB))
    a("s_barrier")
    a("s_cmp_lg_u32 s48, 0\ns_cbranch_scc1 .Lbulk_end")
    a("v_lshlrev_b32 v3, 3, v0\nds_read_b64 v[8:9], v3 offset:%d" % L_RED)
    a("v_lshlrev_b32 v14, 16, v30\nv_and_b32 v15, 0xffff0000, v30\ns_waitcnt lgkmcnt(0)")
    for ctl in ("row_ror:4", "row_ror:8"):
        for r in (8, 9): dpp("v_add_f32", r, r, r, ctl)
    a("v_mov_b32 v10, v8\nv_mov_b32 v11, v9\nv_permlane16_swap_b32 v8, v10\nv_permlane16_swap_b32 v9, v11\nv_add_f32 v8, v8, v10\nv_add_f32 v9, v9, v11")
    a("v_cvt_pk_bf16_f32 v8, v8, v9\nv_mov_b32 v12, v8\nv_permlane32_swap_b32 v8, v12")
    a("v_and_b32 v9, 0xffff0000, v8\nv_lshlrev_b32 v8, 16, v8\nv_add_f32 v8, v8, v14\nv_add_f32 v9, v9, v15")
    a("v_and_b32 v13, 0xffff0000, v12\nv_lshlrev_b32 v12, 16, v12")
    a("v_cvt_pk_bf16_f32 v8, v8, v9\nv_and_b32 v9, 0xffff0000, v8\nv_lshlrev_b32 v8, 16, v8\nv_add_f32 v8, v8, v12\nv_add_f32 v9, v9, v13")
    a("v_cvt_pk_bf16_f32 v8, v8, v9")
    a("s_mov_b64 exec, 15\nbuffer_store_dword v8, v31, s[20:23], s49 offen")
    a("s_cmp_lg_u32 s2, 0\ns_cbranch_scc1 .Lbulk_end")
    a("s_mov_b64 exec, 1\nv_mov_b32 v9, s26\nv_mov_b32 v1, 0\nbuffer_store_dword v9, v1, s[12:15], 0 offen")
    a(".Lbulk_end:")
    stamp(10)
    flush_stamps(range(1, 12))
    a("s_endpgm")

    a(".Laux:\ns_setprio %d" % (0 if abl & 4 else 3))
    W1 = 32
    W2 = 76
    XF = 8
    C = 13
    G = 100
    AOP = 24
    ACC = 116
    Z = 124
    ONE = 127
    SH = 2
    a("v_mov_b32 v%d, 0\nv_mov_b32 v%d, 0\nv_mov_b32 v%d, 0\nv_mov_b32 v%d, 1\nv_lshlrev_b32 v1, 2, v0\nv_and_b32 v3, 60, v1" % (Z, Z + 1, Z + 2, ONE))
    a("ds_write_b32 v3, v%d offset:%d\nds_write_b32 v3, v%d offset:%d" % (Z, L_FLAG, Z, L_XN + 1280))
    a("""
    s_cmp_lt_u32 s3, 3
    s_cbranch_scc1 .Laux_q
    s_and_b32 s52, s24, 3
    s_lshl_b32 s52, s52, 1
    s_sub_u32 s53, s3, 3
    s_add_u32 s52, s52, s53
    s_mul_i32 s48, s52, 80
    s_lshr_b32 s53, s24, 2
    s_mul_i32 s53, s53, 3
    s_add_u32 s53, s53, s25
    s_sub_u32 s54, s53, 3
    s_cmp_ge_u32 s25, 3
    s_cselect_b32 s53, s54, s53
    s_cselect_b32 s54, 98304, 0
    s_lshl_b32 s49, s53, 7
    s_movk_i32 s50, 3072
    s_mul_i32 s51, s52, 12288
    s_lshl_b32 s53, s53, 9
    s_add_u32 s51, s51, s53
    s_mov_b32 s53, s54
    s_add_u32 s51, s51, s54
    s_add_u32 s51, s51, %d
    s_add_u32 s6, s48, 80
    s_waitcnt lgkmcnt(0)
    s_cmp_eq_u32 s53, 0
    s_cselect_b32 s4, s76, s78
    s_cselect_b32 s5, s77, s79
    s_branch .Laux_p
    .Laux_q:
    s_mul_i32 s48, s25, %d
    s_add_u32 s6, s48, %d
    s_mul_i32 s52, s25, %d
    s_add_u32 s52, s52, %d
    s_add_u32 s53, s52, %d
    s_cmp_ge_u32 s25, 6
    s_cselect_b32 s48, s52, s48
    s_cselect_b32 s6, s53, s6
    s_mul_i32 s49, s24, 384
    s_lshl_b32 s53, s3, 7
    s_add_u32 s49, s49, s53
    s_movk_i32 s50, 12288
    s_mul_i32 s51, s24, 12288
    s_mul_i32 s52, s25, 1536
    s_add_u32 s51, s51, s52
    s_lshl_b32 s53, s3, 9
    s_add_u32 s51, s51, s53
    s_add_u32 s51, s51, %d
    s_waitcnt lgkmcnt(0)
    s_mov_b32 s4, s70
    s_mov_b32 s5, s71
    .Laux_p:
    s_mul_i32 s6, s6, s50
    s_mov_b32 s7, 0x00020000
    """ % (WS_GU, QA, QA, QB, 6 * QA - 6 * QB, QB, WS_Q))
    srd(16, 64, 1280)
    if GO: a("s_mov_b32 s94, s84\ns_mov_b32 s95, s85")
    if pd or GO:
        a("s_or_b32 s52, s2, s3\ns_cbranch_scc1 .Lnp")
        srd(28, 84, 256)
        a("v_mov_b32 v3, s88\nbuffer_store_dword v3, v%d, s[28:31], 0 offen sc1\ns_waitcnt vmcnt(0)\n.Lnp:" % Z)
    a("s_cmp_lt_u32 s3, 3\ns_cbranch_scc1 .Laux_s1\ns_cmp_ge_u32 s25, 6\ns_cbranch_scc1 .Laux_s1skip")
    a(".Laux_s1:")
    for j in range(5): a("buffer_load_dword v%d, v1, s[16:19], 0 offen offset:%d" % (XF + j, 256 * j))
    a("v_mul_lo_u32 v6, v4, s50\nv_lshl_add_u32 v6, v5, 4, v6\ns_mul_i32 s52, s48, s50\ns_add_u32 s52, s52, s49\ns_lshl_b32 s50, s50, 3")
    if abl & 2: a("s_mov_b32 s6, 0")
    if abl & 64: a("s_cmp_lt_u32 s3, 3\ns_cselect_b32 s6, s6, 0")
    A1 = min(A1, NT1); A2 = min(A2, NT1 - A1)
    def w1load(t):
        a("buffer_load_dwordx4 v[%d:%d], v6, s[4:7], s52 offen%s" % (W1 + 4 * t, W1 + 4 * t + 3, NT))
        if t < NT1 - 1: a("s_add_u32 s52, s52, s50")
    if GUD: a("s_cmp_ge_u32 s3, 3\ns_cbranch_scc1 .Laux_s1skip")
    for t in range(A1): w1load(t)
    a(".Laux_s1skip:\n.Ltouch_a:\n.Laux2:")
    a("s_barrier")
    a("s_load_dword s26, s[86:87], 0")
    if abl & 32: a("s_endpgm")
    if AE == 1: a("s_endpgm")
    srd(8, 72, 0 if abl & 16 else 7864320); srd(12, 86, 268435456); srd(20, 80, 0 if abl & 8 else 1966080)
    if tlb: srd(44, 68, 50331648); srd(28, 82, 1280)
    if DG == 6: srd(44, 66, 50331648)
    if abl & 128: a("s_cmp_eq_u32 s3, 0\ns_cselect_b32 s44, s76, s78\ns_cselect_b32 s45, s77, s79\ns_cmp_eq_u32 s3, 2\ns_cselect_b32 s44, s80, s44\ns_cselect_b32 s45, s81, s45\ns_mov_b32 s46, 1966080\ns_mov_b32 s47, 0x00020000")
    zero_stamps()
    masks()
    if CL & 2: a("s_mov_b32 s63, %d" % WS_ST)
    a("s_lshl_b32 s55, s24, 1\ns_add_u32 s55, s55, s25\ns_sub_u32 s55, s55, 6")
    a("s_cmp_lt_u32 s3, 3\ns_cbranch_scc1 .Laux_ln\ns_cmp_ge_u32 s25, 6\ns_cbranch_scc1 .Laux_pub_skip")
    a(".Laux_ln:")
    if GUD: a("s_cmp_lt_u32 s3, 3\ns_cbranch_scc1 .Laux_l1\ns_waitcnt vmcnt(0)\ns_branch .Laux_l2\n.Laux_l1:")
    if PQ: a("v_lshlrev_b32 v7, 6, v0\ns_mov_b64 exec, 0xff\nbuffer_load_dword v%d, v7, s[12:15], s51 offen nt\ns_mov_b64 exec, -1" % (G + 12))
    a("s_waitcnt vmcnt(%d)" % (A1 + (1 if PQ else 0)))
    for t in range(A1, A1 + A2): w1load(t)
    if GUD: a(".Laux_l2:")
    stamp(1)
    U = G
    for j in range(5): a("v_lshlrev_b32 v%d, 16, v%d\nv_and_b32 v%d, 0xffff0000, v%d" % (U + 2 * j, XF + j, U + 2 * j + 1, XF + j))
    a("v_add_f32 v13, v%d, v%d" % (U, U + 1))
    for j in range(2, 10): a("v_add_f32 v13, v13, v%d" % (U + j))
    redall("v_add_f32", [(13, 14)])
    a("v_mul_f32 v13, 0x3acccccd, v13")
    a("v_sub_f32 v15, v%d, v13\nv_mul_f32 v14, v15, v15" % U)
    for j in range(1, 10): a("v_sub_f32 v15, v%d, v13\nv_fma_f32 v14, v15, v15, v14" % (U + j))
    redall("v_add_f32", [(14, 15)])
    a("v_mul_f32 v14, 0x3acccccd, v14")
    rbf(14, 14); a("v_add_f32 v14, 0x3727c5ac, v14"); rbf(14, 14)
    a("v_sqrt_f32 v14, v14"); rbf(14, 14); a("v_rcp_f32 v14, v14")
    rbf(13, 13)
    for j in range(10): a("v_sub_f32 v%d, v%d, v13" % (U + j, U + j))
    for j in range(5):
        a("v_cvt_pk_bf16_f32 v%d, v%d, v%d" % (XF + j, U + 2 * j, U + 2 * j + 1))
        a("v_lshlrev_b32 v%d, 16, v%d\nv_and_b32 v%d, 0xffff0000, v%d" % (U + 2 * j, XF + j, U + 2 * j + 1, XF + j))
        a("v_mul_f32 v%d, v%d, v14\nv_mul_f32 v%d, v%d, v14" % (U + 2 * j, U + 2 * j, U + 2 * j + 1, U + 2 * j + 1))
        a("v_cvt_pk_bf16_f32 v%d, v%d, v%d" % (XF + j, U + 2 * j, U + 2 * j + 1))
        a("ds_write_b32 v1, v%d offset:%d" % (XF + j, L_XN + 256 * j))
    a("v_add_lshl_u32 v3, v4, s48, 1")
    for t in range(NT1): a("ds_read_u16 v%d, v3 offset:%d" % (C + t, L_XN + 16 * t))
    nonce()
    stamp(2)
    if GUD:
        a("s_cmp_lt_u32 s3, 3\ns_cbranch_scc1 .Laux_l3")
        if GUD > 1: lwait(F_PROG, str(GUD), Z, 3)
        for t in range(A1 + A2):
            if t >= GA: a("s_waitcnt vmcnt(%d)" % (GA - 1))
            w1load(t)
        a(".Laux_l3:")
    iss = A1 + A2
    while iss < min(AT, NT1): w1load(iss); iss += 1
    for t in range(NT1):
        op = AOP + 4 * (t & 1)
        operand16(op, C + t, SH)
        a("s_waitcnt vmcnt(%d)" % (iss - 1 - t + (1 if PQ == 1 or (PQ and t < NT1 - 1) else 0)))
        while iss < min(t + 1 + AT, NT1): w1load(iss); iss += 1
        mfma(ACC, op, W1 + 4 * t, t == 0)
    a("v_lshlrev_b32 v1, 4, v0")
    fold1(ACC, 36)
    a("v_mov_b32 v37, s26\nv_mov_b32 v39, s26\nv_permlane32_swap_b32 v36, v38")
    if AE == 2: a("s_endpgm")
    a("s_mov_b32 exec_hi, 0\nbuffer_store_dwordx4 v[36:39], v1, s[12:15], s51 offen")
    a("s_mov_b64 exec, -1")
    stamp(3)
    a("s_branch .Laux_pub_done\n.Laux_pub_skip:")
    nonce()
    a(".Laux_pub_done:")
    if AE in (2, 3): a("s_endpgm")
    if AE == 7: lwait(F_WOGO, "8", Z, 3); a("s_endpgm")
    if tlb:
        a("s_cmp_lg_u32 s3, 3\ns_cbranch_scc1 .Laux_notlb\ns_mov_b64 exec, 1")
        if tlb & 1:
            a("s_mul_i32 s52, s24, 1572864\ns_mul_i32 s53, s25, 196608\ns_add_u32 s52, s52, s53\ns_add_u32 s53, s52, 196480")
            a("buffer_load_dword v44, v%d, s[44:47], s52 offen\nbuffer_load_dword v45, v%d, s[44:47], s53 offen" % (Z, Z))
        if tlb & 2:
            a("s_mul_i32 s52, s24, 192\ns_mul_i32 s53, s25, 24\ns_add_u32 s52, s52, s53\ns_mul_i32 s52, s52, 1280\ns_add_u32 s53, s52, 30592")
            a("buffer_load_dword v46, v%d, s[8:11], s52 offen\nbuffer_load_dword v47, v%d, s[8:11], s53 offen" % (Z, Z))
        if tlb & 4:
            a("s_mov_b32 s52, %d\nbuffer_load_dword v48, v%d, s[12:15], s52 offen" % (WS_A + 0x180000, Z))
        if tlb & 8:
            a("buffer_load_dword v49, v%d, s[28:31], 0 offen" % Z)
        a("s_mov_b64 exec, -1\n.Laux_notlb:")
    def stage2_loads(srdb, voffs, step):
        for t in range(3):
            for ln in range(2):
                r = W2 + 8 * t + 4 * ln
                a("buffer_load_dwordx4 v[%d:%d], v%d, s[%d:%d], s52 offen offset:%d%s" % (r, r + 3, voffs[t], srdb, srdb + 3, 128 * ln, NT))
            if t < 2 and step: a("s_add_u32 s52, s52, %d" % step)
    def wdl():
        a("s_cmp_lt_u32 s25, 6\ns_cbranch_scc1 .Laux_nowdl")
        a("s_mul_i32 s56, s55, 24")
        for t in range(3):
            r = 16 + t
            a("v_add_u32 v3, s56, v4\nv_and_b32 v%d, 0xffffffc1, v3\nv_bfe_u32 v6, v3, 1, 3\nv_lshl_or_b32 v%d, v6, 3, v%d\nv_bfe_u32 v6, v3, 4, 2\nv_lshl_or_b32 v%d, v6, 1, v%d" % (r, r, r, r, r))
            a("v_mul_u32_u24 v%d, 1280, v%d\nv_lshl_add_u32 v%d, v5, 4, v%d" % (r, r, r, r))
            if t < 2: a("s_add_u32 s56, s56, 8")
        a("s_lshl_b32 s52, s3, 8")
        if WDL: lwait(F_PROG, str(WDL), Z, 3)
        stage2_loads(20, [16, 17, 18], 0)
        a(".Laux_nowdl:")
    if not WDL: wdl()
    a("v_lshrrev_b32 v3, 2, v0\nv_and_b32 v6, 3, v0\nv_lshlrev_b32 v6, 4, v6\nv_lshl_add_u32 v19, v3, 12, v6\nv_lshl_add_u32 v20, v3, 14, v6\nv_lshlrev_b32 v12, 1, v4")
    a("v_and_b32 v13, 15, v0\nv_lshrrev_b32 v14, 4, v0")
    a("s_cmp_ge_u32 s3, 3\ns_cbranch_scc1 .Laux_qdone")
    a("v_and_b32 v1, 31, v0\nv_lshlrev_b32 v1, 4, v1\nv_lshrrev_b32 v3, 5, v0\nv_mul_u32_u24 v3, 1536, v3\nv_add_u32 v1, v1, v3")
    a("s_mul_i32 s52, s24, 12288\ns_lshl_b32 s53, s3, 9\ns_add_u32 s52, s52, s53\ns_add_u32 s52, s52, %d\ns_add_u32 s53, s52, 6144" % WS_Q)
    a("v_lshlrev_b32 v6, 4, v5\nv_bfe_u32 v3, v0, 4, 1\nv_lshl_add_u32 v6, v3, 3, v6\nv_bfe_u32 v3, v0, 3, 1\nv_lshl_add_u32 v6, v3, 2, v6\ns_lshl_b32 s54, s3, 7\nv_add_u32 v6, s54, v6")
    lwait(F_PROG, str(G1), Z, 3)
    poll(["buffer_load_dwordx4 v[%d:%d], v1, s[12:15], s%d offen offset:%d sc1" % (G + 4 * i, G + 4 * i + 3, 52 + i // 2, 3072 * (i & 1)) for i in range(4)], [G + 2 * i + 1 for i in range(8)], 0, NXQ)
    for e in (0, 2): a("v_add_f32 v%d, v%d, v%d\nv_add_f32 v%d, v%d, v%d" % (G + e, G + e, G + 4 + e, G + 8 + e, G + 8 + e, G + 12 + e))
    for e in (0, 2): a("v_add_f32 v%d, v%d, v%d" % (G + e, G + e, G + 8 + e))
    redsw("v_add_f32", [(G, G + 1), (G + 2, G + 3)], ("v_permlane32_swap_b32",))
    a("v_cvt_pk_bf16_f32 v%d, v%d, v%d\nds_write_b32 v6, v%d offset:%d" % (G, G, G + 2, G, L_Q))
    a("s_waitcnt lgkmcnt(0)\ns_mov_b64 exec, 1\nds_add_u32 v%d, v%d offset:%d\ns_mov_b64 exec, -1" % (Z, ONE, F_QRDY))
    stamp(4)
    a(".Laux_qdone:")
    if AE == 4: a("s_endpgm")
    if WDL: wdl()
    a("s_cmp_lt_u32 s25, 6\ns_cbranch_scc1 .Laux_wddone")
    a("s_cmp_lg_u32 s3, 3\ns_cbranch_scc1 .Laux_hwait")
    a("v_mul_u32_u24 v1, 12288, v14\nv_lshl_add_u32 v1, v13, 4, v1\ns_mul_i32 s52, s55, 192\ns_add_u32 s52, s52, %d\ns_add_u32 s53, s52, 49152\ns_add_u32 s54, s52, 98304\ns_add_u32 s57, s52, 147456\nv_lshlrev_b32 v6, 2, v13" % WS_GU)
    lwait(F_PROG, str(G3), Z, 3)
    a("s_mov_b32 exec_lo, %s\ns_mov_b32 exec_hi, %s" % (M12, M12))
    poll(["buffer_load_dwordx4 v[%d:%d], v1, s[12:15], s%d offen sc1" % (G + 4 * i, G + 4 * i + 3, [52, 53, 54, 57][i]) for i in range(4)], [G + 2 * i + 1 for i in range(8)], 1)
    for e in (0, 2): a("v_add_f32 v%d, v%d, v%d\nv_add_f32 v%d, v%d, v%d" % (G + e, G + e, G + 4 + e, G + 8 + e, G + 8 + e, G + 12 + e))
    redrows("v_add_f32", [(G, G + 1), (G + 2, G + 3), (G + 8, G + 9), (G + 10, G + 11)])
    for r in (G, G + 2, G + 8, G + 10): rbf(r, r)
    for e in (0, 2):
        g, u = G + e, G + 8 + e
        a("v_mul_f32 v%d, 0xbfb8aa3b, v%d\nv_exp_f32 v%d, v%d\nv_add_f32 v%d, 1.0, v%d\nv_rcp_f32 v%d, v%d" % (g, g, g, g, g, g, g, g))
        rbf(g, g)
        a("v_mul_f32 v%d, v%d, v%d" % (g, g, u))
    a("v_cvt_pk_bf16_f32 v%d, v%d, v%d\nds_write_b32 v6, v%d offset:%d" % (G, G, G + 2, G, L_H))
    a("s_waitcnt lgkmcnt(0)\ns_mov_b64 exec, 1\nds_write_b32 v%d, v%d offset:%d\ns_mov_b64 exec, -1" % (Z, ONE, F_HRDY))
    a(".Laux_hwait:")
    def stage2(R, f32=False):
        for t in range(3):
            op = AOP + 4 * t
            if f32: operand(op, G + t, 22, G + t)
            else: operand16(op, G + t, SH)
            mfma(ACC, op, W2 + 8 * t, t == 0)
            mfma(ACC + 4, op, W2 + 8 * t + 4, t == 0)
        if ST2 and f32: a("s_memtime s[94:95]")
        for r in range(4): a("v_permlane32_swap_b32 v%d, v%d" % (ACC + r, ACC + 4 + r))
        X, Y = ACC, ACC + 4
        dpp("v_add_f32", R, Y + 0, X + 0, "row_ror:8", "0x3")
        dpp("v_add_f32", R + 2, Y + 1, X + 1, "row_ror:8", "0x3")
        dpp("v_add_f32", R, X + 2, Y + 2, "row_ror:8", "0xc")
        dpp("v_add_f32", R + 2, X + 3, Y + 3, "row_ror:8", "0xc")
    BST = "buffer_store_dwordx4 v[40:43], v19, s[12:15], s56 offen sc1"
    a("s_lshl_b32 s56, s3, 16\ns_lshl_b32 s53, s55, 6\ns_add_u32 s56, s56, s53\ns_add_u32 s56, s56, %d\nv_mov_b32 v41, s26\nv_mov_b32 v43, s26" % WS_B)
    lwait(F_HRDY, "1", Z, 3, ["ds_read_u16 v%d, v12 offset:%d" % (G + t, L_H + 16 * t) for t in range(3)])
    a("s_waitcnt vmcnt(0)")
    stage2(40)
    if not bdef: a(BST)
    stamp(5)
    a(".Laux_wddone:")
    if AE == 5: a("s_endpgm")
    a("s_cmp_lg_u32 s3, 4\ns_cbranch_scc1 .Laux_s2")
    a("v_lshlrev_b32 v1, 4, v0\nv_lshlrev_b32 v6, 3, v0\ns_lshl_b32 s52, s24, 10\ns_add_u32 s52, s52, %d\ns_lshl_b32 s53, s25, 7\ns_add_u32 s53, s53, s52\ns_getreg_b32 s57, hwreg(HW_REG_XCC_ID, 0, 4)\nv_mov_b32 v%d, s57\nv_mov_b32 v%d, s26" % (WS_ST, G + 6, G + 7))
    if PQ & 4: lwait(F_STC, "1", Z, 3); a("s_mov_b64 exec, 0xff\nbuffer_load_dwordx4 v[%d:%d], v1, s[12:15], s53 offen nt\ns_mov_b64 exec, -1" % (G + 8, G + 11))
    lwait(F_STC, "8", Z, 3, ["ds_read_b64 v[%d:%d], v6 offset:%d" % (G + 4, G + 5, L_WST)])
    a("s_mov_b64 exec, 0xff\nbuffer_store_dwordx4 v[%d:%d], v1, s[12:15], s53 offen" % (G + 4, G + 7))
    if CL & 2: a("s_mov_b32 s63, s53")
    a("s_mov_b64 exec, -1")
    stamp(4)
    lwait(F_PROG, str(G2), Z, 3)
    stamp(6)
    poll(["buffer_load_dwordx4 v[%d:%d], v1, s[12:15], s52 offen sc1" % (G, G + 3)], [G + 3], 3, NXQ)
    a("v_cmp_ne_u32 s[40:41], s57, v%d\nv_mov_b32 v21, 1\ns_cmp_eq_u64 s[40:41], 0\ns_cbranch_scc1 .Laux_same\nbuffer_wbl2 sc1\nv_mov_b32 v21, 2\ns_waitcnt vmcnt(0)\n.Laux_same:" % (G + 2))
    a("v_mov_b32 v16, v%d" % G)
    redall("v_max_f32", [(16, 18)])
    a("v_sub_f32 v17, v%d, v16\nv_mul_f32 v17, %s, v17\nv_exp_f32 v17, v17\nv_mul_f32 v17, v17, v%d" % (G, LOG2E, G + 1))
    redall("v_add_f32", [(17, 18)])
    a("v_rcp_f32 v17, v17\ns_mov_b64 exec, 1\nds_write_b64 v%d, v[16:17] offset:%d\ns_waitcnt lgkmcnt(0)\nds_write_b32 v%d, v21 offset:%d\ns_mov_b64 exec, -1" % (Z, L_ST, Z, F_STRDY))
    a(".Laux_s2:")
    if AE == 6: a("s_endpgm")
    stamp(7)
    a("v_mul_u32_u24 v7, 3840, v4\nv_lshl_add_u32 v7, v5, 4, v7")
    a("s_mul_i32 s52, s24, 192\ns_mul_i32 s53, s25, 24\ns_add_u32 s52, s52, s53\ns_mul_i32 s52, s52, 1280\ns_lshl_b32 s53, s3, 8\ns_add_u32 s52, s52, s53")
    a("v_lshlrev_b32 v17, 4, v0\ns_lshl_b32 s54, s24, 13\ns_lshl_b32 s53, s25, %d\ns_add_u32 s54, s54, s53\ns_add_u32 s54, s54, %d" % (7 if OD else 10, WS_O))
    if OD == 1: a("v_lshlrev_b32 v18, 10, v5\nv_lshl_add_u32 v18, v4, 4, v18")
    if OD == 2: a("v_lshlrev_b32 v18, 10, v4\nv_lshl_add_u32 v18, v5, 4, v18\nv_lshlrev_b32 v23, 2, v4\nv_lshl_add_u32 v23, v5, 5, v23")
    if PT:
        PL = "buffer_load_dwordx4 v[%d:%d], v%d, s[12:15], s54 offen" % (G + 4, G + 7, 18 if OD else 17)
        a("s_cmp_lg_u32 s3, %d\ns_cbranch_scc1 .Laux_npt\n%s\n.Laux_npt:" % (PT % 10, [PL + " sc1", PL + " nt", PL + " nt\ns_waitcnt vmcnt(0)\n" + PL + " sc1"][PT // 10]))
    if DG:
        a("s_cmp_lg_u32 s3, 1\ns_cbranch_scc1 .Laux_ndg\ns_lshl_b32 s28, s2, 13\ns_add_u32 s28, s28, 0x400000")
        if DG == 6: a("s_mul_i32 s28, s24, 1572864\ns_mul_i32 s29, s25, 196608\ns_add_u32 s28, s28, s29\ns_add_u32 s28, s28, 98304")
        if DG == 5: a("s_add_u32 s30, s12, s28\ns_addc_u32 s31, s13, 0")
        for k in range(DN):
            if DG == 5:
                for j in range(8): a("s_load_dword s29, s[30:31], %d" % (1024 * k + 128 * j))
                a("s_waitcnt lgkmcnt(0)")
            else:
                a("buffer_load_dwordx4 v[%d:%d], v17, s[%s], s28 offen%s\ns_waitcnt vmcnt(0)" % (G + 4, G + 7, "44:47" if DG == 6 else "12:15", {1: " sc1", 2: "", 3: " nt", 4: " sc1", 6: " nt"}[DG]))
                if DG != 4: a("s_add_u32 s28, s28, 1024")
        stamp(6)
        a(".Laux_ndg:")
    if XD:
        a("s_lshl_b32 s28, s2, 13\ns_lshl_b32 s29, s3, 10\ns_add_u32 s28, s28, s29\ns_add_u32 s28, s28, 0x400000")
        for k in range(XD): a("buffer_store_dwordx4 v[36:39], v17, s[12:15], s28 offen\ns_add_u32 s28, s28, 0x200000")
    a("v_mov_b32 v9, s26\nv_mov_b32 v11, s26\nv_mov_b32 v22, 0xffff\nv_lshlrev_b32 v22, v%d, v22" % SH)
    if aslot == 0: a("s_lshl_b32 s60, s3, 18\ns_lshl_b32 s53, s24, 9\ns_add_u32 s60, s60, s53\ns_lshl_b32 s53, s25, 6\ns_add_u32 s60, s60, s53\ns_add_u32 s60, s60, %d" % WS_A)
    if aslot == 1: a("s_lshl_b32 s60, s3, 18\ns_and_b32 s53, s24, 15\ns_lshl_b32 s53, s53, 10\ns_add_u32 s60, s60, s53\ns_lshl_b32 s53, s25, 7\ns_add_u32 s60, s60, s53\ns_lshr_b32 s53, s24, 4\ns_lshl_b32 s53, s53, 6\ns_add_u32 s60, s60, s53\ns_add_u32 s60, s60, %d" % WS_A)
    if aslot == 2: a("s_lshl_b32 s60, s3, 18\ns_lshl_b32 s53, s2, 6\ns_add_u32 s60, s60, s53\ns_add_u32 s60, s60, %d" % WS_A)
    if FG: a("s_lshl_b32 s28, s24, 7\ns_add_u32 s28, s28, %d" % WS_F)
    cw = [int(c) for c in "%05d" % CW]
    a("s_lshl_b32 s53, s3, 2\ns_lshr_b32 s61, 0x%x, s53\ns_and_b32 s61, s61, 15" % sum(c << (4 * i) for i, c in enumerate(cw)))
    if GO:
        a("s_cmp_lg_u32 s3, 1\ns_cbranch_scc1 .Lgo_done\ns_load_dword s92, s[94:95], 0\ns_mov_b32 s27, 100000\nv_mov_b32 v16, 8")
        a(".Lgo_l:\ns_memrealtime s[90:91]\nds_read_b32 v3, v%d offset:%d\ns_waitcnt lgkmcnt(0)\nv_readfirstlane_b32 s40, v3\ns_cmp_ge_u32 s40, 8\ns_cbranch_scc1 .Lgo_done" % (Z, F_WOGO))
        a("s_sub_u32 s27, s27, 1\ns_cbranch_scc1 .Lgo_done\ns_sub_u32 s90, s90, s92\ns_cmp_lt_i32 s90, %d\ns_cbranch_scc1 .Lgo_l" % GO)
        a("s_mov_b64 exec, 1\nds_write_b32 v%d, v%d offset:%d" % (Z, ONE, F_MODE))
        if GW: a("ds_add_u32 v%d, v16 offset:%d" % (Z, F_WOGO))
        a("s_mov_b64 exec, -1\n.Lgo_done:")
    if PW <= 24:
        lwait(F_WOGO, "s61", Z, 3)
        def dummy():
            a("s_cmp_ge_u32 s3, 3\ns_cbranch_scc1 .Lnodum\ns_cmp_lt_u32 s3, %d\ns_cbranch_scc1 .Lnodum\ns_mul_i32 s28, s2, 7680\ns_add_u32 s29, s28, 4096" % (0 if abl & 64 else 2))
            for t in range(8): a("buffer_load_dwordx4 v[%d:%d], v17, s[44:47], s%d offen offset:%d%s" % (44 + 4 * t, 47 + 4 * t, 28 + t // 4, 1024 * (t & 3), NT))
            if abl & 512: a("s_waitcnt vmcnt(2)")
            a(".Lnodum:")
        if abl & 128 and abl & 256: dummy()
        stage2_loads(8, [7, 7, 7], 1280)
        if abl & 128 and not abl & 256: dummy()
    stamp(8)
    a("s_barrier")
    if PW > 24: stage2_loads(8, [7, 7, 7], 1280)
    if OQ: lwait(F_MODE, "2", Z, 3)
    if OW: a("s_waitcnt vmcnt(0)")
    stamp(9)
    GOI = G + 8 if CL & 4 else G
    poll(["buffer_load_dwordx4 v[%d:%d], v%d, s[12:15], s54 offen sc1" % (GOI, GOI + 3, 18 if OD else 17)], [GOI + 3], 5)
    if OD == 2:
        for t in range(3): a("ds_bpermute_b32 v%d, v23, v%d" % (G + t, G + t))
    stamp(10)
    if ST2: a("s_memtime s[90:91]")
    if FG: a("s_cmp_lg_u32 s3, %d\ns_cbranch_scc1 .Laux_nfl\ns_mov_b64 exec, 1\nbuffer_store_dword v9, v%d, s[12:15], s28 offen sc1\ns_mov_b64 exec, -1\n.Laux_nfl:" % (FW, Z))
    if bdef: a("s_cmp_lt_u32 s25, 6\ns_cbranch_scc1 .Laux_nob\n%s\n.Laux_nob:" % BST)
    if OD == 2: a("s_waitcnt lgkmcnt(0)")
    assert not (OD == 2 and CL & 4)
    for i, ctl in enumerate(("quad_perm:[1,0,3,2]", "quad_perm:[2,3,0,1]", "row_half_mirror")):
        for t in range(3): dpp("v_add_f32", G + t, (G if i else GOI) + t, (G if i else GOI) + t, ctl)
    if ST2: a("s_memtime s[92:93]")
    stage2(8, True)
    a("buffer_store_dwordx4 v[8:11], v20, s[12:15], s60 offen sc1" + (" sc0" if AS & 2 else ""))
    if ST2:
        a("s_memtime s[96:97]\ns_waitcnt lgkmcnt(0)")
        for k, r in ((1, 92), (2, 94), (3, 96)): a("s_sub_u32 s%d, s%d, s90\ns_add_u32 s%d, s%d, s88" % (62 + 2 * k, r, 62 + 2 * k, 62 + 2 * k))
    stamp(11)
    if CL & 4: a("s_cmp_lg_u32 s3, 2\ns_cbranch_scc1 .Laux_nco\nbuffer_store_dwordx4 v[%d:%d], v17, s[12:15], s54 offen sc1\n.Laux_nco:" % (GOI, GOI + 3))
    if CL & 2: a("s_cmp_lg_u32 s3, 4\ns_cbranch_scc1 .Laux_ncs\ns_mov_b64 exec, 0xff\nbuffer_store_dwordx4 v[%d:%d], v17, s[12:15], s63 offen sc1\ns_mov_b64 exec, -1\n.Laux_ncs:" % (G + 4, G + 7))
    if gue: a("s_cmp_lt_u32 s3, 3\ns_cbranch_scc1 %s\ns_cmp_ge_u32 s25, 6\ns_cbranch_scc1 .Laux_nogu\n.Laux_gu:\ns_mov_b32 exec_hi, 0\nbuffer_store_dwordx4 v[36:39], v17, s[12:15], s51 offen sc1\n.Laux_nogu:" % (".Laux_gu" if CL & 1 else ".Laux_nogu"))
    if ack == 1: a("s_waitcnt vmcnt(0)"); stamp(12)
    if FG == 1:
        a("s_mov_b64 exec, 1\nds_add_u32 v%d, v%d offset:%d\ns_waitcnt lgkmcnt(0)" % (Z, ONE, F_MODE))
        if stamps: a("s_cmp_lt_u32 s2, %d\ns_cbranch_scc1 .Laux_nb\ns_barrier\n.Laux_nb:\ns_waitcnt vmcnt(0)" % NRED)
    elif stamps and fl: a("s_barrier\ns_waitcnt vmcnt(0)")
    else: a("s_cmp_ge_u32 s2, %d\ns_cbranch_scc1 .Laux_end\ns_barrier" % NRED)
    if ack == 2: stamp(12)
    a(".Laux_end:")
    flush_stamps(range(1, 13))
    a(".Lend:\ns_endpgm")
    i0, i1 = a.l.index(".Lbulk2:"), a.l.index(".Laux:")
    a.l = a.l[:i0] + a.l[i1:] + a.l[i0:i1]
    base = a.l
    def build(np_):
        l = list(base)
        tb, ta = [], []
        for k in range(np_):
            wv = 5 + k if k < 8 else 12 - k
            (tb if k < 8 else ta).extend(["    s_cmp_eq_u32 s3, %d" % wv, "    s_cbranch_scc1 .Lpad_%d" % k])
        i = l.index(".Ltouch_b:"); l[i:i + 1] = tb
        i = l.index(".Ltouch_a:"); l[i:i + 1] = ta
        l += [".Lpad_%d:" % k for k in range(np_)]
        l, n = hazard.fix(l)
        return l[:len(l) - np_]
    np_ = 0
    while True:
        l = build(np_)
        if not warm: break
        l, k = pads.add(l, [".Lbulk2"] * 8 + [".Laux2"] * 5, WIN)
        if k == np_: break
        assert k > np_
        np_ = k
    a.l, n = hazard.fix(l)
    assert n == 0
    return a.text(256, 832, LDS_BYTES, 128)

if __name__ == "__main__":
    out = sys.argv[1]
    kw = dict(x.split("=") for x in sys.argv[2:])
    kw = {k: int(v) for k, v in kw.items()}
    open(out, "w").write(gen(**kw))
```

```python
import sys
from asmlib import *
import hazard, pads

WS_F = 0xD0000
WS_Q, WS_GU, WS_ST, WS_O, WS_B, WS_A = 0x10000, 0x80000, 0xC0000, 0x100000, 0x180000, 0x200000
L_Q, L_ST, L_FLAG, L_PART, L_RED, L_REDB = 0, 384, 448, 512, 8704, 8960
L_XN, L_H, L_WST = 9216, 10560, 10624
F_PROG, F_QRDY, F_STRDY, F_WOGO, F_HRDY, F_STC, F_MODE = [L_FLAG + 4 * i for i in range(7)]
LDS_BYTES = 11136
SPIN = 40000
LOG2E = "0x3fb8aa3b"
SCALE = "0x3d93cd3a"
M12 = "0x0fff0fff"

def gen(T=3, P1=24, PW=24, CW=88888, G1=12, G3=16, G2=36, stamps=0, NRED=80, SLP=0, dbgst=0, pol=0, QA=88, QB=56, TT=48, TTT=24, nodep=0, ack=0, pre=0, abl=0, NS=4, TH=32, NXQ=24, NXR=3, gue=1, early=0, bdef=1, aslot=0, warm=1, WIN=1280, tlb=0, rlo=0, pd=0, pa=0, lag=9999, pk=0, TP=0, SB=99, SBM=0, SBN=1, WA=0, WN=30, pat=0, A1=99, A2=0, AT=99, GUD=0, WDL=0, T0N=0, GA=99, QPL=2, SSP=0, Q4=0, Q1=0, TM=0, TM0=6, TM1=48, AE=0, GO=0, GN=38, GW=1, GT=99, oack=0, OD=0, OS=0, OQ=0, OW=0, PT=0, DG=0, DN=6, PQ=0, AN=0, XD=0, CL=0, XT=0, XI=1, ST2=0, AS=0, fl=1, FG=0, FW=1, FGO=5, AP=0, RP=0, RB=0, HY=0, RM=0):
    a = Asm()
    NT = [" nt", "", " sc1 nt", " sc0 sc1 nt", " sc1", " sc0 sc1", " sc0 nt"][pol]
    assert 6 * QA + 2 * QB == 640 and QA % 8 == 0 and QB % 8 == 0
    NT1 = max(QA, QB, 80) // 8
    def stamp(k):
        if stamps: a("s_memrealtime s[%d:%d]" % (64 + 2 * k - 2, 64 + 2 * k - 1))
    def flush_stamps(ks):
        if dbgst >= 2 and len(ks) == 11:
            a("s_cmp_lg_u32 s3, 5\ns_cbranch_scc1 .Lend\ns_add_u32 s88, s88, %d\ns_mov_b32 s9, 100000" % dbgst)
            if pre == 1: a("s_waitcnt vmcnt(0)\nbuffer_wbl2 sc1\ns_waitcnt vmcnt(0)")
            if pre == 2: a("s_cmp_lg_u32 s2, 0\ns_cbranch_scc1 .Lend")
            a(".Lsp:\ns_memrealtime s[6:7]\ns_waitcnt lgkmcnt(0)\ns_sub_u32 s9, s9, 1\ns_cbranch_scc1 .Lend\ns_sub_u32 s7, s6, s88\ns_cmp_lt_i32 s7, 0\ns_cbranch_scc1 .Lsp")
        if dbgst == 1 and len(ks) == 11:
            a("s_cmp_lg_u32 s3, 5\ns_cbranch_scc1 .Lend")
            a("s_memrealtime s[90:91]\ns_memtime s[92:93]\ns_mov_b32 s40, s84\ns_mov_b32 s41, s85\ns_mov_b32 s42, 256\ns_mov_b32 s43, 0x00020000\ns_waitcnt lgkmcnt(0)\ns_mov_b64 exec, 1\nv_mov_b32 v2, 0\ns_sub_u32 s92, s92, s94\ns_sub_u32 s93, s90, s88\ns_not_b32 s88, s88\nv_mov_b32 v3, s88\nv_mov_b32 v4, s90\nv_mov_b32 v5, s92\nv_mov_b32 v6, s93")
            a("buffer_atomic_umax v3, v2, s[40:43], 0 offen sc1\nbuffer_atomic_umax v4, v2, s[40:43], 0 offen offset:4 sc1\nbuffer_atomic_umax v5, v2, s[40:43], 0 offen offset:8 sc1\nbuffer_atomic_umax v6, v2, s[40:43], 0 offen offset:12 sc1")
        if not stamps: return
        a("s_waitcnt lgkmcnt(0)\ns_mov_b64 exec, 1\nv_mov_b32 v2, 0\ns_lshl_b32 s40, s2, 10\ns_lshl_b32 s41, s3, 6\ns_add_u32 s40, s40, s41\ns_add_u32 s40, s40, %d" % STAMP_OFF)
        if fl:
            a("s_mov_b64 exec, 0xffff\nv_mov_b32 v3, 0\nv_lshlrev_b32 v2, 2, v0")
            for k in [0] + list(ks): a("v_writelane_b32 v3, s%d, %d" % (88 if k == 0 else 64 + 2 * k - 2, k))
            a("v_writelane_b32 v3, s58, 15\nv_writelane_b32 v3, s59, 14\nbuffer_store_dword v3, v2, s[12:15], s40 offen")
            return
        for k in [0] + list(ks):
            r = 88 if k == 0 else 64 + 2 * k - 2
            a("v_mov_b32 v3, s%d\nbuffer_store_dword v3, v2, s[12:15], s40 offen offset:%d" % (r, 4 * k))
        a("v_mov_b32 v3, s58\nbuffer_store_dword v3, v2, s[12:15], s40 offen offset:60")
        a("v_mov_b32 v3, s59\nbuffer_store_dword v3, v2, s[12:15], s40 offen offset:56")
    def zero_stamps():
        if stamps:
            a("s_mov_b32 s58, 0\ns_mov_b32 s59, 0")
            for k in range(1, 12): a("s_mov_b32 s%d, 0" % (64 + 2 * k - 2))
    def dpp(op, d, s0, s1, ctl, bank="0xf"):
        a("%s_dpp v%d, v%d, v%d %s row_mask:0xf bank_mask:%s" % (op, d, s0, s1, ctl, bank))
    def red8(op, regs_):
        for ctl in ("quad_perm:[1,0,3,2]", "quad_perm:[2,3,0,1]", "row_half_mirror"):
            for r in regs_: dpp(op, r, r, r, ctl)
    def redsw(op, pairs, sws):
        for sw in sws:
            for r, t in pairs: a("v_mov_b32 v%d, v%d" % (t, r))
            for r, t in pairs: a("%s v%d, v%d" % (sw, r, t))
            for r, t in pairs: a("%s v%d, v%d, v%d" % (op, r, r, t))
    def redrows(op, pairs):
        redsw(op, pairs, ("v_permlane16_swap_b32", "v_permlane32_swap_b32"))
    def redhi(op, pairs):
        for r, t in pairs: dpp(op, r, r, r, "row_ror:8")
        redrows(op, pairs)
    def redall(op, pairs):
        red8(op, [r for r, t in pairs]); redhi(op, pairs)
    def ridx(d, t):
        if RM == 0: a("s_mov_b32 s%d, s2" % d)
        if RM == 1: a("s_lshl_b32 s%d, s24, 3\ns_or_b32 s%d, s%d, s25" % (d, d, d))
        if RM == 2: a("s_and_b32 s%d, s24, 3\ns_lshl_b32 s%d, s%d, 6\ns_or_b32 s%d, s%d, s25\ns_and_b32 s%d, s2, 7\ns_lshl_b32 s%d, s%d, 3\ns_or_b32 s%d, s%d, s%d" % (d, d, d, d, d, t, t, t, d, d, t))
        if RM == 3: a("s_xor_b32 s%d, s24, 4\ns_lshl_b32 s%d, s%d, 3\ns_or_b32 s%d, s%d, s25\ns_add_u32 s%d, s%d, 32\ns_and_b32 s%d, s%d, 255" % (d, d, d, d, d, d, d, d, d))
        if RM in (4, 6): a(("s_and_b32 sT, s24, 28\ns_lshr_b32 sT, %s, sT\ns_and_b32 sT, sT, 7\ns_lshl_b32 sT, sT, 5\ns_and_b32 sD, s2, 24\ns_or_b32 sD, sD, s25\ns_or_b32 sD, sD, sT" % {4: "0x72654130", 6: "0x71654032"}[RM]).replace("sT", "s%d" % t).replace("sD", "s%d" % d))
        if RM == 5: a("s_and_b32 sT, s2, 1\ns_lshl_b32 sT, sT, 7\ns_and_b32 sD, s2, 30\ns_lshl_b32 sD, sD, 2\ns_or_b32 sD, sD, s25\ns_or_b32 sD, sD, sT".replace("sT", "s%d" % t).replace("sD", "s%d" % d))
    def rbf(d, s):
        a("v_cvt_pk_bf16_f32 v%d, v%d, v%d\nv_lshlrev_b32 v%d, 16, v%d" % (d, s, s, d, d))
    def onehot(dst, tmp):
        for j in range(4): a("v_cndmask_b32 v%d, 0, v%d, s[%d:%d]" % (dst + j, tmp, 32 + 2 * j, 33 + 2 * j))
    def operand(dst, c, H, tmp):
        a("v_cvt_pk_bf16_f32 v%d, v%d, v%d\nv_and_b32 v%d, v%d, v%d" % (tmp, c, c, tmp, tmp, H))
        onehot(dst, tmp)
    def operand16(dst, c, SH):
        a("v_lshlrev_b32 v%d, v%d, v%d" % (c, SH, c))
        onehot(dst, c)
    def mfma(d, A, B, first):
        a("v_mfma_f32_16x16x32_bf16 v[%d:%d], v[%d:%d], v[%d:%d], %s" % (d, d + 3, A, A + 3, B, B + 3, "0" if first else "v[%d:%d]" % (d, d + 3)))
    def fold1(D, out):
        a("v_permlane32_swap_b32 v%d, v%d\nv_permlane32_swap_b32 v%d, v%d" % (D, D + 1, D + 2, D + 3))
        dpp("v_add_f32", out, D + 1, D, "row_ror:8", "0x3")
        dpp("v_add_f32", out, D + 2, D + 3, "row_ror:8", "0xc")
    def poll(loads, tags, errslot, nx=0):
        L, D = a.label("poll"), a.label("polld")
        a("s_mov_b32 s27, %d" % (SPIN // 4 if nx else SPIN))
        if nx: a("s_mov_b32 s62, %d" % (nx - 1))
        a(L + ":")
        if stamps and errslot == 5 and not ack: stamp(12)
        for l in loads: a(l)
        if stamps: a("s_add_u32 s59, s59, %d" % (1 << (5 * errslot)))
        a("s_waitcnt vmcnt(0)")
        a("v_cmp_ne_u32 s[40:41], s26, v%d" % tags[0])
        for t in tags[1:]:
            a("v_cmp_ne_u32 s[42:43], s26, v%d\ns_or_b64 s[40:41], s[40:41], s[42:43]" % t)
        if not (nodep >> errslot) & 1:
            a("s_cmp_eq_u64 s[40:41], 0\ns_cbranch_scc1 %s" % D)
            if nx:
                a("s_sub_u32 s62, s62, 1\ns_cbranch_scc0 %s\ns_mov_b32 s62, %d\nbuffer_wbl2 sc1\ns_waitcnt vmcnt(0)" % (L, NXR - 1))
                if stamps: a("s_or_b32 s58, s58, 512")
            a("s_sub_u32 s27, s27, 1\ns_cbranch_scc0 %s" % L)
        if stamps: a("s_or_b32 s58, s58, %d" % (1 << errslot))
        a(D + ":")
    def lwait(flag, thr, vaddr, vtmp, extra=()):
        L, D = a.label("lw"), a.label("lwd")
        if nodep & 64 and flag in (F_QRDY, F_STRDY, F_HRDY): thr = "0"
        a("s_mov_b32 s27, %d" % (SPIN * 8))
        a(L + ":")
        a("ds_read_b32 v%d, v%d offset:%d" % (vtmp, vaddr, flag))
        for l in extra: a(l)
        a("s_waitcnt lgkmcnt(0)\nv_readfirstlane_b32 s40, v%d\ns_cmp_ge_u32 s40, %s\ns_cbranch_scc1 %s" % (vtmp, thr, D))
        if SLP: a("s_sleep %d" % SLP)
        a("s_sub_u32 s27, s27, 1\ns_cbranch_scc0 %s" % L)
        if stamps: a("s_or_b32 s58, s58, 256")
        a(D + ":")
    def srd(base, ptr, size):
        a("s_mov_b32 s%d, s%d\ns_mov_b32 s%d, s%d\ns_mov_b32 s%d, %d\ns_mov_b32 s%d, 0x00020000" % (base, ptr, base + 1, ptr + 1, base + 2, size, base + 3))
    def nonce():
        a("s_waitcnt lgkmcnt(0)\ns_mul_i32 s26, s26, 0x19660d\ns_add_u32 s26, s26, 0x3c6ef35f")
    def masks():
        for j, m in enumerate(("0x03030303", "0x0c0c0c0c", "0x30303030", "0xc0c0c0c0")):
            a("s_mov_b32 s%d, %s\ns_mov_b32 s%d, %s" % (32 + 2 * j, m, 33 + 2 * j, m))
        a("v_and_b32 v2, 1, v0\nv_lshlrev_b32 v2, 4, v2")
    a("s_cmp_ge_u32 s2, 256\ns_cbranch_scc1 .Lend")
    a("s_load_dwordx16 s[64:79], s[0:1], 0\ns_load_dwordx8 s[80:87], s[0:1], 64")
    if stamps or dbgst: a("s_memrealtime s[88:89]")
    if dbgst == 1: a("s_memtime s[94:95]")
    a("""
    v_lshrrev_b32 v1, 6, v0
    v_and_b32 v0, 63, v0
    v_readfirstlane_b32 s3, v1
    s_and_b32 s24, s2, 7
    s_lshl_b32 s24, s24, 2
    s_bfe_u32 s25, s2, 0x20003
    s_or_b32 s24, s24, s25
    s_lshr_b32 s25, s2, 5
    v_lshrrev_b32 v4, 3, v0
    v_and_b32 v5, 7, v0
    s_cmp_lt_u32 s3, 5
    s_cbranch_scc1 .Laux
    """)
    KV = 32
    Q = 8
    SC = 20
    VOFF, H = 1, 2
    OP = 28
    T0, T1, T2, T3 = 3, 4, 5, 6
    TMX = TM; TM = 7
    a("""
    v_mul_u32_u24 v1, 384, v4
    v_lshl_add_u32 v1, v5, 4, v1
    s_sub_u32 s48, s3, 5
    s_mul_i32 s28, s24, 1572864
    s_mul_i32 s29, s25, 196608
    s_add_u32 s28, s28, s29
    s_mul_i32 s29, s48, 24576
    s_add_u32 s28, s28, s29
    s_add_u32 s29, s28, 6144
    s_add_u32 s30, s28, 12288
    s_add_u32 s31, s28, 18432
    """)
    if pat == 8: a("s_and_b32 s28, s2, 7\ns_mul_i32 s28, s28, 1572864\ns_lshr_b32 s29, s2, 3\ns_mul_i32 s29, s29, 49152\ns_add_u32 s28, s28, s29\ns_mul_i32 s29, s48, 6144\ns_add_u32 s28, s28, s29\ns_add_u32 s29, s28, 12582912\ns_add_u32 s30, s29, 12582912\ns_add_u32 s31, s30, 12582912")
    if pat == 9: a("s_and_b32 s28, s2, 15\ns_mul_i32 s28, s28, 1572864\ns_lshr_b32 s29, s2, 4\ns_mul_i32 s29, s29, 98304\ns_add_u32 s28, s28, s29\ns_mul_i32 s29, s48, 12288\ns_add_u32 s28, s28, s29\ns_add_u32 s29, s28, 6144\ns_add_u32 s30, s28, 25165824\ns_add_u32 s31, s30, 6144")
    a("s_waitcnt lgkmcnt(0)")
    srd(4, 66, 50331648)
    st = dict(n=0, landed=0)
    def need(idx):
        if idx >= st["landed"]:
            a("s_waitcnt vmcnt(%d)" % (st["n"] - 1 - idx)); st["landed"] = idx + 1
    def kvload(throttle=True):
        n = st["n"]; i = n % 24; t, ln = i // 3, i % 3
        Tn = T if n < TT else TTT
        if n < T0N: Tn = T - 1
        if 24 <= n < 24 + Q4: Tn = T + 1
        if TP and n >= 6: Tn = int(str(TP)[n % len(str(TP))])
        if pd and n == 5: a("s_load_dword s92, s[94:95], 0")
        if pd and n == 8: a("s_waitcnt lgkmcnt(0)\ns_cmp_eq_u32 s92, 0\ns_cselect_b32 s92, s88, s92")
        if pd and n >= 8:
            L = a.label("pc"); thr = (pa * 10 + min(n, 24) * (pk or pd) + max(n - 24, 0) * pd) // 10
            CK = "s_memrealtime s[90:91]\ns_waitcnt lgkmcnt(0)\ns_sub_u32 s90, s90, s92\ns_cmp_ge_i32 s90, %d\ns_cbranch_scc1 %s"
            if lag < 9999:
                need(n - Tn - 1); a(CK % (thr + lag, L)); a("s_waitcnt vmcnt(%d)" % (Tn - 1))
            else: need(n - Tn)
            a(CK % (thr, L)); a("s_waitcnt vmcnt(%d)\n%s:" % (Tn - 2, L))
        elif st.get("post") and SBM and SB <= n < SB + SBN:
            L = a.label("sb")
            need(n - Tn)
            a("ds_read_b32 v%d, v%d offset:%d\ns_waitcnt lgkmcnt(0)\nv_readfirstlane_b32 s40, v%d\ns_cmp_lg_u32 s40, 0\ns_cbranch_scc1 %s\ns_waitcnt vmcnt(%d)" % (T0, T3, F_STRDY, T0, L, SBM - 1))
            if stamps: a("s_add_u32 s59, s59, 1")
            a(L + ":")
        elif st.get("post") and n == SB:
            need(n - Tn)
            lwait(F_STRDY, "1", T3, T0)
        elif WA and WN <= n < WN + 4:
            L = a.label("wa")
            need(n - Tn - 1)
            a("s_cmp_ge_u32 s48, %d\ns_cbranch_scc1 %s\ns_waitcnt vmcnt(%d)" % (WA % 10, L, Tn - 1))
            if n < WN + (WA // 100): a("s_cmp_ge_u32 s48, %d\ns_cbranch_scc1 %s\ns_waitcnt vmcnt(%d)" % (WA // 10 % 10, L, Tn - 2))
            a(L + ":")
        elif XT and throttle and TM0 <= n < TM1:
            L = a.label("xt")
            need(n - Tn - 1)
            a("s_bitcmp1_b64 s[60:61], %d\ns_cbranch_scc1 %s\ns_waitcnt vmcnt(%d)\n%s:" % (n, L, Tn - 1, L))
        elif TMX and TM0 <= n < TM1:
            L = a.label("tm")
            need(n - Tn)
            a("s_bitcmp1_b64 s[60:61], %d\ns_cbranch_scc1 %s\ns_waitcnt vmcnt(%d)\n%s:" % (n, L, Tn - 2, L))
        elif throttle and n >= Tn: need(n - Tn)
        r = KV + 4 * i
        a("buffer_load_dwordx4 v[%d:%d], v%d, s[%d:%d], s%d offen offset:%d%s" % (r, r + 3, VOFF, 4 if n < 24 else 8, 7 if n < 24 else 11, 28 + t // 2, 3072 * (t & 1) + 128 * ln, NT))
        st["n"] += 1
        n = st["n"]
        if n in (G1, G2, G3, GUD, WDL):
            a("s_mov_b64 exec, 1\nv_mov_b32 v%d, 0\nv_mov_b32 v%d, %d\nds_max_u32 v%d, v%d offset:%d\ns_mov_b64 exec, -1" % (OP, OP + 1, n, OP, OP + 1, F_PROG))
        if n == 24 + PW:
            a("s_mov_b64 exec, 1\nv_mov_b32 v%d, 0\nv_mov_b32 v%d, 1\nds_add_u32 v%d, v%d offset:%d\ns_mov_b64 exec, -1" % (OP, OP + 1, OP, OP + 1, F_WOGO))
    for _ in range(T - (1 if T0N else 0)): kvload()
    a("s_load_dword s26, s[86:87], 0")
    srd(8, 68, 50331648); srd(12, 86, 268435456); srd(16, 64, 1280); srd(20, 82, 1280)
    if pd: a("s_mov_b32 s94, s84\ns_mov_b32 s95, s85")
    zero_stamps()
    masks()
    a("v_mov_b32 v3, 0xffff\nv_lshlrev_b32 v2, v2, v3")
    a("v_lshlrev_b32 v6, 4, v5")
    if TMX:
        p = str(TMX); m = sum((p[i % len(p)] == "3") << i for i in range(64))
        a("s_mov_b32 s60, 0x%x\ns_mov_b32 s61, 0x%x\ns_mul_i32 s49, s48, %d\ns_lshr_b32 s49, s49, 3\ns_lshr_b64 s[60:61], s[60:61], s49" % (m & 0xffffffff, m >> 32, len(p)))
    if XT:
        BP = [0x00, 0x01, 0x11, 0x25, 0x55, 0x5b, 0x77, 0x7f, 0xff]
        m = sum(BP[int(c)] << (8 * i) for i, c in enumerate(("%09d" % XT)[1:]))
        a("s_getreg_b32 s49, hwreg(HW_REG_XCC_ID, 0, 3)" if XI else "s_and_b32 s49, s2, 7")
        a("s_lshl_b32 s49, s49, 3\ns_mov_b32 s60, 0x%x\ns_mov_b32 s61, 0x%x\ns_lshr_b64 s[60:61], s[60:61], s49\ns_and_b32 s60, s60, 0xff\ns_mul_i32 s60, s60, 0x01010101\ns_mov_b32 s61, s60\ns_lshr_b64 s[60:61], s[60:61], s48" % (m & 0xffffffff, m >> 32))
    a(".Ltouch_b:\ns_branch .Lbulk2\n.Lbulk2:")
    a("s_barrier")
    while st["n"] < P1: kvload()
    nonce()
    stamp(1)
    lwait(F_QRDY, "3", 6, T0, ["ds_read_b128 v[%d:%d], v6 offset:%d" % (Q + 4 * ln, Q + 4 * ln + 3, L_Q + 128 * ln) for ln in range(3)])
    stamp(2)
    def qk(t):
        if abl & 1: return
        acc = [T0, T1, T2]
        for j in range(4):
            for ln in range(3):
                a("v_dot2_f32_bf16 v%d, v%d, v%d, %s" % (acc[ln], KV + 12 * t + 4 * ln + j, Q + 4 * ln + j, "0" if j == 0 else "v%d" % acc[ln]))
        a("v_add_f32 v%d, v%d, v%d\nv_add_f32 v%d, v%d, v%d" % (T0, T0, T1, T0, T0, T2))
        red8("v_add_f32", [T0])
        rbf(T0, T0)
        a("v_mul_f32 v%d, %s, v%d" % (T0, SCALE, T0))
        rbf(SC + t, T0)
    tq = 0
    while tq < 8:
        did = 0
        while tq < 8 and did < (1 if tq < Q1 else QPL) and 3 * tq + 2 < st["landed"]:
            qk(tq); tq += 1; did += 1
        if tq < 8:
            if st["n"] >= 24 and (st["n"] - 24) // 3 >= tq:
                need(3 * tq + 2)
            else:
                kvload()
    if SSP & 1: kvload()
    a("v_max3_f32 v%d, v%d, v%d, v%d" % (TM, SC, SC + 1, SC + 2))
    a("v_max3_f32 v%d, v%d, v%d, v%d" % (T0, SC + 3, SC + 4, SC + 5))
    a("v_max3_f32 v%d, v%d, v%d, v%d" % (TM, TM, SC + 6, SC + 7))
    a("v_max_f32 v%d, v%d, v%d" % (TM, TM, T0))
    redhi("v_max_f32", [(TM, T0)])
    a("v_mul_f32 v%d, %s, v%d" % (T1, LOG2E, TM))
    a("s_mov_b32 s49, %s" % LOG2E)
    for t in range(8): a("v_fma_f32 v%d, v%d, s49, -v%d" % (SC + t, SC + t, T1))
    for t in range(8): a("v_exp_f32 v%d, v%d" % (SC + t, SC + t))
    if SSP & 2: kvload()
    a("v_add_f32 v%d, v%d, v%d\nv_add_f32 v%d, v%d, v%d" % (T2, SC, SC + 1, T3, SC + 2, SC + 3))
    a("v_add_f32 v%d, v%d, v%d\nv_add_f32 v%d, v%d, v%d" % (T2, T2, SC + 4, T3, T3, SC + 5))
    a("v_add_f32 v%d, v%d, v%d\nv_add_f32 v%d, v%d, v%d" % (T2, T2, SC + 6, T3, T3, SC + 7))
    S4 = Q
    a("v_add_f32 v%d, v%d, v%d" % (S4 + 1, T2, T3))
    redhi("v_add_f32", [(S4 + 1, T0)])
    a("v_mov_b32 v%d, v%d\nv_mov_b32 v%d, 0\nv_mov_b32 v%d, 1\ns_lshl_b32 s50, s48, 3\nv_mov_b32 v%d, s50" % (S4, TM, T3, S4 + 2, S4 + 3))
    a("s_mov_b64 exec, 1\nds_write_b64 v%d, v[%d:%d] offset:%d\nds_add_u32 v%d, v%d offset:%d\ns_mov_b64 exec, -1" % (S4 + 3, S4, S4 + 1, L_WST, T3, S4 + 2, F_STC))
    stamp(3)
    st["post"] = 1; assert SB >= st["n"] and SB >= G2, st["n"]; sys.stderr.write('n at stats %d\n' % st['n'])
    if GO:
        while st["n"] < GN: kvload()
        sv = dict(st)
        while st["n"] < 48:
            a("ds_read_b32 v%d, v%d offset:%d\ns_waitcnt lgkmcnt(0)\nv_readfirstlane_b32 s40, v%d\ns_cmp_lg_u32 s40, 0\ns_cbranch_scc1 .Lfast_%d" % (T0, T3, F_MODE, T0, st["n"]))
            kvload()
        a("s_branch .Lfast_48")
        st.update(sv)
        while st["n"] < 48:
            a(".Lfast_%d:" % st["n"])
            if stamps: a("s_add_u32 s59, s59, 1")
            if GT < 99: a("s_waitcnt vmcnt(%d)" % (GT - 1))
            kvload(False)
        a(".Lfast_48:")
    while st["n"] < 48: kvload()
    a("""
    v_and_b32 v1, 7, v0
    v_lshlrev_b32 v1, 3, v1
    v_bfe_u32 v5, v0, 4, 1
    v_lshl_add_u32 v1, v5, 2, v1
    v_bfe_u32 v5, v0, 3, 1
    v_lshl_add_u32 v1, v5, 1, v1
    v_bfe_u32 v5, v0, 5, 1
    v_add_u32 v1, v5, v1
    s_lshl_b32 s49, s48, 8
    """)
    PA = [28, 29, 30]
    stamp(4)
    lwait(F_STRDY, "1", T3, T0, ["ds_read_b64 v[%d:%d], v%d offset:%d" % (T1, T2, T3, L_ST)])
    a("s_mov_b32 s52, s40")
    stamp(5)
    a("v_sub_f32 v%d, v%d, v%d\nv_mul_f32 v%d, %s, v%d\nv_exp_f32 v%d, v%d\nv_mul_f32 v%d, v%d, v%d" % (T0, TM, T1, T0, LOG2E, T0, T0, T0, TM, T0, T2))
    for t in range(8):
        a("v_mul_f32 v%d, v%d, v%d" % (T0, SC + t, TM))
        operand(OP, T0, H, T1)
        for ln in range(3):
            need(24 + 3 * t + ln)
            mfma(Q + 4 * ln, OP, KV + 12 * t + 4 * ln, t == 0)
        if t == 6:
            PA[:] = [SC + 3, SC + 4, SC + 5]
            for ln in range(3):
                a("v_add_u32 v%d, %d, v1\nv_mul_u32_u24 v5, 171, v%d\nv_lshrrev_b32 v5, 9, v5\nv_add3_u32 v%d, v%d, v5, s49\nv_lshlrev_b32 v%d, 2, v%d" % (PA[ln], 64 * ln, PA[ln], PA[ln], PA[ln], PA[ln], PA[ln]))
            a("v_lshlrev_b32 v6, 4, v0\nv_lshlrev_b32 v5, %d, v0\ns_lshl_b32 s50, s24, 13\ns_lshl_b32 s51, s25, %d\ns_add_u32 s50, s50, s51\ns_add_u32 s50, s50, %d" % (4 if OD else 7, 10 if OD else 4, WS_O))
    stamp(6)
    for ln in range(3): fold1(Q + 4 * ln, SC + ln)
    if AE: a("s_branch .Lbulk_end")
    for ln in range(3): a("ds_write_b32 v%d, v%d offset:%d" % (PA[ln], SC + ln, L_PART))
    a("v_mov_b32 v11, s26\ns_waitcnt lgkmcnt(0)")
    a("s_barrier")
    a("s_cmp_ge_u32 s48, 1\ns_cbranch_scc1 .Lbulk_opub")
    for k in range(8): a("ds_read_b128 v[%d:%d], v6 offset:%d" % (32 + 4 * k, 35 + 4 * k, L_PART + 1024 * k))
    for st_, wv in ((4, 4), (8, 0), (16, 0)):
        for k in range(0, 32, 2 * st_):
            if st_ == 4: a("s_waitcnt lgkmcnt(%d)" % (6 - k // 4))
            d = 8 if st_ == 16 else 32 + k
            a("v_pk_add_f32 v[%d:%d], v[%d:%d], v[%d:%d]\nv_add_f32 v%d, v%d, v%d" % (d, d + 1, 32 + k, 33 + k, 32 + k + st_, 33 + k + st_, d + 2, 34 + k, 34 + k + st_))
    if oack: stamp(5)
    OST = ["buffer_store_dwordx4 v[8:11], v5, s[12:15], s50 offen", "buffer_atomic_swap_x2 v[8:9], v5, s[12:15], s50 offen\nbuffer_atomic_swap_x2 v[10:11], v5, s[12:15], s50 offen offset:8",
           "buffer_store_dwordx4 v[8:11], v5, s[12:15], s50 offen sc0", "buffer_store_dwordx4 v[8:11], v5, s[12:15], s50 offen sc1", "buffer_store_dwordx4 v[8:11], v5, s[12:15], s50 offen\nbuffer_load_dword v12, v5, s[12:15], s50 offen sc1"][OS]
    a("s_cmp_eq_u32 s52, 1\ns_cbranch_scc0 .Lbulk_opy\n%s\ns_branch .Lbulk_opub" % OST)
    a(".Lbulk_opy:\nbuffer_store_dwordx4 v[8:11], v5, s[12:15], s50 offen sc1")
    a(".Lbulk_opub:")
    if OQ:
        a("s_cmp_ge_u32 s48, 1\ns_cbranch_scc1 .Lbulk_oq")
        if OQ == 2: a("s_waitcnt vmcnt(0)")
        a("v_mov_b32 v12, 0\nv_mov_b32 v13, 2\nds_write_b32 v12, v13 offset:%d\n.Lbulk_oq:" % F_MODE)
    if oack: a("s_waitcnt vmcnt(0)")
    stamp(7)
    if RM: ridx(60, 61)
    SR = "s60" if RM else "s2"
    assert not (RM and (FG or HY))
    n0 = len(a.l)
    if stamps and fl: a("s_cmp_lt_u32 s2, %d\ns_cbranch_scc1 .Lbulk_red\ns_barrier\ns_branch .Lbulk_end\n.Lbulk_red:" % NRED)
    else: a("s_cmp_ge_u32 s2, %d\ns_cbranch_scc1 .Lbulk_end" % NRED)
    a("""
    v_and_b32 v31, 3, v0
    v_lshlrev_b32 v31, 4, v31
    s_lshr_b32 s49, s2, 3
    s_lshl_b32 s49, s49, 7
    s_and_b32 s50, s2, 1
    s_lshl_b32 s50, s50, 6
    s_add_u32 s49, s49, s50
    s_and_b32 s50, s2, 6
    s_lshl_b32 s50, s50, 1
    s_add_u32 s49, s49, s50
    buffer_load_dword v30, v31, s[16:19], s49 offen
    """)
    a("v_lshlrev_b32 v1, 4, v0\n%s\ns_lshl_b32 s51, s48, %d\ns_add_u32 s50, s50, s51\ns_add_u32 s50, s50, %d" % ("s_mul_i32 s50, s2, %d" % (16384 + RP) if RP else "s_lshl_b32 s50, s2, %d" % (14 + AP), 11 + AP, WS_A))
    VA = "v2" if AP else "v1"
    if AP: a("v_lshrrev_b32 v2, 2, v0\nv_lshl_add_u32 v2, v2, 7, v31")
    a("v_lshlrev_b32 v3, 3, v0\ns_lshl_b32 s51, s48, 5\nv_add_u32 v3, s51, v3")
    a("%s\ns_lshl_b32 s52, s48, 9\ns_add_u32 s51, s51, s52\ns_add_u32 s51, s51, %d" % ("s_mul_i32 s51, s2, %d" % (4096 + RB) if RB else "s_lshl_b32 s51, s2, 12", WS_B))
    a("v_mov_b32 v8, 0\nv_mov_b32 v9, 0\nv_mov_b32 v12, 0\nv_mov_b32 v13, 0\ns_mov_b64 s[44:45], -1\ns_mov_b64 s[46:47], -1\ns_mov_b32 s52, -1\ns_mov_b32 s53, 0")
    a.l[n0:] = [x.replace("s2,", SR + ",") for x in a.l[n0:]]
    MS = (52, 44, 46)
    def aissue(k, X=""):
        R = 32 + 12 * k
        if AS & 1: X += " sc0"
        if stamps: stamp(11); a("s_add_u32 s59, s59, %d" % (1 << 20))
        a("s_or_b64 exec, s[52:53], 1\nbuffer_load_dwordx4 v[%d:%d], v1, s[12:15], s51 offen sc1" % (R, R + 3) + X)
        a("s_or_b64 exec, s[44:45], 1\nbuffer_load_dwordx4 v[%d:%d], %s, s[12:15], s50 offen sc1" % (R + 4, R + 7, VA) + X)
        a("s_or_b64 exec, s[46:47], 1\nbuffer_load_dwordx4 v[%d:%d], %s, s[12:15], s50 offen offset:%d sc1" % (R + 8, R + 11, VA, 1024 << AP) + X)
    def acheck(k, w, br=True):
        for j in range(3):
            R, M, AC = 32 + 12 * k + 4 * j, MS[j], 12 if j == 0 else 8
            a("s_mov_b64 exec, s[%d:%d]\ns_waitcnt vmcnt(%d)" % (M, M + 1, w + 2 - j))
            a("v_cmp_eq_u32 vcc, s26, v%d\nv_cmp_eq_u32 s[42:43], s26, v%d\ns_and_b64 exec, vcc, s[42:43]" % (R + 1, R + 3))
            a("v_add_f32 v%d, v%d, v%d\nv_add_f32 v%d, v%d, v%d\ns_andn2_b64 s[%d:%d], s[%d:%d], exec" % (AC, AC, R, AC + 1, AC + 1, R + 2, M, M + 1, M, M + 1))
        if br: a("s_or_b64 s[40:41], s[44:45], s[46:47]\ns_or_b64 s[40:41], s[40:41], s[52:53]\ns_cbranch_scc0 .Lag_done")
    if FG:
        a("v_lshrrev_b32 v4, 3, v0\nv_lshlrev_b32 v4, 7, v4\nv_mov_b32 v5, 0\ns_lshl_b32 s62, s48, 9\ns_add_u32 s62, s62, %d" % WS_F)
        a("s_mov_b64 s[54:55], 0\ns_mov_b64 s[56:57], 0\ns_mov_b64 s[60:61], 0\ns_mov_b32 s27, %d" % SPIN)
        if FG == 2: a("s_barrier")
        stamp(8)
        RD = (60, 54, 56)
        a(".Lag_1:")
        a("s_cmp_eq_u32 s60, -1\ns_cbranch_scc1 .Lag_nf\ns_mov_b64 exec, 0xffffffff\nbuffer_load_dword v6, v4, s[12:15], s62 offen sc1")
        if FG == 1: a("ds_read_b32 v7, v5 offset:%d" % F_MODE)
        a(".Lag_nf:")
        if stamps: a("s_add_u32 s59, s59, 1")
        for j, (so, off) in enumerate(((51, 0), (50, 0), (50, 1024))):
            a("s_and_b64 exec, s[%d:%d], s[%d:%d]\ns_cbranch_scc0 .Lag_s%d" % (MS[j], MS[j] + 1, RD[j], RD[j] + 1, j))
            if stamps: stamp(11); a("s_add_u32 s59, s59, %d" % (1 << 20))
            a("buffer_load_dwordx4 v[%d:%d], v1, s[12:15], s%d offen offset:%d sc1\n.Lag_s%d:" % (32 + 4 * j, 35 + 4 * j, so, off, j))
        a("s_waitcnt vmcnt(0) lgkmcnt(0)")
        for j in range(3):
            R, M, AC = 32 + 4 * j, MS[j], 12 if j == 0 else 8
            a("s_and_b64 exec, s[%d:%d], s[%d:%d]" % (M, M + 1, RD[j], RD[j] + 1))
            a("v_cmp_eq_u32 vcc, s26, v%d\nv_cmp_eq_u32 s[42:43], s26, v%d\ns_and_b64 exec, vcc, s[42:43]" % (R + 1, R + 3))
            a("v_add_f32 v%d, v%d, v%d\nv_add_f32 v%d, v%d, v%d\ns_andn2_b64 s[%d:%d], s[%d:%d], exec" % (AC, AC, R, AC + 1, AC + 1, R + 2, M, M + 1, M, M + 1))
        a("s_or_b64 s[40:41], s[44:45], s[46:47]\ns_or_b64 s[40:41], s[40:41], s[52:53]\ns_cbranch_scc0 .Lag_done")
        a("s_mov_b64 exec, 0xffffffff\nv_cmp_eq_u32 vcc, s26, v6")
        if FG == 1: a("v_readfirstlane_b32 s40, v7\ns_cmp_ge_u32 s40, %d\ns_cselect_b32 s60, vcc_lo, 0" % FGO)
        else: a("s_mov_b32 s60, vcc_lo")
        for k, r in enumerate((54, 55, 56, 57)): a("s_bfe_i32 s%d, s60, 0x%x" % (r, 0x10000 | (8 * k)))
        a("s_sub_u32 s27, s27, 1\ns_cbranch_scc0 .Lag_1")
    else:
        if early:
            aissue(0); acheck(0, 0, False)
        if HY:
            a("s_lshr_b32 s40, s24, 2\ns_cmp_eq_u32 s40, s48\ns_cselect_b32 s40, -1, 0\ns_and_b32 s41, s24, 3")
            for k, r in enumerate((54, 55, 56, 57)):
                a("s_cmp_eq_u32 s41, %d\ns_cselect_b32 s%d, s40, 0" % (k, r) if HY == 1 else "s_mov_b32 s%d, -1" % r)
            a("v_not_b32 v45, s26\nv_not_b32 v49, s26\nv_not_b32 v53, s26\ns_barrier")
            aissue(0)
        a("s_barrier")
        stamp(8)
        a("s_mov_b32 s27, %d" % SPIN)
        if HY:
            a("s_mov_b64 exec, s[52:53]\nbuffer_load_dwordx4 v[44:47], v1, s[12:15], s51 offen sc1")
            a("s_or_b64 exec, s[54:55], 1\nbuffer_load_dwordx4 v[48:51], %s, s[12:15], s50 offen sc1" % VA)
            a("s_or_b64 exec, s[56:57], 1\nbuffer_load_dwordx4 v[52:55], %s, s[12:15], s50 offen offset:%d sc1" % (VA, 1024 << AP))
            acheck(0, 3); acheck(1, 0)
            a("s_branch .Lag_0")
        if early: a("s_branch .Lag_0")
        a(".Lag_1:")
        aissue(0, " nt" if AN else ""); acheck(0, 0)
        a(".Lag_0:")
        if NS > 1:
            a("s_bcnt1_i32_b64 s40, s[44:45]\ns_bcnt1_i32_b64 s41, s[46:47]\ns_add_u32 s40, s40, s41\ns_cmp_le_u32 s40, %d\ns_cbranch_scc1 .Lag_2" % TH)
        a("s_sub_u32 s27, s27, 1\ns_cbranch_scc0 .Lag_1")
        if NS > 1:
            a("s_branch .Lag_fail\n.Lag_2:")
            for k in range(NS - 1): aissue(k)
            a(".Lag_3:")
            for k in range(NS):
                aissue((k + NS - 1) % NS)
                acheck(k, 3 * (NS - 1))
            a("s_sub_u32 s27, s27, 1\ns_cbranch_scc0 .Lag_3\n.Lag_fail:")
    if stamps: a("s_or_b32 s58, s58, 16")
    a(".Lag_done:\ns_mov_b64 exec, -1")
    stamp(9)
    for r in (8, 9, 12, 13): dpp("v_add_f32", r, r, r, "row_ror:4")
    redhi("v_add_f32", [(8, 10), (9, 11), (12, 14), (13, 15)])
    a("s_mov_b64 exec, 15\nds_write_b64 v3, v[8:9] offset:%d\nds_write_b64 v3, v[12:13] offset:%d\ns_mov_b64 exec, -1\ns_waitcnt lgkmcnt(0)" % (L_RED, L_REDB))
    a("s_barrier")
    a("s_cmp_lg_u32 s48, 0\ns_cbranch_scc1 .Lbulk_end")
    a("v_lshlrev_b32 v3, 3, v0\nds_read_b64 v[8:9], v3 offset:%d" % L_RED)
    a("v_lshlrev_b32 v14, 16, v30\nv_and_b32 v15, 0xffff0000, v30\ns_waitcnt lgkmcnt(0)")
    for ctl in ("row_ror:4", "row_ror:8"):
        for r in (8, 9): dpp("v_add_f32", r, r, r, ctl)
    a("v_mov_b32 v10, v8\nv_mov_b32 v11, v9\nv_permlane16_swap_b32 v8, v10\nv_permlane16_swap_b32 v9, v11\nv_add_f32 v8, v8, v10\nv_add_f32 v9, v9, v11")
    a("v_cvt_pk_bf16_f32 v8, v8, v9\nv_mov_b32 v12, v8\nv_permlane32_swap_b32 v8, v12")
    a("v_and_b32 v9, 0xffff0000, v8\nv_lshlrev_b32 v8, 16, v8\nv_add_f32 v8, v8, v14\nv_add_f32 v9, v9, v15")
    a("v_and_b32 v13, 0xffff0000, v12\nv_lshlrev_b32 v12, 16, v12")
    a("v_cvt_pk_bf16_f32 v8, v8, v9\nv_and_b32 v9, 0xffff0000, v8\nv_lshlrev_b32 v8, 16, v8\nv_add_f32 v8, v8, v12\nv_add_f32 v9, v9, v13")
    a("v_cvt_pk_bf16_f32 v8, v8, v9")
    a("s_mov_b64 exec, 15\nbuffer_store_dword v8, v31, s[20:23], s49 offen")
    a("s_cmp_lg_u32 %s, 0\ns_cbranch_scc1 .Lbulk_end" % SR)
    a("s_mov_b64 exec, 1\nv_mov_b32 v9, s26\nv_mov_b32 v1, 0\nbuffer_store_dword v9, v1, s[12:15], 0 offen")
    a(".Lbulk_end:")
    stamp(10)
    flush_stamps(range(1, 12))
    a("s_endpgm")

    a(".Laux:\ns_setprio %d" % (0 if abl & 4 else 3))
    W1 = 32
    W2 = 76
    XF = 8
    C = 13
    G = 100
    AOP = 24
    ACC = 116
    Z = 124
    ONE = 127
    SH = 2
    a("v_mov_b32 v%d, 0\nv_mov_b32 v%d, 0\nv_mov_b32 v%d, 0\nv_mov_b32 v%d, 1\nv_lshlrev_b32 v1, 2, v0\nv_and_b32 v3, 60, v1" % (Z, Z + 1, Z + 2, ONE))
    a("ds_write_b32 v3, v%d offset:%d\nds_write_b32 v3, v%d offset:%d" % (Z, L_FLAG, Z, L_XN + 1280))
    a("""
    s_cmp_lt_u32 s3, 3
    s_cbranch_scc1 .Laux_q
    s_and_b32 s52, s24, 3
    s_lshl_b32 s52, s52, 1
    s_sub_u32 s53, s3, 3
    s_add_u32 s52, s52, s53
    s_mul_i32 s48, s52, 80
    s_lshr_b32 s53, s24, 2
    s_mul_i32 s53, s53, 3
    s_add_u32 s53, s53, s25
    s_sub_u32 s54, s53, 3
    s_cmp_ge_u32 s25, 3
    s_cselect_b32 s53, s54, s53
    s_cselect_b32 s54, 98304, 0
    s_lshl_b32 s49, s53, 7
    s_movk_i32 s50, 3072
    s_mul_i32 s51, s52, 12288
    s_lshl_b32 s53, s53, 9
    s_add_u32 s51, s51, s53
    s_mov_b32 s53, s54
    s_add_u32 s51, s51, s54
    s_add_u32 s51, s51, %d
    s_add_u32 s6, s48, 80
    s_waitcnt lgkmcnt(0)
    s_cmp_eq_u32 s53, 0
    s_cselect_b32 s4, s76, s78
    s_cselect_b32 s5, s77, s79
    s_branch .Laux_p
    .Laux_q:
    s_mul_i32 s48, s25, %d
    s_add_u32 s6, s48, %d
    s_mul_i32 s52, s25, %d
    s_add_u32 s52, s52, %d
    s_add_u32 s53, s52, %d
    s_cmp_ge_u32 s25, 6
    s_cselect_b32 s48, s52, s48
    s_cselect_b32 s6, s53, s6
    s_mul_i32 s49, s24, 384
    s_lshl_b32 s53, s3, 7
    s_add_u32 s49, s49, s53
    s_movk_i32 s50, 12288
    s_mul_i32 s51, s24, 12288
    s_mul_i32 s52, s25, 1536
    s_add_u32 s51, s51, s52
    s_lshl_b32 s53, s3, 9
    s_add_u32 s51, s51, s53
    s_add_u32 s51, s51, %d
    s_waitcnt lgkmcnt(0)
    s_mov_b32 s4, s70
    s_mov_b32 s5, s71
    .Laux_p:
    s_mul_i32 s6, s6, s50
    s_mov_b32 s7, 0x00020000
    """ % (WS_GU, QA, QA, QB, 6 * QA - 6 * QB, QB, WS_Q))
    srd(16, 64, 1280)
    if GO: a("s_mov_b32 s94, s84\ns_mov_b32 s95, s85")
    if pd or GO:
        a("s_or_b32 s52, s2, s3\ns_cbranch_scc1 .Lnp")
        srd(28, 84, 256)
        a("v_mov_b32 v3, s88\nbuffer_store_dword v3, v%d, s[28:31], 0 offen sc1\ns_waitcnt vmcnt(0)\n.Lnp:" % Z)
    a("s_cmp_lt_u32 s3, 3\ns_cbranch_scc1 .Laux_s1\ns_cmp_ge_u32 s25, 6\ns_cbranch_scc1 .Laux_s1skip")
    a(".Laux_s1:")
    for j in range(5): a("buffer_load_dword v%d, v1, s[16:19], 0 offen offset:%d" % (XF + j, 256 * j))
    a("v_mul_lo_u32 v6, v4, s50\nv_lshl_add_u32 v6, v5, 4, v6\ns_mul_i32 s52, s48, s50\ns_add_u32 s52, s52, s49\ns_lshl_b32 s50, s50, 3")
    if abl & 2: a("s_mov_b32 s6, 0")
    if abl & 64: a("s_cmp_lt_u32 s3, 3\ns_cselect_b32 s6, s6, 0")
    A1 = min(A1, NT1); A2 = min(A2, NT1 - A1)
    def w1load(t):
        a("buffer_load_dwordx4 v[%d:%d], v6, s[4:7], s52 offen%s" % (W1 + 4 * t, W1 + 4 * t + 3, NT))
        if t < NT1 - 1: a("s_add_u32 s52, s52, s50")
    if GUD: a("s_cmp_ge_u32 s3, 3\ns_cbranch_scc1 .Laux_s1skip")
    for t in range(A1): w1load(t)
    a(".Laux_s1skip:\n.Ltouch_a:\n.Laux2:")
    a("s_barrier")
    a("s_load_dword s26, s[86:87], 0")
    if abl & 32: a("s_endpgm")
    if AE == 1: a("s_endpgm")
    srd(8, 72, 0 if abl & 16 else 7864320); srd(12, 86, 268435456); srd(20, 80, 0 if abl & 8 else 1966080)
    if tlb: srd(44, 68, 50331648); srd(28, 82, 1280)
    if DG == 6: srd(44, 66, 50331648)
    if abl & 128: a("s_cmp_eq_u32 s3, 0\ns_cselect_b32 s44, s76, s78\ns_cselect_b32 s45, s77, s79\ns_cmp_eq_u32 s3, 2\ns_cselect_b32 s44, s80, s44\ns_cselect_b32 s45, s81, s45\ns_mov_b32 s46, 1966080\ns_mov_b32 s47, 0x00020000")
    zero_stamps()
    masks()
    if CL & 2: a("s_mov_b32 s63, %d" % WS_ST)
    a("s_lshl_b32 s55, s24, 1\ns_add_u32 s55, s55, s25\ns_sub_u32 s55, s55, 6")
    a("s_cmp_lt_u32 s3, 3\ns_cbranch_scc1 .Laux_ln\ns_cmp_ge_u32 s25, 6\ns_cbranch_scc1 .Laux_pub_skip")
    a(".Laux_ln:")
    if GUD: a("s_cmp_lt_u32 s3, 3\ns_cbranch_scc1 .Laux_l1\ns_waitcnt vmcnt(0)\ns_branch .Laux_l2\n.Laux_l1:")
    if PQ: a("v_lshlrev_b32 v7, 6, v0\ns_mov_b64 exec, 0xff\nbuffer_load_dword v%d, v7, s[12:15], s51 offen nt\ns_mov_b64 exec, -1" % (G + 12))
    a("s_waitcnt vmcnt(%d)" % (A1 + (1 if PQ else 0)))
    for t in range(A1, A1 + A2): w1load(t)
    if GUD: a(".Laux_l2:")
    stamp(1)
    U = G
    for j in range(5): a("v_lshlrev_b32 v%d, 16, v%d\nv_and_b32 v%d, 0xffff0000, v%d" % (U + 2 * j, XF + j, U + 2 * j + 1, XF + j))
    a("v_add_f32 v13, v%d, v%d" % (U, U + 1))
    for j in range(2, 10): a("v_add_f32 v13, v13, v%d" % (U + j))
    redall("v_add_f32", [(13, 14)])
    a("v_mul_f32 v13, 0x3acccccd, v13")
    a("v_sub_f32 v15, v%d, v13\nv_mul_f32 v14, v15, v15" % U)
    for j in range(1, 10): a("v_sub_f32 v15, v%d, v13\nv_fma_f32 v14, v15, v15, v14" % (U + j))
    redall("v_add_f32", [(14, 15)])
    a("v_mul_f32 v14, 0x3acccccd, v14")
    rbf(14, 14); a("v_add_f32 v14, 0x3727c5ac, v14"); rbf(14, 14)
    a("v_sqrt_f32 v14, v14"); rbf(14, 14); a("v_rcp_f32 v14, v14")
    rbf(13, 13)
    for j in range(10): a("v_sub_f32 v%d, v%d, v13" % (U + j, U + j))
    for j in range(5):
        a("v_cvt_pk_bf16_f32 v%d, v%d, v%d" % (XF + j, U + 2 * j, U + 2 * j + 1))
        a("v_lshlrev_b32 v%d, 16, v%d\nv_and_b32 v%d, 0xffff0000, v%d" % (U + 2 * j, XF + j, U + 2 * j + 1, XF + j))
        a("v_mul_f32 v%d, v%d, v14\nv_mul_f32 v%d, v%d, v14" % (U + 2 * j, U + 2 * j, U + 2 * j + 1, U + 2 * j + 1))
        a("v_cvt_pk_bf16_f32 v%d, v%d, v%d" % (XF + j, U + 2 * j, U + 2 * j + 1))
        a("ds_write_b32 v1, v%d offset:%d" % (XF + j, L_XN + 256 * j))
    a("v_add_lshl_u32 v3, v4, s48, 1")
    for t in range(NT1): a("ds_read_u16 v%d, v3 offset:%d" % (C + t, L_XN + 16 * t))
    nonce()
    stamp(2)
    if GUD:
        a("s_cmp_lt_u32 s3, 3\ns_cbranch_scc1 .Laux_l3")
        if GUD > 1: lwait(F_PROG, str(GUD), Z, 3)
        for t in range(A1 + A2):
            if t >= GA: a("s_waitcnt vmcnt(%d)" % (GA - 1))
            w1load(t)
        a(".Laux_l3:")
    iss = A1 + A2
    while iss < min(AT, NT1): w1load(iss); iss += 1
    for t in range(NT1):
        op = AOP + 4 * (t & 1)
        operand16(op, C + t, SH)
        a("s_waitcnt vmcnt(%d)" % (iss - 1 - t + (1 if PQ == 1 or (PQ and t < NT1 - 1) else 0)))
        while iss < min(t + 1 + AT, NT1): w1load(iss); iss += 1
        mfma(ACC, op, W1 + 4 * t, t == 0)
    a("v_lshlrev_b32 v1, 4, v0")
    fold1(ACC, 36)
    a("v_mov_b32 v37, s26\nv_mov_b32 v39, s26\nv_permlane32_swap_b32 v36, v38")
    if AE == 2: a("s_endpgm")
    a("s_mov_b32 exec_hi, 0\nbuffer_store_dwordx4 v[36:39], v1, s[12:15], s51 offen")
    a("s_mov_b64 exec, -1")
    stamp(3)
    a("s_branch .Laux_pub_done\n.Laux_pub_skip:")
    nonce()
    a(".Laux_pub_done:")
    if AE in (2, 3): a("s_endpgm")
    if AE == 7: lwait(F_WOGO, "8", Z, 3); a("s_endpgm")
    if tlb:
        a("s_cmp_lg_u32 s3, 3\ns_cbranch_scc1 .Laux_notlb\ns_mov_b64 exec, 1")
        if tlb & 1:
            a("s_mul_i32 s52, s24, 1572864\ns_mul_i32 s53, s25, 196608\ns_add_u32 s52, s52, s53\ns_add_u32 s53, s52, 196480")
            a("buffer_load_dword v44, v%d, s[44:47], s52 offen\nbuffer_load_dword v45, v%d, s[44:47], s53 offen" % (Z, Z))
        if tlb & 2:
            a("s_mul_i32 s52, s24, 192\ns_mul_i32 s53, s25, 24\ns_add_u32 s52, s52, s53\ns_mul_i32 s52, s52, 1280\ns_add_u32 s53, s52, 30592")
            a("buffer_load_dword v46, v%d, s[8:11], s52 offen\nbuffer_load_dword v47, v%d, s[8:11], s53 offen" % (Z, Z))
        if tlb & 4:
            a("s_mov_b32 s52, %d\nbuffer_load_dword v48, v%d, s[12:15], s52 offen" % (WS_A + 0x180000, Z))
        if tlb & 8:
            a("buffer_load_dword v49, v%d, s[28:31], 0 offen" % Z)
        a("s_mov_b64 exec, -1\n.Laux_notlb:")
    def stage2_loads(srdb, voffs, step):
        for t in range(3):
            for ln in range(2):
                r = W2 + 8 * t + 4 * ln
                a("buffer_load_dwordx4 v[%d:%d], v%d, s[%d:%d], s52 offen offset:%d%s" % (r, r + 3, voffs[t], srdb, srdb + 3, 128 * ln, NT))
            if t < 2 and step: a("s_add_u32 s52, s52, %d" % step)
    def wdl():
        a("s_cmp_lt_u32 s25, 6\ns_cbranch_scc1 .Laux_nowdl")
        a("s_mul_i32 s56, s55, 24")
        for t in range(3):
            r = 16 + t
            a("v_add_u32 v3, s56, v4\nv_and_b32 v%d, 0xffffffc1, v3\nv_bfe_u32 v6, v3, 1, 3\nv_lshl_or_b32 v%d, v6, 3, v%d\nv_bfe_u32 v6, v3, 4, 2\nv_lshl_or_b32 v%d, v6, 1, v%d" % (r, r, r, r, r))
            a("v_mul_u32_u24 v%d, 1280, v%d\nv_lshl_add_u32 v%d, v5, 4, v%d" % (r, r, r, r))
            if t < 2: a("s_add_u32 s56, s56, 8")
        a("s_lshl_b32 s52, s3, 8")
        if WDL: lwait(F_PROG, str(WDL), Z, 3)
        stage2_loads(20, [16, 17, 18], 0)
        a(".Laux_nowdl:")
    if not WDL: wdl()
    a("v_lshrrev_b32 v3, 2, v0\nv_and_b32 v6, 3, v0\nv_lshlrev_b32 v6, 4, v6\nv_lshl_add_u32 v19, v3, 12, v6\nv_lshl_add_u32 v20, v3, %d, v6\nv_lshlrev_b32 v12, 1, v4" % (14 + AP))
    if RP: a("v_mul_u32_u24 v20, %d, v3\nv_add_u32 v20, v20, v6" % (16384 + RP))
    if RB: a("v_mul_u32_u24 v19, %d, v3\nv_add_u32 v19, v19, v6" % (4096 + RB))
    a("v_and_b32 v13, 15, v0\nv_lshrrev_b32 v14, 4, v0")
    a("s_cmp_ge_u32 s3, 3\ns_cbranch_scc1 .Laux_qdone")
    a("v_and_b32 v1, 31, v0\nv_lshlrev_b32 v1, 4, v1\nv_lshrrev_b32 v3, 5, v0\nv_mul_u32_u24 v3, 1536, v3\nv_add_u32 v1, v1, v3")
    a("s_mul_i32 s52, s24, 12288\ns_lshl_b32 s53, s3, 9\ns_add_u32 s52, s52, s53\ns_add_u32 s52, s52, %d\ns_add_u32 s53, s52, 6144" % WS_Q)
    a("v_lshlrev_b32 v6, 4, v5\nv_bfe_u32 v3, v0, 4, 1\nv_lshl_add_u32 v6, v3, 3, v6\nv_bfe_u32 v3, v0, 3, 1\nv_lshl_add_u32 v6, v3, 2, v6\ns_lshl_b32 s54, s3, 7\nv_add_u32 v6, s54, v6")
    lwait(F_PROG, str(G1), Z, 3)
    poll(["buffer_load_dwordx4 v[%d:%d], v1, s[12:15], s%d offen offset:%d sc1" % (G + 4 * i, G + 4 * i + 3, 52 + i // 2, 3072 * (i & 1)) for i in range(4)], [G + 2 * i + 1 for i in range(8)], 0, NXQ)
    for e in (0, 2): a("v_add_f32 v%d, v%d, v%d\nv_add_f32 v%d, v%d, v%d" % (G + e, G + e, G + 4 + e, G + 8 + e, G + 8 + e, G + 12 + e))
    for e in (0, 2): a("v_add_f32 v%d, v%d, v%d" % (G + e, G + e, G + 8 + e))
    redsw("v_add_f32", [(G, G + 1), (G + 2, G + 3)], ("v_permlane32_swap_b32",))
    a("v_cvt_pk_bf16_f32 v%d, v%d, v%d\nds_write_b32 v6, v%d offset:%d" % (G, G, G + 2, G, L_Q))
    a("s_waitcnt lgkmcnt(0)\ns_mov_b64 exec, 1\nds_add_u32 v%d, v%d offset:%d\ns_mov_b64 exec, -1" % (Z, ONE, F_QRDY))
    stamp(4)
    a(".Laux_qdone:")
    if AE == 4: a("s_endpgm")
    if WDL: wdl()
    a("s_cmp_lt_u32 s25, 6\ns_cbranch_scc1 .Laux_wddone")
    a("s_cmp_lg_u32 s3, 3\ns_cbranch_scc1 .Laux_hwait")
    a("v_mul_u32_u24 v1, 12288, v14\nv_lshl_add_u32 v1, v13, 4, v1\ns_mul_i32 s52, s55, 192\ns_add_u32 s52, s52, %d\ns_add_u32 s53, s52, 49152\ns_add_u32 s54, s52, 98304\ns_add_u32 s57, s52, 147456\nv_lshlrev_b32 v6, 2, v13" % WS_GU)
    lwait(F_PROG, str(G3), Z, 3)
    a("s_mov_b32 exec_lo, %s\ns_mov_b32 exec_hi, %s" % (M12, M12))
    poll(["buffer_load_dwordx4 v[%d:%d], v1, s[12:15], s%d offen sc1" % (G + 4 * i, G + 4 * i + 3, [52, 53, 54, 57][i]) for i in range(4)], [G + 2 * i + 1 for i in range(8)], 1)
    for e in (0, 2): a("v_add_f32 v%d, v%d, v%d\nv_add_f32 v%d, v%d, v%d" % (G + e, G + e, G + 4 + e, G + 8 + e, G + 8 + e, G + 12 + e))
    redrows("v_add_f32", [(G, G + 1), (G + 2, G + 3), (G + 8, G + 9), (G + 10, G + 11)])
    for r in (G, G + 2, G + 8, G + 10): rbf(r, r)
    for e in (0, 2):
        g, u = G + e, G + 8 + e
        a("v_mul_f32 v%d, 0xbfb8aa3b, v%d\nv_exp_f32 v%d, v%d\nv_add_f32 v%d, 1.0, v%d\nv_rcp_f32 v%d, v%d" % (g, g, g, g, g, g, g, g))
        rbf(g, g)
        a("v_mul_f32 v%d, v%d, v%d" % (g, g, u))
    a("v_cvt_pk_bf16_f32 v%d, v%d, v%d\nds_write_b32 v6, v%d offset:%d" % (G, G, G + 2, G, L_H))
    a("s_waitcnt lgkmcnt(0)\ns_mov_b64 exec, 1\nds_write_b32 v%d, v%d offset:%d\ns_mov_b64 exec, -1" % (Z, ONE, F_HRDY))
    a(".Laux_hwait:")
    def stage2(R, f32=False):
        for t in range(3):
            op = AOP + 4 * t
            if f32: operand(op, G + t, 22, G + t)
            else: operand16(op, G + t, SH)
            mfma(ACC, op, W2 + 8 * t, t == 0)
            mfma(ACC + 4, op, W2 + 8 * t + 4, t == 0)
        if ST2 and f32: a("s_memtime s[94:95]")
        for r in range(4): a("v_permlane32_swap_b32 v%d, v%d" % (ACC + r, ACC + 4 + r))
        X, Y = ACC, ACC + 4
        dpp("v_add_f32", R, Y + 0, X + 0, "row_ror:8", "0x3")
        dpp("v_add_f32", R + 2, Y + 1, X + 1, "row_ror:8", "0x3")
        dpp("v_add_f32", R, X + 2, Y + 2, "row_ror:8", "0xc")
        dpp("v_add_f32", R + 2, X + 3, Y + 3, "row_ror:8", "0xc")
    BST = "buffer_store_dwordx4 v[40:43], v19, s[12:15], s56 offen sc1"
    assert 80 * (4096 + RB) <= WS_A - WS_B
    a("%s\ns_lshl_b32 s53, s55, 6\ns_add_u32 s56, s56, s53\ns_add_u32 s56, s56, %d\nv_mov_b32 v41, s26\nv_mov_b32 v43, s26" % ("s_mul_i32 s56, s3, %d" % (16 * (4096 + RB)) if RB else "s_lshl_b32 s56, s3, 16", WS_B))
    lwait(F_HRDY, "1", Z, 3, ["ds_read_u16 v%d, v12 offset:%d" % (G + t, L_H + 16 * t) for t in range(3)])
    a("s_waitcnt vmcnt(0)")
    stage2(40)
    if not bdef: a(BST)
    stamp(5)
    a(".Laux_wddone:")
    if AE == 5: a("s_endpgm")
    a("s_cmp_lg_u32 s3, 4\ns_cbranch_scc1 .Laux_s2")
    a("v_lshlrev_b32 v1, 4, v0\nv_lshlrev_b32 v6, 3, v0\ns_lshl_b32 s52, s24, 10\ns_add_u32 s52, s52, %d\ns_lshl_b32 s53, s25, 7\ns_add_u32 s53, s53, s52\ns_getreg_b32 s57, hwreg(HW_REG_XCC_ID, 0, 4)\nv_mov_b32 v%d, s57\nv_mov_b32 v%d, s26" % (WS_ST, G + 6, G + 7))
    if PQ & 4: lwait(F_STC, "1", Z, 3); a("s_mov_b64 exec, 0xff\nbuffer_load_dwordx4 v[%d:%d], v1, s[12:15], s53 offen nt\ns_mov_b64 exec, -1" % (G + 8, G + 11))
    lwait(F_STC, "8", Z, 3, ["ds_read_b64 v[%d:%d], v6 offset:%d" % (G + 4, G + 5, L_WST)])
    a("s_mov_b64 exec, 0xff\nbuffer_store_dwordx4 v[%d:%d], v1, s[12:15], s53 offen" % (G + 4, G + 7))
    if CL & 2: a("s_mov_b32 s63, s53")
    a("s_mov_b64 exec, -1")
    stamp(4)
    lwait(F_PROG, str(G2), Z, 3)
    stamp(6)
    poll(["buffer_load_dwordx4 v[%d:%d], v1, s[12:15], s52 offen sc1" % (G, G + 3)], [G + 3], 3, NXQ)
    a("v_cmp_ne_u32 s[40:41], s57, v%d\nv_mov_b32 v21, 1\ns_cmp_eq_u64 s[40:41], 0\ns_cbranch_scc1 .Laux_same\nbuffer_wbl2 sc1\nv_mov_b32 v21, 2\ns_waitcnt vmcnt(0)\n.Laux_same:" % (G + 2))
    a("v_mov_b32 v16, v%d" % G)
    redall("v_max_f32", [(16, 18)])
    a("v_sub_f32 v17, v%d, v16\nv_mul_f32 v17, %s, v17\nv_exp_f32 v17, v17\nv_mul_f32 v17, v17, v%d" % (G, LOG2E, G + 1))
    redall("v_add_f32", [(17, 18)])
    a("v_rcp_f32 v17, v17\ns_mov_b64 exec, 1\nds_write_b64 v%d, v[16:17] offset:%d\ns_waitcnt lgkmcnt(0)\nds_write_b32 v%d, v21 offset:%d\ns_mov_b64 exec, -1" % (Z, L_ST, Z, F_STRDY))
    a(".Laux_s2:")
    if AE == 6: a("s_endpgm")
    stamp(7)
    a("v_mul_u32_u24 v7, 3840, v4\nv_lshl_add_u32 v7, v5, 4, v7")
    a("s_mul_i32 s52, s24, 192\ns_mul_i32 s53, s25, 24\ns_add_u32 s52, s52, s53\ns_mul_i32 s52, s52, 1280\ns_lshl_b32 s53, s3, 8\ns_add_u32 s52, s52, s53")
    a("v_lshlrev_b32 v17, 4, v0\ns_lshl_b32 s54, s24, 13\ns_lshl_b32 s53, s25, %d\ns_add_u32 s54, s54, s53\ns_add_u32 s54, s54, %d" % (7 if OD else 10, WS_O))
    if OD == 1: a("v_lshlrev_b32 v18, 10, v5\nv_lshl_add_u32 v18, v4, 4, v18")
    if OD == 2: a("v_lshlrev_b32 v18, 10, v4\nv_lshl_add_u32 v18, v5, 4, v18\nv_lshlrev_b32 v23, 2, v4\nv_lshl_add_u32 v23, v5, 5, v23")
    if PT:
        PL = "buffer_load_dwordx4 v[%d:%d], v%d, s[12:15], s54 offen" % (G + 4, G + 7, 18 if OD else 17)
        a("s_cmp_lg_u32 s3, %d\ns_cbranch_scc1 .Laux_npt\n%s\n.Laux_npt:" % (PT % 10, [PL + " sc1", PL + " nt", PL + " nt\ns_waitcnt vmcnt(0)\n" + PL + " sc1"][PT // 10]))
    if DG:
        a("s_cmp_lg_u32 s3, 1\ns_cbranch_scc1 .Laux_ndg\ns_lshl_b32 s28, s2, 13\ns_add_u32 s28, s28, 0x400000")
        if DG == 6: a("s_mul_i32 s28, s24, 1572864\ns_mul_i32 s29, s25, 196608\ns_add_u32 s28, s28, s29\ns_add_u32 s28, s28, 98304")
        if DG == 5: a("s_add_u32 s30, s12, s28\ns_addc_u32 s31, s13, 0")
        for k in range(DN):
            if DG == 5:
                for j in range(8): a("s_load_dword s29, s[30:31], %d" % (1024 * k + 128 * j))
                a("s_waitcnt lgkmcnt(0)")
            else:
                a("buffer_load_dwordx4 v[%d:%d], v17, s[%s], s28 offen%s\ns_waitcnt vmcnt(0)" % (G + 4, G + 7, "44:47" if DG == 6 else "12:15", {1: " sc1", 2: "", 3: " nt", 4: " sc1", 6: " nt"}[DG]))
                if DG != 4: a("s_add_u32 s28, s28, 1024")
        stamp(6)
        a(".Laux_ndg:")
    if XD:
        a("s_lshl_b32 s28, s2, 13\ns_lshl_b32 s29, s3, 10\ns_add_u32 s28, s28, s29\ns_add_u32 s28, s28, 0x400000")
        for k in range(XD): a("buffer_store_dwordx4 v[36:39], v17, s[12:15], s28 offen\ns_add_u32 s28, s28, 0x200000")
    a("v_mov_b32 v9, s26\nv_mov_b32 v11, s26\nv_mov_b32 v22, 0xffff\nv_lshlrev_b32 v22, v%d, v22" % SH)
    assert not (AP and (aslot or FG))
    assert not (RP and (aslot or FG or AP))
    if aslot == 0: a("%s\ns_lshl_b32 s53, s24, %d\ns_add_u32 s60, s60, s53\ns_lshl_b32 s53, s25, %d\ns_add_u32 s60, s60, s53\ns_add_u32 s60, s60, %d" % ("s_mul_i32 s60, s3, %d" % (16 * (16384 + RP)) if RP else "s_lshl_b32 s60, s3, %d" % (18 + AP), 9 + AP, 6 + AP, WS_A))
    if aslot == 1: a("s_lshl_b32 s60, s3, 18\ns_and_b32 s53, s24, 15\ns_lshl_b32 s53, s53, 10\ns_add_u32 s60, s60, s53\ns_lshl_b32 s53, s25, 7\ns_add_u32 s60, s60, s53\ns_lshr_b32 s53, s24, 4\ns_lshl_b32 s53, s53, 6\ns_add_u32 s60, s60, s53\ns_add_u32 s60, s60, %d" % WS_A)
    if aslot == 2: a("s_lshl_b32 s60, s3, 18\ns_lshl_b32 s53, s2, 6\ns_add_u32 s60, s60, s53\ns_add_u32 s60, s60, %d" % WS_A)
    if FG: a("s_lshl_b32 s28, s24, 7\ns_add_u32 s28, s28, %d" % WS_F)
    cw = [int(c) for c in "%05d" % CW]
    a("s_lshl_b32 s53, s3, 2\ns_lshr_b32 s61, 0x%x, s53\ns_and_b32 s61, s61, 15" % sum(c << (4 * i) for i, c in enumerate(cw)))
    if GO:
        a("s_cmp_lg_u32 s3, 1\ns_cbranch_scc1 .Lgo_done\ns_load_dword s92, s[94:95], 0\ns_mov_b32 s27, 100000\nv_mov_b32 v16, 8")
        a(".Lgo_l:\ns_memrealtime s[90:91]\nds_read_b32 v3, v%d offset:%d\ns_waitcnt lgkmcnt(0)\nv_readfirstlane_b32 s40, v3\ns_cmp_ge_u32 s40, 8\ns_cbranch_scc1 .Lgo_done" % (Z, F_WOGO))
        a("s_sub_u32 s27, s27, 1\ns_cbranch_scc1 .Lgo_done\ns_sub_u32 s90, s90, s92\ns_cmp_lt_i32 s90, %d\ns_cbranch_scc1 .Lgo_l" % GO)
        a("s_mov_b64 exec, 1\nds_write_b32 v%d, v%d offset:%d" % (Z, ONE, F_MODE))
        if GW: a("ds_add_u32 v%d, v16 offset:%d" % (Z, F_WOGO))
        a("s_mov_b64 exec, -1\n.Lgo_done:")
    if PW <= 24:
        lwait(F_WOGO, "s61", Z, 3)
        def dummy():
            a("s_cmp_ge_u32 s3, 3\ns_cbranch_scc1 .Lnodum\ns_cmp_lt_u32 s3, %d\ns_cbranch_scc1 .Lnodum\ns_mul_i32 s28, s2, 7680\ns_add_u32 s29, s28, 4096" % (0 if abl & 64 else 2))
            for t in range(8): a("buffer_load_dwordx4 v[%d:%d], v17, s[44:47], s%d offen offset:%d%s" % (44 + 4 * t, 47 + 4 * t, 28 + t // 4, 1024 * (t & 3), NT))
            if abl & 512: a("s_waitcnt vmcnt(2)")
            a(".Lnodum:")
        if abl & 128 and abl & 256: dummy()
        stage2_loads(8, [7, 7, 7], 1280)
        if abl & 128 and not abl & 256: dummy()
    stamp(8)
    a("s_barrier")
    if PW > 24: stage2_loads(8, [7, 7, 7], 1280)
    if OQ: lwait(F_MODE, "2", Z, 3)
    if OW: a("s_waitcnt vmcnt(0)")
    stamp(9)
    GOI = G + 8 if CL & 4 else G
    poll(["buffer_load_dwordx4 v[%d:%d], v%d, s[12:15], s54 offen sc1" % (GOI, GOI + 3, 18 if OD else 17)], [GOI + 3], 5)
    if OD == 2:
        for t in range(3): a("ds_bpermute_b32 v%d, v23, v%d" % (G + t, G + t))
    stamp(10)
    if ST2: a("s_memtime s[90:91]")
    if FG: a("s_cmp_lg_u32 s3, %d\ns_cbranch_scc1 .Laux_nfl\ns_mov_b64 exec, 1\nbuffer_store_dword v9, v%d, s[12:15], s28 offen sc1\ns_mov_b64 exec, -1\n.Laux_nfl:" % (FW, Z))
    if bdef: a("s_cmp_lt_u32 s25, 6\ns_cbranch_scc1 .Laux_nob\n%s\n.Laux_nob:" % BST)
    if OD == 2: a("s_waitcnt lgkmcnt(0)")
    assert not (OD == 2 and CL & 4)
    for i, ctl in enumerate(("quad_perm:[1,0,3,2]", "quad_perm:[2,3,0,1]", "row_half_mirror")):
        for t in range(3): dpp("v_add_f32", G + t, (G if i else GOI) + t, (G if i else GOI) + t, ctl)
    if ST2: a("s_memtime s[92:93]")
    stage2(8, True)
    a("buffer_store_dwordx4 v[8:11], v20, s[12:15], s60 offen sc1" + (" sc0" if AS & 2 else ""))
    if ST2:
        a("s_memtime s[96:97]\ns_waitcnt lgkmcnt(0)")
        for k, r in ((1, 92), (2, 94), (3, 96)): a("s_sub_u32 s%d, s%d, s90\ns_add_u32 s%d, s%d, s88" % (62 + 2 * k, r, 62 + 2 * k, 62 + 2 * k))
    stamp(11)
    if CL & 4: a("s_cmp_lg_u32 s3, 2\ns_cbranch_scc1 .Laux_nco\nbuffer_store_dwordx4 v[%d:%d], v17, s[12:15], s54 offen sc1\n.Laux_nco:" % (GOI, GOI + 3))
    if CL & 2: a("s_cmp_lg_u32 s3, 4\ns_cbranch_scc1 .Laux_ncs\ns_mov_b64 exec, 0xff\nbuffer_store_dwordx4 v[%d:%d], v17, s[12:15], s63 offen sc1\ns_mov_b64 exec, -1\n.Laux_ncs:" % (G + 4, G + 7))
    if gue == 1: a("s_cmp_lt_u32 s3, 3\ns_cbranch_scc1 %s\ns_cmp_ge_u32 s25, 6\ns_cbranch_scc1 .Laux_nogu\n.Laux_gu:\ns_mov_b32 exec_hi, 0\nbuffer_store_dwordx4 v[36:39], v17, s[12:15], s51 offen sc1\n.Laux_nogu:" % (".Laux_gu" if CL & 1 else ".Laux_nogu"))
    if RM: ridx(40, 41)
    if HY: a("s_cmp_ge_u32 s2, %d\ns_cbranch_scc1 .Laux_nba\ns_barrier\n.Laux_nba:" % NRED)
    if ack == 1: a("s_waitcnt vmcnt(0)"); stamp(12)
    if FG == 1:
        a("s_mov_b64 exec, 1\nds_add_u32 v%d, v%d offset:%d\ns_waitcnt lgkmcnt(0)" % (Z, ONE, F_MODE))
        if stamps: a("s_cmp_lt_u32 s2, %d\ns_cbranch_scc1 .Laux_nb\ns_barrier\n.Laux_nb:\ns_waitcnt vmcnt(0)" % NRED)
    elif stamps and fl: a("s_barrier\ns_waitcnt vmcnt(0)")
    else: a("s_cmp_ge_u32 %s, %d\ns_cbranch_scc1 .Laux_end\ns_barrier" % ("s40" if RM else "s2", NRED))
    if ack == 2: stamp(12)
    a(".Laux_end:")
    if gue == 2: a("s_cmp_lt_u32 s3, 3\ns_cbranch_scc1 .Laux_nogu\ns_cmp_ge_u32 s25, 6\ns_cbranch_scc1 .Laux_nogu\ns_mov_b32 exec_hi, 0\nbuffer_store_dwordx4 v[36:39], v17, s[12:15], s51 offen sc1\ns_mov_b64 exec, -1\n.Laux_nogu:")
    flush_stamps(range(1, 13))
    a(".Lend:\ns_endpgm")
    i0, i1 = a.l.index(".Lbulk2:"), a.l.index(".Laux:")
    a.l = a.l[:i0] + a.l[i1:] + a.l[i0:i1]
    base = a.l
    def build(np_):
        l = list(base)
        tb, ta = [], []
        for k in range(np_):
            wv = 5 + k if k < 8 else 12 - k
            (tb if k < 8 else ta).extend(["    s_cmp_eq_u32 s3, %d" % wv, "    s_cbranch_scc1 .Lpad_%d" % k])
        i = l.index(".Ltouch_b:"); l[i:i + 1] = tb
        i = l.index(".Ltouch_a:"); l[i:i + 1] = ta
        l += [".Lpad_%d:" % k for k in range(np_)]
        l, n = hazard.fix(l)
        return l[:len(l) - np_]
    np_ = 0
    while True:
        l = build(np_)
        if not warm: break
        l, k = pads.add(l, [".Lbulk2"] * 8 + [".Laux2"] * 5, WIN)
        if k == np_: break
        assert k > np_
        np_ = k
    a.l, n = hazard.fix(l)
    assert n == 0
    return a.text(256, 832, LDS_BYTES, 128)

if __name__ == "__main__":
    out = sys.argv[1]
    kw = dict(x.split("=") for x in sys.argv[2:])
    kw = {k: int(v) for k, v in kw.items()}
    open(out, "w").write(gen(**kw))
```
